```python
import torch

def _softmax(x, axis=-1):
    return torch.softmax(x, dim=axis)
def _gelu(x):
    return torch.nn.functional.gelu(x, approximate="tanh")
def _silu(x):
    return torch.nn.functional.silu(x)
def _sigmoid(x):
    return torch.sigmoid(x)
def _layernorm(x, axis=-1, eps=1e-5):
    m = x.mean(dim=axis, keepdim=True)
    v = x.var(dim=axis, keepdim=True, unbiased=False)
    return (x - m) / torch.sqrt(v + eps)
def _scatter_add(tgt, idx, src, axis=0):
    return tgt.clone().index_add_(axis, idx, src)
def _segment_sum(src, seg, n):
    out = torch.zeros((n,) + src.shape[1:], dtype=src.dtype)
    return out.index_add_(0, seg, src)
def _pad(x, pw):
    flat = tuple(v for pair in reversed(pw) for v in pair)
    return torch.nn.functional.pad(x, flat)

kernel_name = 'interleave_layers__mha_block_cached__glu_gated_glu__decode'

def setup_inputs():

    _w = (lambda a: (lambda t: t.to(torch.bfloat16) if t.is_floating_point() else t)(torch.as_tensor(a)))
    def _A_setup():
        B, Sq, D = 2, 1, 448
        H, Sk, Dh = 16, 16384, 256
        return {
            "x": _w((lambda *s: torch.randn(*s, dtype=torch.bfloat16) * 0.05)(B, Sq, D)),
            "k_cache": _w((lambda *s: torch.randn(*s, dtype=torch.bfloat16) * 1.6)(B, H, Sk, Dh)),
            "v_cache": _w((lambda *s: torch.randn(*s, dtype=torch.bfloat16) * 1.6)(B, H, Sk, Dh)),
            "wq": _w((lambda *s: torch.randn(*s, dtype=torch.bfloat16) * 1.6)(D, H * Dh) * (D ** -0.5)),
            "wo": _w((lambda *s: torch.randn(*s, dtype=torch.bfloat16) * 1.6)(H * Dh, D) * ((H * Dh) ** -0.5)),
        }
    _A_in = _A_setup()

    def _B_setup():
        B, S, D, F = 2, 1, 448, 1792
        return {
            "x": _w((lambda *s: torch.randn(*s, dtype=torch.bfloat16) * 0.05)(B, S, D)),
            "w_gate": _w((lambda *s: torch.randn(*s, dtype=torch.bfloat16) * 0.05)(D, F)),
            "w_up": _w((lambda *s: torch.randn(*s, dtype=torch.bfloat16) * 0.05)(D, F)),
            "w_down": _w((lambda *s: torch.randn(*s, dtype=torch.bfloat16) * 0.05)(F, D)),
        }
    _B_in = _B_setup()

    return {
        "A_x": _A_in["x"],
        "A_k_cache": _A_in["k_cache"],
        "A_v_cache": _A_in["v_cache"],
        "A_wq": _A_in["wq"],
        "A_wo": _A_in["wo"],
        "B_x": _B_in["x"],
        "B_w_gate": _B_in["w_gate"],
        "B_w_up": _B_in["w_up"],
        "B_w_down": _B_in["w_down"],
    }

def reference(A_x, A_k_cache, A_v_cache, A_wq, A_wo, B_x, B_w_gate, B_w_up, B_w_down):
    def _A_ref(x, k_cache, v_cache, wq, wo):
        B, Sq, D = x.shape
        H, Dh = 16, 256
        q = (lambda x, *d: x.permute(*d))((x @ wq).reshape(B, Sq, H, Dh), 0, 2, 1, 3)
        scores = torch.einsum("bhqd,bhkd->bhqk", q, k_cache) * (Dh ** -0.5)
        p = _softmax(scores, axis=-1)
        o = torch.einsum("bhqk,bhkd->bhqd", p, v_cache)
        return (lambda x, *d: x.permute(*d))(o, 0, 2, 1, 3).reshape(B, Sq, H * Dh) @ wo

    def _B_ref(x, w_gate, w_up, w_down):
        g = torch.einsum("bsd,df->bsf", x, w_gate)
        u = torch.einsum("bsd,df->bsf", x, w_up)
        h = _sigmoid(g) * u
        return torch.einsum("bsf,fd->bsd", h, w_down)

    x = A_x
    x = x + _A_ref(_layernorm(x, axis=-1), A_k_cache, A_v_cache, A_wq, A_wo)
    x = x + _B_ref(_layernorm(x, axis=-1), B_w_gate, B_w_up, B_w_down)
    x = x + _A_ref(_layernorm(x, axis=-1), A_k_cache, A_v_cache, A_wq, A_wo)
    x = x + _B_ref(_layernorm(x, axis=-1), B_w_gate, B_w_up, B_w_down)
    return x
```

```python
import struct, sys

NAME = "interleave_layers__mha_block_cached__glu_gated_glu__decode"
DEBUG_TS = False
SPIN_MAX = 400000

def f32(x):
    return "0x%08x" % struct.unpack("<I", struct.pack("<f", x))[0]

LOG2E = 1.4426950408889634
REGION = 98304
Q_OFF, Y_OFF, Z_OFF, P_OFF = 256, 2304, 9472, 16640
PSLOT = 1152
CLEAR_PER_WAVE = 21
NDYN = 784
NSTAT = 240
TS_OFF = 0x200000

L = []
def A(s):
    L.append("    " + s)
def LAB(s):
    L.append(s + ":")
def NOP(n):
    if n > 0:
        A(f"s_nop {n-1}")
def vr(a, n):
    return f"v[{a}:{a+n-1}]"
def ar(a, n):
    return f"a[{a}:{a+n-1}]"
def sr(a, n):
    return f"s[{a}:{a+n-1}]"
DPPM = "row_mask:0xf bank_mask:0xf"

def srd(dst, ptr, nbytes):
    A(f"s_mov_b32 s{dst}, s{ptr}")
    A(f"s_and_b32 s{dst+1}, s{ptr+1}, 0xffff")
    A(f"s_mov_b32 s{dst+2}, {nbytes}")
    A(f"s_mov_b32 s{dst+3}, 0x20000")

def exec_set(val):
    lo, hi = val & 0xffffffff, val >> 32
    A(f"s_mov_b32 exec_lo, 0x{lo:x}")
    A(f"s_mov_b32 exec_hi, 0x{hi:x}")
def exec_all():
    A("s_mov_b64 exec, -1")

def xrow_reduce(op, x, t):
    A(f"v_mov_b32 v{t}, v{x}")
    NOP(2)
    A(f"v_permlane16_swap_b32 v{x}, v{t}")
    NOP(1)
    A(f"{op} v{x}, v{x}, v{t}")
    A(f"v_mov_b32 v{t}, v{x}")
    NOP(2)
    A(f"v_permlane32_swap_b32 v{x}, v{t}")
    NOP(1)
    A(f"{op} v{x}, v{x}, v{t}")

def row_reduce(op, x):
    for ctl in ("quad_perm:[1,0,3,2]", "quad_perm:[2,3,0,1]", "row_half_mirror", "row_mirror"):
        NOP(2)
        A(f"{op}_dpp v{x}, v{x}, v{x} {ctl} {DPPM}")

def wave_reduce(op, x, t):
    row_reduce(op, x)
    xrow_reduce(op, x, t)

def bf16_round(dst, src):
    A(f"v_cvt_pk_bf16_f32 v{dst}, v{src}, v{src}")
    A(f"v_and_b32 v{dst}, 0xffff0000, v{dst}")

ts_id = [0]
def TS(idx_sgpr_or_const, slot):
    if not DEBUG_TS:
        return
    A("s_memrealtime s[98:99]")
    A("s_waitcnt lgkmcnt(0)")
    A("v_mov_b32 v62, s98")
    A(f"s_add_u32 s98, s97, {slot*4}" if isinstance(slot, int) else f"s_add_u32 s98, s97, {slot}")
    A("v_mov_b32 v63, 0")
    A("s_mov_b64 s[100:101], exec")
    A("s_mov_b64 exec, 1")
    A("buffer_store_dword v62, v63, s[48:51], s98 offen")
    A("s_mov_b64 exec, s[100:101]")

def header():
    L.append("; Kernarg: 0 A_x, 8 A_k_cache, 16 A_v_cache, 24 A_wq, 32 A_wo, 40 B_x, 48 B_w_gate, 56 B_w_up,")
    L.append("; @launch grid=(256,1,1) block=(256,1,1) lds=163840")
    L.append('.amdgcn_target "amdgcn-amd-amdhsa--gfx950"')
    L.append(".text")
    L.append(f".globl {NAME}_kernel")
    L.append(".p2align 8")
    L.append(f".type {NAME}_kernel,@function")
    LAB(f"{NAME}_kernel")
    A("s_cmp_ge_u32 s2, 256")
    A("s_cbranch_scc1 L_END")
    A("s_load_dwordx16 s[16:31], s[0:1], 0")
    A("s_load_dwordx8 s[32:39], s[0:1], 64")
    A("v_lshrrev_b32 v1, 6, v0")
    A("v_and_b32 v0, 63, v0")
    A("v_readfirstlane_b32 s3, v1")
    A(f"s_mov_b32 s96, {SPIN_MAX}")
    A("s_waitcnt lgkmcnt(0)")
    srd(48, 38, 0x40000000 if DEBUG_TS else 16 * REGION)
    srd(52, 36, 256)
    if DEBUG_TS:
        A("s_lshl_b32 s97, s2, 2")
        A("s_add_u32 s97, s97, s3")
        A("s_lshl_b32 s97, s97, 8")
        A(f"s_add_u32 s97, s97, {TS_OFF}")
    A("s_cmp_lt_u32 s2, 16")
    A("s_cbranch_scc1 L_SERVICE")

def footer():
    LAB("L_END")
    A("s_endpgm")
    L.append('.section .rodata,"a"')
    L.append(".p2align 6")
    L.append(f".amdhsa_kernel {NAME}_kernel")
    L.append("  .amdhsa_next_free_vgpr 512")
    L.append("  .amdhsa_next_free_sgpr 102")
    L.append("  .amdhsa_accum_offset 256")
    L.append("  .amdhsa_group_segment_fixed_size 0")
    L.append("  .amdhsa_kernarg_size 96")
    L.append("  .amdhsa_user_sgpr_count 2")
    L.append("  .amdhsa_user_sgpr_kernarg_segment_ptr 1")
    L.append("  .amdhsa_system_sgpr_workgroup_id_x 1")
    L.append("  .amdhsa_float_denorm_mode_32 3")
    L.append(".end_amdhsa_kernel")

def spin_guard(label_retry):
    A("s_sleep 2")
    A("s_sub_u32 s96, s96, 1")
    A("s_cmp_eq_u32 s96, 0")
    A("s_cbranch_scc1 L_END")
    A(f"s_branch {label_retry}")

def masks16(m, t):
    A(f"v_and_b32 v{t}, 15, v0")
    A(f"v_and_b32 v{t+1}, 1, v0")
    A(f"v_lshlrev_b32 v{t+1}, 4, v{t+1}")
    A(f"v_mov_b32 v{m}, 0xffff")
    A(f"v_lshlrev_b32 v{t+1}, v{t+1}, v{m}")
    A(f"v_lshrrev_b32 v{t}, 1, v{t}")
    for j in range(4):
        A(f"v_cmp_eq_u32 vcc, {j}, v{t}")
        NOP(2)
        A(f"v_cndmask_b32 v{m+j}, 0, v{t+1}, vcc")

def masks8(m, t):
    A(f"v_and_b32 v{t}, 7, v0")
    A(f"v_and_b32 v{t+1}, 1, v0")
    A(f"v_lshlrev_b32 v{t+1}, 4, v{t+1}")
    A(f"v_mov_b32 v{m}, 0xffff")
    A(f"v_lshlrev_b32 v{t+1}, v{t+1}, v{m}")
    A(f"v_lshrrev_b32 v{t}, 1, v{t}")
    for j in range(4):
        A(f"v_cmp_eq_u32 vcc, {j}, v{t}")
        NOP(2)
        A(f"v_cndmask_b32 v{m+j}, 0, v{t+1}, vcc")

vKOFF, vVOFF, vLDSK = 1, 2, 3
vMSK = 4
vZERO, vONE, vTICK = 8, 9, 10
vQOFF = 11
vM, vL = 12, 13
vS0, vS1, vSa, vSb, vX, vY, vF, vT = 14, 15, 16, 17, 18, 19, 20, 21
vP0, vP1 = 22, 23
vB0, vB1 = 24, 28
vACC = 32
vQ = 40
vQN = 56
vSCR, vQB, vQR = 58, 59, 60
vTICK2 = 61
RING = 64
KST = 128
sK, sV, sWS, sDBG = 40, 44, 48, 52
sHEAD, sC, sWV, sHOFF = 4, 5, 6, 7
sLDPH, sLIM, sTB, sNOFF, sCUR, sPROC, sQTAG, sT0 = 8, 9, 10, 11, 12, 13, 14, 15
sCC, sREG, sT1, sT2, sBOFF, sT3 = 72, 73, 74, 75, 76, 77
LDS_SCR = 131072
LDS_PART = LDS_SCR
LDS_CNT = LDS_SCR + 8448
LDS_QB = LDS_SCR + 8704

def loadK(dst, soff):
    for j in range(4):
        A(f"buffer_load_dwordx4 {vr(dst+4*j,4)}, v{vKOFF}, {sr(sK,4)}, s{soff} offen offset:{128*j} nt")
def loadV(dst, soff, agpr=False):
    for j in range(4):
        d = ar(dst+4*j, 4) if agpr else vr(dst+4*j, 4)
        A(f"buffer_load_dwordx4 {d}, v{vVOFF}, {sr(sV,4)}, s{soff} offen offset:{256*j} nt")

def kdots(R, S):
    for i in range(8):
        for (acc, k) in ((vSa, i), (vSb, 8 + i)):
            c = "0" if i == 0 else f"v{acc}"
            A(f"v_dot2_f32_bf16 v{acc}, v{R+k}, v{vQ+k}, {c}")
    NOP(3)
    A(f"v_add_f32 v{S}, v{vSa}, v{vSb}")

def kdots_lds(ldsoff, S):
    tmp = (vB0, vB1)
    A(f"ds_read_b128 {vr(tmp[0],4)}, v{vLDSK} offset:{ldsoff}")
    A(f"ds_read_b128 {vr(tmp[1],4)}, v{vLDSK} offset:{ldsoff+1024}")
    for j in range(4):
        A(f"s_waitcnt lgkmcnt({1 if j < 3 else 0})")
        acc = vSa if j % 2 == 0 else vSb
        for i in range(4):
            c = "0" if (j < 2 and i == 0) else f"v{acc}"
            A(f"v_dot2_f32_bf16 v{acc}, v{tmp[j%2]+i}, v{vQ+4*j+i}, {c}")
        if j < 2:
            A(f"ds_read_b128 {vr(tmp[j%2],4)}, v{vLDSK} offset:{ldsoff+1024*(j+2)}")
    NOP(3)
    A(f"v_add_f32 v{S}, v{vSa}, v{vSb}")

def softmax_update():
    for ctl in ("quad_perm:[1,0,3,2]", "quad_perm:[2,3,0,1]", "row_half_mirror"):
        NOP(1)
        A(f"v_add_f32_dpp v{vS0}, v{vS0}, v{vS0} {ctl} {DPPM}")
        A(f"v_add_f32_dpp v{vS1}, v{vS1}, v{vS1} {ctl} {DPPM}")
        NOP(1)
    A(f"v_cvt_pk_bf16_f32 v{vT}, v{vS0}, v{vS1}")
    A(f"v_lshlrev_b32 v{vS0}, 16, v{vT}")
    A(f"v_and_b32 v{vS1}, 0xffff0000, v{vT}")
    A(f"v_max_f32 v{vX}, v{vS0}, v{vS1}")
    NOP(2)
    A(f"v_max_f32_dpp v{vX}, v{vX}, v{vX} row_ror:8 {DPPM}")
    xrow_reduce("v_max_f32", vX, vY)
    A(f"v_mul_f32 v{vX}, s{sCC}, v{vX}")
    A(f"v_ceil_f32 v{vX}, v{vX}")
    A(f"v_max_f32 v{vX}, v{vX}, v{vM}")
    A(f"v_sub_f32 v{vF}, v{vM}, v{vX}")
    A(f"v_fma_f32 v{vS0}, v{vS0}, s{sCC}, -v{vX}")
    A(f"v_fma_f32 v{vS1}, v{vS1}, s{sCC}, -v{vX}")
    A(f"v_exp_f32 v{vF}, v{vF}")
    A(f"v_exp_f32 v{vS0}, v{vS0}")
    A(f"v_exp_f32 v{vS1}, v{vS1}")
    A(f"v_mov_b32 v{vM}, v{vX}")
    for k in range(8):
        A(f"v_mul_f32 v{vACC+k}, v{vACC+k}, v{vF}")
    A(f"v_fma_f32 v{vL}, v{vL}, v{vF}, v{vS0}")
    A(f"v_cvt_pk_bf16_f32 v{vP0}, v{vS0}, v{vS0}")
    A(f"v_cvt_pk_bf16_f32 v{vP1}, v{vS1}, v{vS1}")
    A(f"v_add_f32 v{vL}, v{vL}, v{vS1}")

def vmfma(R, P, agpr=False):
    rr = (lambda k: ar(R+4*k, 4)) if agpr else (lambda k: vr(R+4*k, 4))
    for j in range(4):
        A(f"v_and_b32 v{vB0+j}, v{P}, v{vMSK+j}")
    for j in range(4):
        A(f"v_and_b32_dpp v{vB1+j}, v{P}, v{vMSK+j} row_ror:8 {DPPM}")
    a0, a1 = vr(vACC, 4), vr(vACC+4, 4)
    A(f"v_mfma_f32_16x16x32_bf16 {a0}, {rr(0)}, {vr(vB0,4)}, {a0}")
    A(f"v_mfma_f32_16x16x32_bf16 {a1}, {rr(1)}, {vr(vB0,4)}, {a1}")
    A(f"v_mfma_f32_16x16x32_bf16 {a0}, {rr(2)}, {vr(vB1,4)}, {a0}")
    A(f"v_mfma_f32_16x16x32_bf16 {a1}, {rr(3)}, {vr(vB1,4)}, {a1}")

def ticket_atomic(dst):
    A("s_mov_b64 exec, 1")
    A(f"buffer_atomic_add v{dst}, v{vZERO}, {sr(sWS,4)}, s{sREG} offen sc0 sc1")
    exec_all()

dec_n = [0]
def decode(src):
    n = dec_n[0]; dec_n[0] += 1
    A(f"v_readfirstlane_b32 s{sT0}, v{src}")
    A(f"v_mov_b32 v{src}, 1")
    A(f"s_add_u32 s{sT0}, s{sT0}, 1")
    LAB(f"L_DEC{n}")
    A(f"s_cmp_lt_u32 s{sT0}, s{sLIM}")
    A(f"s_cbranch_scc1 L_DOK{n}")
    A(f"s_add_u32 s{sLDPH}, s{sLDPH}, 1")
    A(f"s_add_u32 s{sLIM}, s{sLIM}, {NDYN}")
    A(f"s_sub_u32 s{sTB}, s{sTB}, {NDYN*8192}")
    A(f"s_xor_b32 s{sBOFF}, s{sBOFF}, 0x08000000")
    A(f"s_cmp_lt_u32 s{sLDPH}, 4")
    A(f"s_cbranch_scc0 L_DFIN{n}")
    A(f"s_lshl_b32 s{sT1}, s{sLDPH}, 9")
    A(f"s_add_u32 s{sT1}, s{sT1}, s{sREG}")
    A(f"buffer_load_dwordx2 {vr(vQN,2)}, v{vQOFF}, {sr(sWS,4)}, s{sT1} offen offset:{Q_OFF} sc1")
    A(f"s_mov_b32 s{sQTAG}, s{sLDPH}")
    A(f"s_branch L_DEC{n}")
    LAB(f"L_DFIN{n}")
    A(f"s_mov_b32 s{sLIM}, -1")
    LAB(f"L_DOK{n}")
    A(f"s_lshl_b32 s{sNOFF}, s{sT0}, 13")
    A(f"s_add_u32 s{sNOFF}, s{sNOFF}, s{sTB}")
    A(f"s_add_u32 s{sNOFF}, s{sNOFF}, s{sBOFF}")
    A(f"s_cmp_ge_u32 s{sLDPH}, 4")
    A(f"s_cselect_b32 s{sNOFF}, 0x80000000, s{sNOFF}")
    A(f"s_add_u32 s{sT3}, s{sNOFF}, 4096")

def static_loads(b, part):
    def soff(u):
        A(f"s_add_u32 s{sT1}, s{sT2}, {b*0x08000000 + u*4096}")
    if part == 0:
        for u in range(4):
            soff(u); loadK(KST + (b*4+u)*16, sT1)
    elif part == 1:
        for u in range(4):
            soff(4+u)
            for j in range(4):
                A(f"s_add_u32 m0, s{sT3}, {(b*4+u)*4096 + 896*j}")
                NOP(1)
                A(f"buffer_load_dwordx4 v{vKOFF}, {sr(sK,4)}, s{sT1} offen offset:{128*j} nt lds")
    else:
        for u in range(4*(part-2), 4*(part-2)+4):
            soff(u); loadV((b*8+u)*16, sT1, agpr=True)

def statics(b):
    for blk in range(4):
        for i, S in ((0, vS0), (1, vS1)):
            u = blk*2 + i
            if u < 4:
                kdots(KST + (b*4+u)*16, S)
            else:
                kdots_lds((b*4+u-4)*4096, S)
        softmax_update()
        vmfma((b*8+blk*2)*16, vP0, agpr=True)
        vmfma((b*8+blk*2+1)*16, vP1, agpr=True)
        NOP(4)

def stream():
    TS(0, 0)
    A(f"s_sub_u32 s{sT0}, s2, 16")
    A(f"s_mul_hi_u32 s{sHEAD}, s{sT0}, 0x11111112")
    A(f"s_mul_i32 s{sT1}, s{sHEAD}, 15")
    A(f"s_sub_u32 s{sC}, s{sT0}, s{sT1}")
    A(f"s_lshl_b32 s{sWV}, s{sC}, 2")
    A(f"s_add_u32 s{sWV}, s{sWV}, s3")
    A(f"s_lshl_b32 s{sHOFF}, s{sHEAD}, 23")
    srd(sK, 18, 0x10000000)
    srd(sV, 20, 0x10000000)
    A(f"v_lshrrev_b32 v{vX}, 3, v0")
    A(f"v_and_b32 v{vY}, 7, v0")
    A(f"v_lshlrev_b32 v{vX}, 9, v{vX}")
    A(f"v_lshl_add_u32 v{vKOFF}, v{vY}, 4, v{vX}")
    A(f"v_lshrrev_b32 v{vX}, 4, v0")
    A(f"v_and_b32 v{vY}, 15, v0")
    A(f"v_lshlrev_b32 v{vX}, 10, v{vX}")
    A(f"v_lshl_add_u32 v{vVOFF}, v{vY}, 4, v{vX}")
    A(f"s_lshl_b32 s{sT2}, s{sWV}, 15")
    A(f"s_add_u32 s{sT2}, s{sT2}, s{sHOFF}")
    A(f"s_lshl_b32 s{sT3}, s3, 15")
    for part in range(4):
        static_loads(0, part)
    A(f"s_mov_b32 s{sCC}, {f32(LOG2E/16)}")
    A(f"s_mul_i32 s{sREG}, s{sHEAD}, {REGION}")
    A(f"v_mov_b32 v{vZERO}, 0")
    A(f"v_mov_b32 v{vTICK}, 1")
    A(f"v_mov_b32 v{vTICK2}, 1")
    A(f"v_lshlrev_b32 v{vQOFF}, 3, v0")
    A(f"v_lshl_add_u32 v{vLDSK}, v0, 4, s{sT3}")
    masks16(vMSK, vX)
    A(f"v_lshrrev_b32 v{vX}, 4, v0")
    A(f"v_and_b32 v{vY}, 15, v0")
    A(f"v_lshl_add_u32 v{vX}, v{vX}, 3, v{vY}")
    A(f"v_lshlrev_b32 v{vX}, 4, v{vX}")
    A(f"s_mul_i32 s{sT1}, s3, 1056")
    A(f"s_add_u32 s{sT1}, s{sT1}, {LDS_PART}")
    A(f"v_add_u32 v{vSCR}, s{sT1}, v{vX}")
    A(f"s_lshl_b32 s{sT1}, s3, 9")
    A(f"s_add_u32 s{sT1}, s{sT1}, {LDS_QB}")
    A(f"v_lshl_add_u32 v{vQB}, v0, 3, s{sT1}")
    A(f"v_and_b32 v{vY}, 7, v0")
    A(f"v_lshl_add_u32 v{vQR}, v{vY}, 4, s{sT1}")
    A(f"v_lshlrev_b32 v{vX}, 2, v0")
    A(f"v_and_b32 v{vX}, 12, v{vX}")
    A(f"ds_write_b32 v{vX}, v{vZERO} offset:{LDS_CNT}") if False else None
    A(f"v_add_u32 v{vX}, {LDS_CNT}, v{vX}")
    A(f"ds_write_b32 v{vX}, v{vZERO}")
    A("s_waitcnt lgkmcnt(0)")
    A("s_barrier")
    A(f"s_lshl_b32 s{sT0}, s{sHEAD}, 2")
    A(f"buffer_load_dword v{vT}, v{vZERO}, {sr(sDBG,4)}, s{sT0} offen sc1")
    for part in range(3):
        static_loads(1, part)
    A("s_waitcnt vmcnt(48)")
    LAB("L_FLAGCHK")
    A(f"v_readfirstlane_b32 s{sT1}, v{vT}")
    NOP(2)
    A(f"s_cmp_lg_u32 s{sT1}, 0")
    A("s_cbranch_scc1 L_FLAGOK")
    A("s_sleep 2")
    A("s_sub_u32 s96, s96, 1")
    A("s_cmp_eq_u32 s96, 0")
    A("s_cbranch_scc1 L_END")
    A(f"buffer_load_dword v{vT}, v{vZERO}, {sr(sDBG,4)}, s{sT0} offen sc1")
    A("s_waitcnt vmcnt(0)")
    A("s_branch L_FLAGCHK")
    LAB("L_FLAGOK")
    TS(0, 1)
    ticket_atomic(vTICK2)
    ticket_atomic(vTICK)
    A(f"buffer_load_dwordx2 {vr(vQN,2)}, v{vQOFF}, {sr(sWS,4)}, s{sREG} offen offset:{Q_OFF} sc1")
    static_loads(1, 3)
    A(f"s_mov_b32 s{sQTAG}, 0")
    A(f"s_mov_b32 s{sLDPH}, 0")
    A(f"s_mov_b32 s{sLIM}, {NDYN}")
    A(f"s_add_u32 s{sTB}, s{sHOFF}, {NSTAT*8192}")
    A(f"s_mov_b32 s{sBOFF}, 0")
    A(f"s_mov_b32 s{sPROC}, 0")
    A("s_waitcnt vmcnt(16)")
    decode(vTICK2)
    loadK(RING, sNOFF); loadK(RING+16, sT3); loadV(RING+32, sNOFF); loadV(RING+48, sT3)
    A(f"s_mov_b32 s{sCUR}, s{sLDPH}")
    A("s_waitcnt vmcnt(12)")
    decode(vTICK)
    ticket_atomic(vTICK)
    A("s_branch L_SETUP")

    L.append(".p2align 6")
    LAB("L_LOOP")
    A("s_waitcnt vmcnt(12)")
    decode(vTICK)
    ticket_atomic(vTICK)
    A(f"s_cmp_lg_u32 s{sCUR}, s{sPROC}")
    A("s_cbranch_scc1 L_SWITCH")
    LAB("L_BODY")
    kdots(RING, vS0)
    loadK(RING, sNOFF)
    A("s_waitcnt vmcnt(13)")
    kdots(RING+16, vS1)
    loadK(RING+16, sT3)
    softmax_update()
    A("s_waitcnt vmcnt(13)")
    vmfma(RING+32, vP0)
    loadV(RING+32, sNOFF)
    A("s_waitcnt vmcnt(13)")
    vmfma(RING+48, vP1)
    loadV(RING+48, sT3)
    A(f"s_mov_b32 s{sCUR}, s{sLDPH}")
    A("s_branch L_LOOP")

    LAB("L_SWITCH")
    TS(0, "s95") if False else None
    NOP(8)
    A(f"v_add_f32_dpp v{vL}, v{vL}, v{vL} row_ror:8 {DPPM}")
    xrow_reduce("v_add_f32", vL, vY)
    A(f"s_and_b32 s{sT0}, s{sPROC}, 1")
    A(f"s_mul_i32 s{sT0}, s{sT0}, 4224")
    A(f"v_add_u32 v{vX}, s{sT0}, v{vSCR}")
    exec_set(0x00ff00ff00ff00ff)
    A(f"ds_write_b128 v{vX}, {vr(vACC,4)}")
    A(f"ds_write_b128 v{vX}, {vr(vACC+4,4)} offset:512")
    A("s_mov_b64 exec, 1")
    A(f"ds_write_b64 v{vX}, {vr(vM,2)} offset:1024")
    A(f"s_lshl_b32 s{sT1}, s{sPROC}, 2")
    A(f"s_add_u32 s{sT1}, s{sT1}, {LDS_CNT}")
    A(f"v_mov_b32 v{vX}, s{sT1}")
    A(f"v_mov_b32 v{vY}, 1")
    A("s_waitcnt lgkmcnt(0)")
    A(f"ds_add_rtn_u32 v{vY}, v{vX}, v{vY}")
    A("s_waitcnt lgkmcnt(0)")
    A(f"v_readfirstlane_b32 s{sT1}, v{vY}")
    exec_all()
    NOP(2)
    A(f"s_cmp_lg_u32 s{sT1}, 3")
    A("s_cbranch_scc1 L_NOPUB")
    A(f"s_add_u32 s{sT0}, s{sT0}, {LDS_PART}")
    A(f"v_mov_b32 v{vX}, s{sT0}")
    A(f"v_lshl_add_u32 v{vY}, v0, 4, s{sT0}")
    for w in range(4):
        A(f"ds_read_b64 {vr(vB0+2*w,2)}, v{vX} offset:{1056*w+1024}")
    for w in range(4):
        A(f"ds_read_b128 {vr(vQ+4*w,4)}, v{vY} offset:{1056*w}")
    A("s_waitcnt lgkmcnt(4)")
    A(f"v_max3_f32 v{vM}, v{vB0}, v{vB0+2}, v{vB0+4}")
    A(f"v_max_f32 v{vM}, v{vM}, v{vB0+6}")
    for w in range(4):
        A(f"v_sub_f32 v{vB0+2*w}, v{vB0+2*w}, v{vM}")
    for w in range(4):
        A(f"v_exp_f32 v{vB0+2*w}, v{vB0+2*w}")
    NOP(1)
    A(f"v_mul_f32 v{vL}, v{vB0}, v{vB0+1}")
    for w in range(1, 4):
        A(f"v_fmac_f32 v{vL}, v{vB0+2*w}, v{vB0+2*w+1}")
    A("s_waitcnt lgkmcnt(0)")
    for r in range(4):
        A(f"v_mul_f32 v{vACC+r}, v{vB0}, v{vQ+r}")
    for w in range(1, 4):
        for r in range(4):
            A(f"v_fmac_f32 v{vACC+r}, v{vB0+2*w}, v{vQ+4*w+r}")
    for r in range(4):
        A(f"v_min_u32 v{vACC+r}, -2, v{vACC+r}")
    A(f"v_min_u32 v{vM}, -2, v{vM}")
    A(f"v_min_u32 v{vL}, -2, v{vL}")
    A(f"s_mul_i32 s{sT0}, s{sPROC}, 15")
    A(f"s_add_u32 s{sT0}, s{sT0}, s{sC}")
    A(f"s_mul_i32 s{sT0}, s{sT0}, {PSLOT}")
    A(f"s_add_u32 s{sT0}, s{sT0}, s{sREG}")
    A(f"s_add_u32 s{sT0}, s{sT0}, {P_OFF}")
    A(f"v_lshlrev_b32 v{vX}, 4, v0")
    A(f"buffer_store_dwordx4 {vr(vACC,4)}, v{vX}, {sr(sWS,4)}, s{sT0} offen sc1")
    A("s_mov_b64 exec, 1")
    A(f"buffer_store_dwordx2 {vr(vM,2)}, v{vZERO}, {sr(sWS,4)}, s{sT0} offen offset:1024 sc1")
    exec_all()
    NOP(2)
    LAB("L_NOPUB")
    if DEBUG_TS:
        A(f"s_lshl_b32 s95, s{sPROC}, 3")
        A("s_add_u32 s95, s95, 12")
        TS(0, "s95")
    A(f"s_add_u32 s{sPROC}, s{sPROC}, 1")
    A(f"s_cmp_ge_u32 s{sPROC}, 4")
    A("s_cbranch_scc1 L_END")
    LAB("L_SETUP")
    A(f"s_cmp_eq_u32 s{sQTAG}, s{sPROC}")
    A("s_cbranch_scc1 L_QCHK")
    LAB("L_QSLOW")
    A(f"s_mov_b32 s{sQTAG}, -1")
    A(f"s_lshl_b32 s{sT1}, s{sPROC}, 9")
    A(f"s_add_u32 s{sT1}, s{sT1}, s{sREG}")
    A(f"buffer_load_dwordx2 {vr(vQN,2)}, v{vQOFF}, {sr(sWS,4)}, s{sT1} offen offset:{Q_OFF} sc1")
    A("s_waitcnt vmcnt(0)")
    LAB("L_QCHK")
    A(f"v_max_u32 v{vX}, v{vQN}, v{vQN+1}")
    A(f"v_cmp_eq_u32 vcc, -1, v{vX}")
    A("s_cbranch_vccz L_QOK")
    spin_guard("L_QSLOW")
    LAB("L_QOK")
    A(f"ds_write_b64 v{vQB}, {vr(vQN,2)}")
    A("s_waitcnt lgkmcnt(0)")
    for j in range(4):
        A(f"ds_read_b128 {vr(vQ+4*j,4)}, v{vQR} offset:{128*j}")
    for k in range(8):
        A(f"v_mov_b32 v{vACC+k}, 0")
    A(f"v_mov_b32 v{vL}, 0")
    A(f"v_mov_b32 v{vM}, {f32(-1e30)}")
    A("s_waitcnt lgkmcnt(0)")
    if DEBUG_TS:
        A(f"s_lshl_b32 s95, s{sPROC}, 3")
        A("s_add_u32 s95, s95, 8")
        TS(0, "s95")
    A(f"s_bitcmp1_b32 s{sPROC}, 0")
    A("s_cbranch_scc1 L_STAT1")
    statics(0)
    A("s_branch L_STATDONE")
    LAB("L_STAT1")
    statics(1)
    LAB("L_STATDONE")
    A(f"s_cmp_lg_u32 s{sCUR}, s{sPROC}")
    A("s_cbranch_scc1 L_SWITCH")
    A("s_branch L_BODY")

sS = 2
sX, sWQ, sWO, sWG, sWU, sWD, sOUT = 40, 44, 56, 60, 64, 68, 80
sKK, sBX, sMYREG = 4, 5, 6
sA0, sA1, sA2, sA3 = 7, 8, 9, 10
sRINGB = 11
wM8, wM16 = 4, 8
wOFF8, wOFFG, wOFFQ, wPI8 = 1, 2, 3, 12
wGOFF, wML, wR2W, wXPK = 13, 14, 15, 16
wRW, wHR, wL16, wZOFF = 17, 18, 19, 20
wL4, wZERO, wC0, wQR = 21, 22, 23, 0
wB = 24
wT = 28
RES_V = 64
LDS_DOWN = 0
LDS_RING = 100352
NRING = 10
LDS_X = LDS_RING + 4*NRING*1024
LDS_RED2 = LDS_X + 3584
LDS_RED = LDS_RED2 + 14336

def wo_tile(rg, cg):
    return ar((rg*7+cg)*4, 4)
def gu_tile(t, m):
    i = t*2 + m
    if i < 8:
        return ar(224 + i*4, 4)
    return vr(RES_V + (i-8)*4, 4)

def check_sentinel(regs, t, label_retry, label_ok):
    regs = list(regs)
    A(f"v_max_u32 v{t}, v{regs[0]}, v{regs[1]}")
    rest = regs[2:]
    while len(rest) >= 2:
        A(f"v_max3_u32 v{t}, v{t}, v{rest[0]}, v{rest[1]}")
        rest = rest[2:]
    if rest:
        A(f"v_max_u32 v{t}, v{t}, v{rest[0]}")
    A(f"v_cmp_eq_u32 vcc, -1, v{t}")
    A(f"s_cbranch_vccz {label_ok}")
    spin_guard(label_retry)
    LAB(label_ok)

def wq_dma(i):
    t, h = i // 2, i % 2
    A(f"s_add_u32 m0, s{sRINGB}, {(i % NRING)*1024}")
    A(f"s_add_u32 s{sA0}, s{sA3}, {t*4*8192 + h*256}")
    A(f"buffer_load_dwordx4 v{wOFFQ}, {sr(sWQ,4)}, s{sA0} offen lds")

def wq_base():
    A(f"s_mul_i32 s{sA3}, s3, {112*8192}")
    A(f"s_lshl_b32 s{sA0}, s{sS}, 9")
    A(f"s_add_u32 s{sA3}, s{sA3}, s{sA0}")

def layernorm(xp0, xp1):
    t = wT
    A(f"v_add_u32 v{t+10}, s{sBX}, v{wL4}")
    A(f"v_add_u32 v{t+11}, s{sBX}, v{wXPK}")
    for k in range(3):
        A(f"ds_read2st64_b32 {vr(t+2*k,2)}, v{t+10} offset0:{2*k} offset1:{2*k+1}")
    A(f"ds_read_b32 v{t+6}, v{t+10} offset:1536")
    A(f"ds_read_b32 v{xp0}, v{t+11}")
    A(f"ds_read_b32 v{xp1}, v{t+11} offset:256")
    A("s_waitcnt lgkmcnt(2)")
    A(f"v_add_f32 v{t+8}, v{t}, v{t+1}")
    for k in range(2, 7):
        A(f"v_add_f32 v{t+8}, v{t+8}, v{t+k}")
    wave_reduce("v_add_f32", t+8, t+9)
    A(f"v_mul_f32 v{t+8}, {f32(1/448)}, v{t+8}")
    for k in range(7):
        A(f"v_sub_f32 v{t+k}, v{t+k}, v{t+8}")
    A(f"v_mul_f32 v{t+7}, v{t}, v{t}")
    for k in range(1, 7):
        A(f"v_fmac_f32 v{t+7}, v{t+k}, v{t+k}")
    wave_reduce("v_add_f32", t+7, t+9)
    A(f"v_mul_f32 v{t+7}, {f32(1/448)}, v{t+7}")
    bf16_round(t+8, t+8)
    bf16_round(t+7, t+7)
    A(f"v_add_f32 v{t+7}, {f32(1e-5)}, v{t+7}")
    bf16_round(t+7, t+7)
    A(f"v_sqrt_f32 v{t+7}, v{t+7}")
    NOP(1)
    bf16_round(t+7, t+7)
    A(f"v_rcp_f32 v{t+7}, v{t+7}")
    A("s_waitcnt lgkmcnt(0)")
    for x in (xp0, xp1):
        A(f"v_sub_f32 v{x}, v{x}, v{t+8}")
    for x in (xp0, xp1):
        bf16_round(x, x)
    for x in (xp0, xp1):
        A(f"v_mul_f32 v{x}, v{x}, v{t+7}")
    for x in (xp0, xp1):
        A(f"v_cvt_pk_bf16_f32 v{x}, v{x}, v{x}")
    NOP(1)

def red_write(acc0, acc1):
    NOP(8)
    exec_set(0x00ff00ff00ff00ff)
    for m, acc in ((0, acc0), (1, acc1)):
        for r in range(4):
            A(f"ds_write_b32 v{wRW}, v{acc+r} offset:{m*2048 + r*128}")
    exec_all()
    A("s_waitcnt lgkmcnt(0)")
    A("s_barrier")

def gather_vec(off, tag):
    t = wT
    exec_set((1 << 56) - 1)
    A(f"s_sub_u32 s{sA1}, s{sKK}, 2")
    A(f"s_mul_i32 s{sA1}, s{sA1}, 1792")
    A(f"s_add_u32 s{sA1}, s{sA1}, {off}")
    A(f"v_add_u32 v{t+34}, s{sBX}, v{wPI8}")
    A(f"ds_read_b64 {vr(t+32,2)}, v{t+34} offset:{0}")
    LAB(f"L_G{tag}")
    for s in range(16):
        A(f"s_add_u32 s{sA0}, s{sA1}, {s*REGION}")
        A(f"buffer_load_dwordx2 {vr(t+2*s,2)}, v{wPI8}, {sr(sWS,4)}, s{sA0} offen offset:0 sc1")
    A("s_waitcnt vmcnt(0)")
    check_sentinel(range(t, t+32), t+35, f"L_G{tag}", f"L_G{tag}OK")
    for s in range(1, 16):
        A(f"v_add_f32 v{t}, v{t}, v{t+2*s}")
        A(f"v_add_f32 v{t+1}, v{t+1}, v{t+2*s+1}")
    bf16_round(t, t)
    bf16_round(t+1, t+1)
    A("s_waitcnt lgkmcnt(0)")
    A(f"v_add_f32 v{t}, v{t}, v{t+32}")
    A(f"v_add_f32 v{t+1}, v{t+1}, v{t+33}")
    bf16_round(t, t)
    bf16_round(t+1, t+1)

def bcast8(dst, src, u):
    A(f"v_mov_b32_dpp v{dst}, v{src} row_newbcast:{u} row_mask:0xf bank_mask:0x3")
    A(f"v_mov_b32_dpp v{dst}, v{src} row_newbcast:{8+u} row_mask:0xf bank_mask:0xc")

def service():
    LAB("L_SERVICE")
    TS(0, 0)
    t = wT
    srd(sX, 16, 1792)
    srd(sWQ, 22, 448*4096*2)
    srd(sWO, 24, 448*4096*2)
    srd(sWG, 28, 448*1792*2)
    srd(sWU, 30, 448*1792*2)
    srd(sWD, 32, 448*1792*2)
    srd(sOUT, 34, 1792)
    A(f"s_mul_i32 s{sMYREG}, s{sS}, {REGION}")
    G, N, U, E8 = t, t+1, t+2, t+3
    A(f"v_lshrrev_b32 v{G}, 4, v0")
    A(f"v_and_b32 v{N}, 15, v0")
    A(f"v_and_b32 v{U}, 7, v0")
    A(f"v_lshrrev_b32 v{E8}, 3, v0")
    A(f"v_lshlrev_b32 v{t+4}, 4, v{N}")
    A(f"s_movk_i32 s{sA0}, 0x2000")
    A(f"v_mad_u32_u24 v{wOFFQ}, v{G}, s{sA0}, v{t+4}")
    A(f"s_movk_i32 s{sA0}, 3584")
    A(f"v_mad_u32_u24 v{wOFFG}, v{G}, s{sA0}, v{t+4}")
    A(f"v_lshlrev_b32 v{t+4}, 4, v{U}")
    A(f"s_movk_i32 s{sA0}, 896")
    A(f"v_mad_u32_u24 v{wOFF8}, v{E8}, s{sA0}, v{t+4}")
    A(f"s_mul_i32 s{sRINGB}, s3, {NRING*1024}")
    A(f"s_add_u32 s{sRINGB}, s{sRINGB}, {LDS_RING}")
    wq_base()
    for i in range(NRING):
        wq_dma(i)
    A(f"s_mul_i32 s{sA0}, s3, 56")
    A(f"v_add_u32 v{t+4}, s{sA0}, v0")
    A(f"v_lshlrev_b32 v{wPI8}, 3, v{t+4}")
    A(f"v_lshlrev_b32 v{t+4}, 1, v{t+4}")
    A(f"v_and_b32 v{t+5}, 0xffffffe0, v{t+4}")
    A(f"v_and_b32 v{t+6}, 3, v{t+4}")
    A(f"v_lshl_add_u32 v{t+5}, v{t+6}, 3, v{t+5}")
    A(f"v_bfe_u32 v{t+6}, v{t+4}, 2, 3")
    A(f"v_add_u32 v{t+5}, v{t+5}, v{t+6}")
    A(f"v_lshlrev_b32 v{wC0}, 1, v{t+5}")
    exec_set((1 << 56) - 1)
    for b in range(2):
        for i in range(2):
            A(f"buffer_load_ushort v{t+8+2*b+i}, v{wC0}, {sr(sX,4)}, 0 offen offset:{b*896+16*i}")
    exec_all()
    for i in range(4):
        A(f"v_mov_b32 v{t+12+i}, -1")
    A(f"v_lshlrev_b32 v{wL16}, 4, v0")
    A(f"s_mul_i32 s{sA1}, s3, {CLEAR_PER_WAVE*1024}")
    A(f"s_add_u32 s{sA1}, s{sA1}, s{sMYREG}")
    for i in range(CLEAR_PER_WAVE):
        A(f"s_add_u32 s{sA0}, s{sA1}, {i*1024}")
        A(f"buffer_store_dwordx4 {vr(t+12,4)}, v{wL16}, {sr(sWS,4)}, s{sA0} offen sc1")
    masks8(wM8, t+16)
    masks16(wM16, t+16)
    A(f"v_mov_b32 v{wZERO}, 0")
    A(f"v_lshlrev_b32 v{wL4}, 2, v0")
    A(f"v_add_u32 v{wL4}, {LDS_X}, v{wL4}")
    A(f"v_lshrrev_b32 v{t+4}, 2, v{U}")
    A(f"v_lshlrev_b32 v{t+4}, 5, v{t+4}")
    A(f"v_lshl_add_u32 v{t+4}, v{E8}, 2, v{t+4}")
    A(f"v_and_b32 v{t+5}, 3, v0")
    A(f"v_add_u32 v{t+4}, v{t+4}, v{t+5}")
    A(f"s_lshl_b32 s{sA0}, s3, 6")
    A(f"v_add_u32 v{t+4}, s{sA0}, v{t+4}")
    A(f"v_lshlrev_b32 v{wGOFF}, 2, v{t+4}")
    A(f"v_min_u32 v{t+4}, 14, v{N}")
    A(f"v_mul_u32_u24 v{t+4}, {PSLOT}, v{t+4}")
    A(f"v_add_u32 v{wML}, 1024, v{t+4}")
    A(f"v_lshrrev_b32 v{t+4}, 1, v{G}")
    A(f"s_lshl_b32 s{sA0}, s3, 1")
    A(f"v_add_u32 v{t+4}, s{sA0}, v{t+4}")
    A(f"v_mul_u32_u24 v{t+4}, 1792, v{t+4}")
    A(f"v_and_b32 v{t+5}, 1, v{G}")
    A(f"v_lshlrev_b32 v{t+5}, 7, v{t+5}")
    A(f"v_lshl_add_u32 v{t+5}, v{U}, 4, v{t+5}")
    A(f"v_add_u32 v{t+4}, v{t+4}, v{t+5}")
    A(f"v_add_u32 v{wR2W}, {LDS_RED2}, v{t+4}")
    A(f"s_lshl_b32 s{sA0}, s3, 9")
    A(f"v_add_u32 v{wZOFF}, s{sA0}, v{t+5}")
    A(f"s_mul_i32 s{sA0}, s3, 112")
    A(f"v_lshl_add_u32 v{t+4}, v{N}, 2, v{G}")
    A(f"v_add_u32 v{t+4}, s{sA0}, v{t+4}")
    A(f"v_and_b32 v{t+5}, 0xffffffe0, v{t+4}")
    A(f"v_and_b32 v{t+6}, 7, v{t+4}")
    A(f"v_lshl_add_u32 v{t+5}, v{t+6}, 2, v{t+5}")
    A(f"v_bfe_u32 v{t+6}, v{t+4}, 3, 2")
    A(f"v_add_u32 v{t+5}, v{t+5}, v{t+6}")
    A(f"v_lshlrev_b32 v{t+5}, 2, v{t+5}")
    A(f"v_add_u32 v{wXPK}, {LDS_X}, v{t+5}")
    A(f"v_lshl_add_u32 v{t+4}, v{G}, 5, v{N}")
    A(f"v_lshlrev_b32 v{t+4}, 4, v{t+4}")
    A(f"s_lshl_b32 s{sA0}, s3, 2")
    A(f"s_add_u32 s{sA0}, s{sA0}, {LDS_RED}")
    A(f"v_add_u32 v{wRW}, s{sA0}, v{t+4}")
    A(f"v_lshl_add_u32 v{t+4}, v{U}, 3, v{E8}")
    A(f"v_lshlrev_b32 v{t+4}, 4, v{t+4}")
    A(f"v_add_u32 v{wHR}, {LDS_RED}, v{t+4}")
    A("s_waitcnt vmcnt(0)")
    for i in range(4):
        A(f"v_lshlrev_b32 v{t+8+i}, 16, v{t+8+i}")
    A(f"v_add_u32 v{wPI8}, {LDS_X}, v{wPI8}")
    exec_set((1 << 56) - 1)
    A(f"ds_write_b64 v{wPI8}, {vr(t+8,2)}")
    A(f"ds_write_b64 v{wPI8}, {vr(t+10,2)} offset:1792")
    exec_all()
    A(f"v_subrev_u32 v{wPI8}, {LDS_X}, v{wPI8}")
    A("s_waitcnt lgkmcnt(0)")
    A("s_barrier")
    A("s_cmp_lg_u32 s3, 0")
    A("s_cbranch_scc1 L_SVNOFLAG")
    A(f"s_lshl_b32 s{sA0}, s{sS}, 2")
    A(f"v_mov_b32 v{t}, 1")
    A("s_mov_b64 exec, 1")
    A(f"buffer_store_dword v{t}, v{wZERO}, {sr(sDBG,4)}, s{sA0} offen sc1")
    exec_all()
    LAB("L_SVNOFLAG")
    A(f"s_mov_b32 s{sKK}, 0")

    LAB("L_SVLOOP")
    A(f"s_and_b32 s{sBX}, s{sKK}, 1")
    A(f"s_mul_i32 s{sBX}, s{sBX}, 1792")
    A(f"s_cmp_lt_u32 s{sKK}, 2")
    A("s_cbranch_scc1 L_SVQ")
    A(f"s_sub_u32 s{sA1}, s{sKK}, 2")
    A(f"s_mul_i32 s{sA1}, s{sA1}, {15*PSLOT}")
    A(f"s_add_u32 s{sA1}, s{sA1}, s{sMYREG}")
    A(f"s_add_u32 s{sA1}, s{sA1}, {P_OFF}")
    LAB("L_WG")
    A(f"buffer_load_dwordx2 {vr(t+16,2)}, v{wML}, {sr(sWS,4)}, s{sA1} offen sc1")
    for c in range(15):
        A(f"s_add_u32 s{sA0}, s{sA1}, {c*PSLOT}")
        A(f"buffer_load_dword v{t+c}, v{wGOFF}, {sr(sWS,4)}, s{sA0} offen sc1")
    A("s_waitcnt vmcnt(0)")
    check_sentinel(list(range(t, t+15)) + [t+16, t+17], t+18, "L_WG", "L_WGOK")
    if DEBUG_TS:
        A(f"s_lshl_b32 s95, s{sKK}, 5")
        TS(0, "s95")
    A(f"v_mov_b32 v{t+18}, v{t+16}")
    row_reduce("v_max_f32", t+18)
    A(f"v_sub_f32 v{t+16}, v{t+16}, v{t+18}")
    A(f"v_exp_f32 v{t+16}, v{t+16}")
    A(f"v_and_b32 v{t+19}, 15, v0")
    A(f"v_cmp_gt_u32 vcc, 15, v{t+19}")
    A(f"v_mul_f32 v{t+17}, v{t+16}, v{t+17}")
    NOP(1)
    A(f"v_cndmask_b32 v{t+17}, 0, v{t+17}, vcc")
    row_reduce("v_add_f32", t+17)
    A(f"v_rcp_f32 v{t+17}, v{t+17}")
    A(f"v_mov_b32 v{t+18}, 0")
    A(f"v_mul_f32 v{t+16}, v{t+16}, v{t+17}")
    NOP(2)
    for c in range(15):
        A(f"v_fmac_f32_dpp v{t+18}, v{t+16}, v{t+c} row_newbcast:{c} {DPPM}")
    A(f"v_cvt_pk_bf16_f32 v{t+30}, v{t+18}, v{t+18}")
    NOP(2)
    for rg in range(8):
        bt = t + 28 + (rg % 2)
        bb = (wB, t+32)[rg % 2]
        bcast8(bt, t+30, rg)
        for j in range(4):
            A(f"v_and_b32 v{bb+j}, v{bt}, v{wM8+j}")
        NOP(2)
        for cg in range(7):
            c = "0" if rg == 0 else vr(t+4*cg, 4)
            A(f"v_mfma_f32_16x16x32_bf16 {vr(t+4*cg,4)}, {wo_tile(rg,cg)}, {vr(bb,4)}, {c}")
    NOP(8)
    exec_set(0xff00ff0000ff00ff)
    for cg in range(7):
        A(f"ds_write_b128 v{wR2W}, {vr(t+4*cg,4)} offset:{cg*256}")
    exec_all()
    A("s_waitcnt lgkmcnt(0)")
    A("s_barrier")
    exec_set((1 << 56) - 1)
    A(f"v_add_u32 v{t+16}, {LDS_RED2}, v{wPI8}")
    for p in range(8):
        A(f"ds_read_b64 {vr(t+2*p,2)}, v{t+16} offset:{p*1792}")
    A(f"s_sub_u32 s{sA1}, s{sKK}, 2")
    A(f"s_mul_i32 s{sA1}, s{sA1}, 1792")
    A(f"s_add_u32 s{sA1}, s{sA1}, s{sMYREG}")
    A("s_waitcnt lgkmcnt(0)")
    for p in range(1, 8):
        A(f"v_add_f32 v{t}, v{t}, v{t+2*p}")
        A(f"v_add_f32 v{t+1}, v{t+1}, v{t+2*p+1}")
    A(f"v_min_u32 v{t}, -2, v{t}")
    A(f"v_min_u32 v{t+1}, -2, v{t+1}")
    A(f"buffer_store_dwordx2 {vr(t,2)}, v{wPI8}, {sr(sWS,4)}, s{sA1} offen offset:{Y_OFF} sc1")
    exec_all()
    if DEBUG_TS:
        A(f"s_lshl_b32 s95, s{sKK}, 5")
        A("s_add_u32 s95, s95, 4")
        TS(0, "s95")
    A(f"s_add_u32 s{sBX}, s{sBX}, {LDS_X}")
    gather_vec(Y_OFF, "Y")
    A(f"ds_write_b64 v{t+34}, {vr(t,2)}")
    exec_all()
    A(f"s_sub_u32 s{sBX}, s{sBX}, {LDS_X}")
    A("s_waitcnt lgkmcnt(0)")
    A("s_barrier")
    if DEBUG_TS:
        A(f"s_lshl_b32 s95, s{sKK}, 5")
        A("s_add_u32 s95, s95, 8")
        TS(0, "s95")
    XP = t + 12
    layernorm(XP, XP+1)
    AG, AU = t+16, t+20
    for tt in range(28):
        bb = (wB, t+24)[tt % 2]
        for j in range(4):
            A(f"v_and_b32_dpp v{bb+j}, v{XP+tt//16}, v{wM16+j} row_newbcast:{tt%16} {DPPM}")
        NOP(2)
        for m, acc in ((0, AG), (1, AU)):
            c = "0" if tt == 0 else vr(acc, 4)
            A(f"v_mfma_f32_16x16x32_bf16 {vr(acc,4)}, {gu_tile(tt,m)}, {vr(bb,4)}, {c}")
    red_write(AG, AU)
    for k in range(2):
        for m in range(2):
            A(f"ds_read_b128 {vr(t+4*(2*k+m),4)}, v{wHR} offset:{m*2048 + k*1024}")
    DT = t + 20
    A(f"s_lshl_b32 s{sA0}, s3, 11")
    A(f"v_add_u32 v{t+16}, s{sA0}, v{wL16}")
    A(f"v_add_u32 v{t+17}, {56*1024}, v{t+16}")
    def dread(i):
        rg, ci = i // 2, i % 2
        if rg < 8:
            A(f"ds_read_b128 {vr(DT+4*(i%4),4)}, v{t+16} offset:{(rg*7+ci)*1024}")
        else:
            A(f"ds_read_b128 {vr(DT+4*(i%4),4)}, v{t+17} offset:{((rg-8)*7+ci)*1024}")
    for i in range(4):
        dread(i)
    A("s_waitcnt lgkmcnt(4)")
    for q in range(4):
        b = t + 4*q
        A(f"v_add_f32 v{b}, v{b}, v{b+1}")
        A(f"v_add_f32 v{b+2}, v{b+2}, v{b+3}")
    for q in range(4):
        b = t + 4*q
        A(f"v_add_f32 v{b}, v{b}, v{b+2}")
    for q in range(4):
        bf16_round(t+4*q, t+4*q)
    for k in range(2):
        A(f"v_mul_f32 v{t+8*k}, {f32(-LOG2E)}, v{t+8*k}")
    for k in range(2):
        A(f"v_exp_f32 v{t+8*k}, v{t+8*k}")
    NOP(1)
    for k in range(2):
        A(f"v_add_f32 v{t+8*k}, 1.0, v{t+8*k}")
    for k in range(2):
        A(f"v_rcp_f32 v{t+8*k}, v{t+8*k}")
    NOP(1)
    for k in range(2):
        bf16_round(t+8*k, t+8*k)
    for k in range(2):
        A(f"v_mul_f32 v{t+8*k}, v{t+8*k}, v{t+8*k+4}")
    HP = (t+1, t+2)
    for k in range(2):
        A(f"v_cvt_pk_bf16_f32 v{HP[k]}, v{t+8*k}, v{t+8*k}")
    NOP(2)
    AD = (t+4, t+8)
    for rg in range(14):
        bt = t + 3
        bb = (wB, t+12)[rg % 2]
        bcast8(bt, HP[rg // 8], rg % 8)
        for j in range(4):
            A(f"v_and_b32 v{bb+j}, v{bt}, v{wM8+j}")
        for ci in range(2):
            i = rg*2 + ci
            rem = min(27 - i, 3)
            A(f"s_waitcnt lgkmcnt({rem})")
            if ci == 0:
                NOP(1)
            c = "0" if rg == 0 else vr(AD[ci], 4)
            A(f"v_mfma_f32_16x16x32_bf16 {vr(AD[ci],4)}, {vr(DT+4*(i%4),4)}, {vr(bb,4)}, {c}")
            if i + 4 < 28:
                dread(i + 4)
    NOP(8)
    for k in range(8):
        A(f"v_mov_b32_dpp v{t+12+k}, v{t+4+k} row_ror:8 {DPPM}")
    NOP(1)
    for k in range(8):
        A(f"v_permlane32_swap_b32 v{t+12+k}, v{t+20+k}")
    NOP(1)
    for k in range(8):
        A(f"v_add_f32 v{t+4+k}, v{t+4+k}, v{t+20+k}")
    for k in range(8):
        A(f"v_min_u32 v{t+4+k}, -2, v{t+4+k}")
    A(f"s_sub_u32 s{sA1}, s{sKK}, 2")
    A(f"s_mul_i32 s{sA1}, s{sA1}, 1792")
    A(f"s_add_u32 s{sA1}, s{sA1}, s{sMYREG}")
    A(f"s_add_u32 s{sA1}, s{sA1}, {Z_OFF}")
    A("s_cmp_eq_u32 s3, 3")
    A(f"s_cselect_b32 s{sA2}, 0x80000000, s{sA1}")
    exec_set(0x00ff00ff)
    A(f"buffer_store_dwordx4 {vr(t+4,4)}, v{wZOFF}, {sr(sWS,4)}, s{sA1} offen sc1")
    A(f"buffer_store_dwordx4 {vr(t+8,4)}, v{wZOFF}, {sr(sWS,4)}, s{sA2} offen offset:256 sc1")
    exec_all()
    if DEBUG_TS:
        A(f"s_lshl_b32 s95, s{sKK}, 5")
        A("s_add_u32 s95, s95, 12")
        TS(0, "s95")
    A(f"s_cmp_lt_u32 s{sKK}, 4")
    A("s_cbranch_scc1 L_SVZ")
    A(f"s_cmp_lg_u32 s{sS}, 0")
    A("s_cbranch_scc1 L_SVNEXT")
    LAB("L_SVZ")
    NOP(2)
    A(f"s_add_u32 s{sBX}, s{sBX}, {LDS_X}")
    gather_vec(Z_OFF, "Z")
    A(f"s_sub_u32 s{sBX}, s{sBX}, {LDS_X}")
    A(f"s_cmp_lt_u32 s{sKK}, 4")
    A("s_cbranch_scc1 L_SVZ2")
    A(f"s_lshr_b32 s{sA0}, s{sBX}, 1")
    A(f"buffer_store_short_d16_hi v{t}, v{wC0}, {sr(sOUT,4)}, s{sA0} offen")
    A(f"buffer_store_short_d16_hi v{t+1}, v{wC0}, {sr(sOUT,4)}, s{sA0} offen offset:16")
    exec_all()
    if DEBUG_TS:
        A(f"s_lshl_b32 s95, s{sKK}, 5")
        A("s_add_u32 s95, s95, 16")
        TS(0, "s95")
    A("s_branch L_SVNEXT")
    LAB("L_SVZ2")
    A(f"ds_write_b64 v{t+34}, {vr(t,2)}")
    exec_all()
    A("s_waitcnt lgkmcnt(0)")
    LAB("L_SVQ")
    A("s_barrier")
    if DEBUG_TS:
        A(f"s_lshl_b32 s95, s{sKK}, 5")
        A("s_add_u32 s95, s95, 16")
        TS(0, "s95")
    layernorm(XP, XP+1)
    wq_base()
    A(f"v_add_u32 v{t+14}, s{sRINGB}, v{wL16}")
    QT = t + 28
    for tt in range(28):
        bb = (wB, t+24)[tt % 2]
        for h in range(2):
            i = tt*2 + h
            outstanding_after = min(55 - i, NRING - 1 - h)
            if h == 0:
                A(f"s_waitcnt vmcnt({max(min(55 - i - 1, NRING - 2), 0)})")
            A(f"ds_read_b128 {vr(QT+4*h,4)}, v{t+14} offset:{(i % NRING)*1024}")
        for j in range(4):
            A(f"v_and_b32_dpp v{bb+j}, v{XP+tt//16}, v{wM16+j} row_newbcast:{tt%16} {DPPM}")
        A("s_waitcnt lgkmcnt(0)")
        for h in range(2):
            i = tt*2 + h
            if i + NRING < 56:
                wq_dma(i + NRING)
        NOP(1)
        for h, acc in ((0, AG), (1, AU)):
            c = "0" if tt == 0 else vr(acc, 4)
            A(f"v_mfma_f32_16x16x32_bf16 {vr(acc,4)}, {vr(QT+4*h,4)}, {vr(bb,4)}, {c}")
        NOP(4)
    for i in range(NRING):
        wq_dma(i)
    red_write(AG, AU)
    A("s_cmp_ge_u32 s3, 2")
    A("s_cbranch_scc1 L_SVQDONE")
    A(f"s_lshl_b32 s{sA0}, s3, 11")
    A(f"s_add_u32 s{sA0}, s{sA0}, {LDS_RED}")
    A(f"v_lshl_add_u32 v{t+8}, v0, 5, s{sA0}")
    A(f"ds_read_b128 {vr(t,4)}, v{t+8}")
    A(f"ds_read_b128 {vr(t+4,4)}, v{t+8} offset:16")
    A(f"s_lshl_b32 s{sA1}, s{sKK}, 9")
    A(f"s_add_u32 s{sA1}, s{sA1}, s{sMYREG}")
    A(f"s_lshl_b32 s{sA0}, s3, 8")
    A(f"s_add_u32 s{sA1}, s{sA1}, s{sA0}")
    A(f"v_lshlrev_b32 v{t+9}, 2, v0")
    A("s_waitcnt lgkmcnt(0)")
    for q in range(2):
        b = t + 4*q
        A(f"v_add_f32 v{b}, v{b}, v{b+1}")
        A(f"v_add_f32 v{b+2}, v{b+2}, v{b+3}")
        A(f"v_add_f32 v{b}, v{b}, v{b+2}")
    A(f"v_cvt_pk_bf16_f32 v{t}, v{t}, v{t+4}")
    A(f"v_min_u32 v{t}, -2, v{t}")
    A(f"buffer_store_dword v{t}, v{t+9}, {sr(sWS,4)}, s{sA1} offen offset:{Q_OFF} sc1")
    LAB("L_SVQDONE")
    if DEBUG_TS:
        A(f"s_lshl_b32 s95, s{sKK}, 5")
        A("s_add_u32 s95, s95, 20")
        TS(0, "s95")
    A(f"s_cmp_lg_u32 s{sKK}, 1")
    A("s_cbranch_scc1 L_SVNEXT")
    A(f"s_lshl_b32 s{sA1}, s{sS}, 8")
    A(f"s_lshl_b32 s{sA0}, s3, 6")
    A(f"s_add_u32 s{sA1}, s{sA1}, s{sA0}")
    A(f"s_mul_i32 s{sA1}, s{sA1}, 896")
    for rg in range(8):
        A(f"s_add_u32 s{sA0}, s{sA1}, {rg*8*896}")
        for cg in range(7):
            A(f"buffer_load_dwordx4 {wo_tile(rg,cg)}, v{wOFF8}, {sr(sWO,4)}, s{sA0} offen offset:{cg*128} nt")
    A(f"s_mul_i32 s{sA1}, s3, {112*3584}")
    A(f"s_mul_i32 s{sA0}, s{sS}, 224")
    A(f"s_add_u32 s{sA1}, s{sA1}, s{sA0}")
    for tt in range(28):
        A(f"s_add_u32 s{sA0}, s{sA1}, {tt*4*3584}")
        A(f"buffer_load_dwordx4 {gu_tile(tt,0)}, v{wOFFG}, {sr(sWG,4)}, s{sA0} offen nt")
        A(f"buffer_load_dwordx4 {gu_tile(tt,1)}, v{wOFFG}, {sr(sWU,4)}, s{sA0} offen nt")
    A(f"s_mul_i32 s{sA1}, s{sS}, {112*896}")
    A(f"s_lshl_b32 s{sA0}, s3, 8")
    A(f"s_add_u32 s{sA1}, s{sA1}, s{sA0}")
    A(f"s_lshl_b32 s{sA2}, s3, 11")
    A("s_cmp_eq_u32 s3, 3")
    A("s_cbranch_scc1 L_SVD3")
    for rg in range(14):
        A(f"s_add_u32 m0, s{sA2}, {(rg*7+1)*1024}")
        A(f"s_add_u32 s{sA0}, s{sA1}, {rg*8*896+128}")
        A(f"buffer_load_dwordx4 v{wOFF8}, {sr(sWD,4)}, s{sA0} offen nt lds")
    LAB("L_SVD3")
    for rg in range(14):
        A(f"s_add_u32 m0, s{sA2}, {(rg*7)*1024}")
        A(f"s_add_u32 s{sA0}, s{sA1}, {rg*8*896}")
        A(f"buffer_load_dwordx4 v{wOFF8}, {sr(sWD,4)}, s{sA0} offen nt lds")
    A(f"v_and_b32 v{t+1}, 15, v0")
    A(f"v_lshlrev_b32 v{t+1}, 2, v{t+1}")
    LAB("L_SVFL")
    A(f"buffer_load_dword v{t}, v{t+1}, {sr(sDBG,4)}, 0 offen sc1")
    A("s_waitcnt vmcnt(0)")
    A(f"v_cmp_eq_u32 vcc, 0, v{t}")
    A("s_cbranch_vccz L_SVNEXT")
    spin_guard("L_SVFL")
    LAB("L_SVNEXT")
    A(f"s_add_u32 s{sKK}, s{sKK}, 1")
    A(f"s_cmp_lt_u32 s{sKK}, 6")
    A("s_cbranch_scc1 L_SVLOOP")

def main():
    global DEBUG_TS
    out = f"cdna_kernels/{NAME}.s"
    for a in sys.argv[1:]:
        if a == "--ts":
            DEBUG_TS = True
        else:
            out = a
    header()
    stream()
    service()
    footer()
    open(out, "w").write("\n".join(x for x in L if x is not None) + "\n")
    print("wrote", out, len(L), "lines")

main()
```

```python
import struct, sys

NAME = "interleave_layers__mha_block_cached__glu_gated_glu__decode"
DEBUG_TS = False
SPIN_MAX = 400000
STATPOL = "nt"

def f32(x):
    return "0x%08x" % struct.unpack("<I", struct.pack("<f", x))[0]

LOG2E = 1.4426950408889634
REGION = 98304
Q_OFF, Y_OFF, Z_OFF, P_OFF = 256, 2304, 9472, 16640
PSLOT = 1152
CLEAR_PER_WAVE = 21
NDYN = 784
NSTAT = 240
TS_OFF = 0x200000

L = []
def A(s):
    L.append("    " + s)
def LAB(s):
    L.append(s + ":")
def NOP(n):
    if n > 0:
        A(f"s_nop {n-1}")
def vr(a, n):
    return f"v[{a}:{a+n-1}]"
def ar(a, n):
    return f"a[{a}:{a+n-1}]"
def sr(a, n):
    return f"s[{a}:{a+n-1}]"
DPPM = "row_mask:0xf bank_mask:0xf"

def srd(dst, ptr, nbytes):
    A(f"s_mov_b32 s{dst}, s{ptr}")
    A(f"s_and_b32 s{dst+1}, s{ptr+1}, 0xffff")
    A(f"s_mov_b32 s{dst+2}, {nbytes}")
    A(f"s_mov_b32 s{dst+3}, 0x20000")

def exec_set(val):
    lo, hi = val & 0xffffffff, val >> 32
    A(f"s_mov_b32 exec_lo, 0x{lo:x}")
    A(f"s_mov_b32 exec_hi, 0x{hi:x}")
def exec_all():
    A("s_mov_b64 exec, -1")

def xrow_reduce(op, x, t):
    A(f"v_mov_b32 v{t}, v{x}")
    NOP(2)
    A(f"v_permlane16_swap_b32 v{x}, v{t}")
    NOP(1)
    A(f"{op} v{x}, v{x}, v{t}")
    A(f"v_mov_b32 v{t}, v{x}")
    NOP(2)
    A(f"v_permlane32_swap_b32 v{x}, v{t}")
    NOP(1)
    A(f"{op} v{x}, v{x}, v{t}")

def row_reduce(op, x):
    for ctl in ("quad_perm:[1,0,3,2]", "quad_perm:[2,3,0,1]", "row_half_mirror", "row_mirror"):
        NOP(2)
        A(f"{op}_dpp v{x}, v{x}, v{x} {ctl} {DPPM}")

def wave_reduce(op, x, t):
    row_reduce(op, x)
    xrow_reduce(op, x, t)

def bf16_round(dst, src):
    A(f"v_cvt_pk_bf16_f32 v{dst}, v{src}, v{src}")
    A(f"v_and_b32 v{dst}, 0xffff0000, v{dst}")

ts_id = [0]
def TS(idx_sgpr_or_const, slot):
    if not DEBUG_TS:
        return
    A("s_memrealtime s[98:99]")
    A("s_waitcnt lgkmcnt(0)")
    A("v_mov_b32 v62, s98")
    A(f"s_add_u32 s98, s97, {slot*4}" if isinstance(slot, int) else f"s_add_u32 s98, s97, {slot}")
    A("v_mov_b32 v63, 0")
    A("s_mov_b64 s[100:101], exec")
    A("s_mov_b64 exec, 1")
    A("buffer_store_dword v62, v63, s[48:51], s98 offen")
    A("s_mov_b64 exec, s[100:101]")

def header():
    L.append("; Kernarg: 0 A_x, 8 A_k_cache, 16 A_v_cache, 24 A_wq, 32 A_wo, 40 B_x, 48 B_w_gate, 56 B_w_up,")
    L.append("; @launch grid=(256,1,1) block=(256,1,1) lds=163840")
    L.append('.amdgcn_target "amdgcn-amd-amdhsa--gfx950"')
    L.append(".text")
    L.append(f".globl {NAME}_kernel")
    L.append(".p2align 8")
    L.append(f".type {NAME}_kernel,@function")
    LAB(f"{NAME}_kernel")
    A("s_cmp_ge_u32 s2, 256")
    A("s_cbranch_scc1 L_END")
    A("s_load_dwordx16 s[16:31], s[0:1], 0")
    A("s_load_dwordx8 s[32:39], s[0:1], 64")
    A("v_lshrrev_b32 v1, 6, v0")
    A("v_and_b32 v0, 63, v0")
    A("v_readfirstlane_b32 s3, v1")
    A(f"s_mov_b32 s96, {SPIN_MAX}")
    A("s_waitcnt lgkmcnt(0)")
    srd(48, 38, 0x40000000 if DEBUG_TS else 16 * REGION)
    srd(52, 36, 256)
    if DEBUG_TS:
        A("s_lshl_b32 s97, s2, 2")
        A("s_add_u32 s97, s97, s3")
        A("s_lshl_b32 s97, s97, 8")
        A(f"s_add_u32 s97, s97, {TS_OFF}")
    A("s_cmp_lt_u32 s2, 16")
    A("s_cbranch_scc1 L_SERVICE")

def footer():
    LAB("L_END")
    A("s_endpgm")
    L.append('.section .rodata,"a"')
    L.append(".p2align 6")
    L.append(f".amdhsa_kernel {NAME}_kernel")
    L.append("  .amdhsa_next_free_vgpr 512")
    L.append("  .amdhsa_next_free_sgpr 102")
    L.append("  .amdhsa_accum_offset 256")
    L.append("  .amdhsa_group_segment_fixed_size 0")
    L.append("  .amdhsa_kernarg_size 96")
    L.append("  .amdhsa_user_sgpr_count 2")
    L.append("  .amdhsa_user_sgpr_kernarg_segment_ptr 1")
    L.append("  .amdhsa_system_sgpr_workgroup_id_x 1")
    L.append("  .amdhsa_float_denorm_mode_32 3")
    L.append(".end_amdhsa_kernel")

def spin_guard(label_retry):
    A("s_sleep 2")
    A("s_sub_u32 s96, s96, 1")
    A("s_cmp_eq_u32 s96, 0")
    A("s_cbranch_scc1 L_END")
    A(f"s_branch {label_retry}")

def masks16(m, t):
    A(f"v_and_b32 v{t}, 15, v0")
    A(f"v_and_b32 v{t+1}, 1, v0")
    A(f"v_lshlrev_b32 v{t+1}, 4, v{t+1}")
    A(f"v_mov_b32 v{m}, 0xffff")
    A(f"v_lshlrev_b32 v{t+1}, v{t+1}, v{m}")
    A(f"v_lshrrev_b32 v{t}, 1, v{t}")
    for j in range(4):
        A(f"v_cmp_eq_u32 vcc, {j}, v{t}")
        NOP(2)
        A(f"v_cndmask_b32 v{m+j}, 0, v{t+1}, vcc")

def masks8(m, t):
    A(f"v_and_b32 v{t}, 7, v0")
    A(f"v_and_b32 v{t+1}, 1, v0")
    A(f"v_lshlrev_b32 v{t+1}, 4, v{t+1}")
    A(f"v_mov_b32 v{m}, 0xffff")
    A(f"v_lshlrev_b32 v{t+1}, v{t+1}, v{m}")
    A(f"v_lshrrev_b32 v{t}, 1, v{t}")
    for j in range(4):
        A(f"v_cmp_eq_u32 vcc, {j}, v{t}")
        NOP(2)
        A(f"v_cndmask_b32 v{m+j}, 0, v{t+1}, vcc")

vKOFF, vVOFF, vLDSK = 1, 2, 3
vMSK = 4
vZERO, vONE, vTICK = 8, 9, 10
vQOFF = 11
vM, vL = 12, 13
vS0, vS1, vSa, vSb, vX, vY, vF, vT = 14, 15, 16, 17, 18, 19, 20, 21
vP0, vP1 = 22, 23
vB0, vB1 = 24, 28
vACC = 32
vQ = 40
vQN = 56
vSCR, vQB, vQR = 58, 59, 60
vTICK2 = 61
RING = 64
KST = 128
sK, sV, sWS, sDBG = 40, 44, 48, 52
sHEAD, sC, sWV, sHOFF = 4, 5, 6, 7
sLDPH, sLIM, sTB, sNOFF, sCUR, sPROC, sQTAG, sT0 = 8, 9, 10, 11, 12, 13, 14, 15
sCC, sREG, sT1, sT2, sBOFF, sT3 = 72, 73, 74, 75, 76, 77
LDS_SCR = 131072
LDS_PART = LDS_SCR
LDS_CNT = LDS_SCR + 8448
LDS_QB = LDS_SCR + 8704

def loadK(dst, soff, pol="nt"):
    for j in range(4):
        A(f"buffer_load_dwordx4 {vr(dst+4*j,4)}, v{vKOFF}, {sr(sK,4)}, s{soff} offen offset:{128*j} {pol}")
def loadV(dst, soff, agpr=False, pol="nt"):
    for j in range(4):
        d = ar(dst+4*j, 4) if agpr else vr(dst+4*j, 4)
        A(f"buffer_load_dwordx4 {d}, v{vVOFF}, {sr(sV,4)}, s{soff} offen offset:{256*j} {pol}")

def kdots(R, S):
    for i in range(8):
        for (acc, k) in ((vSa, i), (vSb, 8 + i)):
            c = "0" if i == 0 else f"v{acc}"
            A(f"v_dot2_f32_bf16 v{acc}, v{R+k}, v{vQ+k}, {c}")
    NOP(3)
    A(f"v_add_f32 v{S}, v{vSa}, v{vSb}")

def kdots_lds(ldsoff, S):
    tmp = (vB0, vB1)
    A(f"ds_read_b128 {vr(tmp[0],4)}, v{vLDSK} offset:{ldsoff}")
    A(f"ds_read_b128 {vr(tmp[1],4)}, v{vLDSK} offset:{ldsoff+1024}")
    for j in range(4):
        A(f"s_waitcnt lgkmcnt({1 if j < 3 else 0})")
        acc = vSa if j % 2 == 0 else vSb
        for i in range(4):
            c = "0" if (j < 2 and i == 0) else f"v{acc}"
            A(f"v_dot2_f32_bf16 v{acc}, v{tmp[j%2]+i}, v{vQ+4*j+i}, {c}")
        if j < 2:
            A(f"ds_read_b128 {vr(tmp[j%2],4)}, v{vLDSK} offset:{ldsoff+1024*(j+2)}")
    NOP(3)
    A(f"v_add_f32 v{S}, v{vSa}, v{vSb}")

def softmax_update():
    for ctl in ("quad_perm:[1,0,3,2]", "quad_perm:[2,3,0,1]", "row_half_mirror"):
        NOP(1)
        A(f"v_add_f32_dpp v{vS0}, v{vS0}, v{vS0} {ctl} {DPPM}")
        A(f"v_add_f32_dpp v{vS1}, v{vS1}, v{vS1} {ctl} {DPPM}")
        NOP(1)
    A(f"v_cvt_pk_bf16_f32 v{vT}, v{vS0}, v{vS1}")
    A(f"v_lshlrev_b32 v{vS0}, 16, v{vT}")
    A(f"v_and_b32 v{vS1}, 0xffff0000, v{vT}")
    A(f"v_max_f32 v{vX}, v{vS0}, v{vS1}")
    NOP(2)
    A(f"v_max_f32_dpp v{vX}, v{vX}, v{vX} row_ror:8 {DPPM}")
    xrow_reduce("v_max_f32", vX, vY)
    A(f"v_mul_f32 v{vX}, s{sCC}, v{vX}")
    A(f"v_ceil_f32 v{vX}, v{vX}")
    A(f"v_max_f32 v{vX}, v{vX}, v{vM}")
    A(f"v_sub_f32 v{vF}, v{vM}, v{vX}")
    A(f"v_fma_f32 v{vS0}, v{vS0}, s{sCC}, -v{vX}")
    A(f"v_fma_f32 v{vS1}, v{vS1}, s{sCC}, -v{vX}")
    A(f"v_exp_f32 v{vF}, v{vF}")
    A(f"v_exp_f32 v{vS0}, v{vS0}")
    A(f"v_exp_f32 v{vS1}, v{vS1}")
    A(f"v_mov_b32 v{vM}, v{vX}")
    for k in range(8):
        A(f"v_mul_f32 v{vACC+k}, v{vACC+k}, v{vF}")
    A(f"v_fma_f32 v{vL}, v{vL}, v{vF}, v{vS0}")
    A(f"v_cvt_pk_bf16_f32 v{vP0}, v{vS0}, v{vS0}")
    A(f"v_cvt_pk_bf16_f32 v{vP1}, v{vS1}, v{vS1}")
    A(f"v_add_f32 v{vL}, v{vL}, v{vS1}")

def vmfma(R, P, agpr=False):
    rr = (lambda k: ar(R+4*k, 4)) if agpr else (lambda k: vr(R+4*k, 4))
    for j in range(4):
        A(f"v_and_b32 v{vB0+j}, v{P}, v{vMSK+j}")
    for j in range(4):
        A(f"v_and_b32_dpp v{vB1+j}, v{P}, v{vMSK+j} row_ror:8 {DPPM}")
    a0, a1 = vr(vACC, 4), vr(vACC+4, 4)
    A(f"v_mfma_f32_16x16x32_bf16 {a0}, {rr(0)}, {vr(vB0,4)}, {a0}")
    A(f"v_mfma_f32_16x16x32_bf16 {a1}, {rr(1)}, {vr(vB0,4)}, {a1}")
    A(f"v_mfma_f32_16x16x32_bf16 {a0}, {rr(2)}, {vr(vB1,4)}, {a0}")
    A(f"v_mfma_f32_16x16x32_bf16 {a1}, {rr(3)}, {vr(vB1,4)}, {a1}")

def ticket_atomic(dst):
    A("s_mov_b64 exec, 1")
    A(f"buffer_atomic_add v{dst}, v{vZERO}, {sr(sWS,4)}, s{sREG} offen sc0 sc1")
    exec_all()

dec_n = [0]
def decode(src):
    n = dec_n[0]; dec_n[0] += 1
    A(f"v_readfirstlane_b32 s{sT0}, v{src}")
    A(f"v_mov_b32 v{src}, 1")
    A(f"s_add_u32 s{sT0}, s{sT0}, 1")
    LAB(f"L_DEC{n}")
    A(f"s_cmp_lt_u32 s{sT0}, s{sLIM}")
    A(f"s_cbranch_scc1 L_DOK{n}")
    A(f"s_add_u32 s{sLDPH}, s{sLDPH}, 1")
    A(f"s_add_u32 s{sLIM}, s{sLIM}, {NDYN}")
    A(f"s_sub_u32 s{sTB}, s{sTB}, {NDYN*8192}")
    A(f"s_xor_b32 s{sBOFF}, s{sBOFF}, 0x08000000")
    A(f"s_cmp_lt_u32 s{sLDPH}, 4")
    A(f"s_cbranch_scc0 L_DFIN{n}")
    A(f"s_lshl_b32 s{sT1}, s{sLDPH}, 9")
    A(f"s_add_u32 s{sT1}, s{sT1}, s{sREG}")
    A(f"buffer_load_dwordx2 {vr(vQN,2)}, v{vQOFF}, {sr(sWS,4)}, s{sT1} offen offset:{Q_OFF} sc1")
    A(f"s_mov_b32 s{sQTAG}, s{sLDPH}")
    A(f"s_branch L_DEC{n}")
    LAB(f"L_DFIN{n}")
    A(f"s_mov_b32 s{sLIM}, -1")
    LAB(f"L_DOK{n}")
    A(f"s_lshl_b32 s{sNOFF}, s{sT0}, 13")
    A(f"s_add_u32 s{sNOFF}, s{sNOFF}, s{sTB}")
    A(f"s_add_u32 s{sNOFF}, s{sNOFF}, s{sBOFF}")
    A(f"s_cmp_ge_u32 s{sLDPH}, 4")
    A(f"s_cselect_b32 s{sNOFF}, 0x80000000, s{sNOFF}")
    A(f"s_add_u32 s{sT3}, s{sNOFF}, 4096")

def static_loads(b, part):
    def soff(u):
        A(f"s_add_u32 s{sT1}, s{sT2}, {b*0x08000000 + u*4096}")
    if part == 0:
        for u in range(4):
            soff(u); loadK(KST + (b*4+u)*16, sT1)
    elif part == 1:
        for u in range(4):
            soff(4+u)
            for j in range(4):
                A(f"s_add_u32 m0, s{sT3}, {(b*4+u)*4096 + 896*j}")
                NOP(1)
                A(f"buffer_load_dwordx4 v{vKOFF}, {sr(sK,4)}, s{sT1} offen offset:{128*j} nt lds")
    else:
        for u in range(4*(part-2), 4*(part-2)+4):
            soff(u); loadV((b*8+u)*16, sT1, agpr=True, pol=STATPOL)

def statics(b):
    for blk in range(4):
        for i, S in ((0, vS0), (1, vS1)):
            u = blk*2 + i
            if u < 4:
                kdots(KST + (b*4+u)*16, S)
            else:
                kdots_lds((b*4+u-4)*4096, S)
        softmax_update()
        vmfma((b*8+blk*2)*16, vP0, agpr=True)
        vmfma((b*8+blk*2+1)*16, vP1, agpr=True)
        NOP(4)

def stream():
    TS(0, 0)
    A(f"s_sub_u32 s{sT0}, s2, 16")
    A(f"s_mul_hi_u32 s{sHEAD}, s{sT0}, 0x11111112")
    A(f"s_mul_i32 s{sT1}, s{sHEAD}, 15")
    A(f"s_sub_u32 s{sC}, s{sT0}, s{sT1}")
    A(f"s_lshl_b32 s{sWV}, s{sC}, 2")
    A(f"s_add_u32 s{sWV}, s{sWV}, s3")
    A(f"s_lshl_b32 s{sHOFF}, s{sHEAD}, 23")
    srd(sK, 18, 0x10000000)
    srd(sV, 20, 0x10000000)
    A(f"v_lshrrev_b32 v{vX}, 3, v0")
    A(f"v_and_b32 v{vY}, 7, v0")
    A(f"v_lshlrev_b32 v{vX}, 9, v{vX}")
    A(f"v_lshl_add_u32 v{vKOFF}, v{vY}, 4, v{vX}")
    A(f"v_lshrrev_b32 v{vX}, 4, v0")
    A(f"v_and_b32 v{vY}, 15, v0")
    A(f"v_lshlrev_b32 v{vX}, 10, v{vX}")
    A(f"v_lshl_add_u32 v{vVOFF}, v{vY}, 4, v{vX}")
    A(f"s_lshl_b32 s{sT2}, s{sWV}, 15")
    A(f"s_add_u32 s{sT2}, s{sT2}, s{sHOFF}")
    A(f"s_lshl_b32 s{sT3}, s3, 15")
    for part in range(4):
        static_loads(0, part)
    A(f"s_mov_b32 s{sCC}, {f32(LOG2E/16)}")
    A(f"s_mul_i32 s{sREG}, s{sHEAD}, {REGION}")
    A(f"v_mov_b32 v{vZERO}, 0")
    A(f"v_mov_b32 v{vTICK}, 1")
    A(f"v_mov_b32 v{vTICK2}, 1")
    A(f"v_lshlrev_b32 v{vQOFF}, 3, v0")
    A(f"v_lshl_add_u32 v{vLDSK}, v0, 4, s{sT3}")
    masks16(vMSK, vX)
    A(f"v_lshrrev_b32 v{vX}, 4, v0")
    A(f"v_and_b32 v{vY}, 15, v0")
    A(f"v_lshl_add_u32 v{vX}, v{vX}, 3, v{vY}")
    A(f"v_lshlrev_b32 v{vX}, 4, v{vX}")
    A(f"s_mul_i32 s{sT1}, s3, 1056")
    A(f"s_add_u32 s{sT1}, s{sT1}, {LDS_PART}")
    A(f"v_add_u32 v{vSCR}, s{sT1}, v{vX}")
    A(f"s_lshl_b32 s{sT1}, s3, 9")
    A(f"s_add_u32 s{sT1}, s{sT1}, {LDS_QB}")
    A(f"v_lshl_add_u32 v{vQB}, v0, 3, s{sT1}")
    A(f"v_and_b32 v{vY}, 7, v0")
    A(f"v_lshl_add_u32 v{vQR}, v{vY}, 4, s{sT1}")
    A(f"v_lshlrev_b32 v{vX}, 2, v0")
    A(f"v_and_b32 v{vX}, 12, v{vX}")
    A(f"ds_write_b32 v{vX}, v{vZERO} offset:{LDS_CNT}") if False else None
    A(f"v_add_u32 v{vX}, {LDS_CNT}, v{vX}")
    A(f"ds_write_b32 v{vX}, v{vZERO}")
    A("s_waitcnt lgkmcnt(0)")
    A("s_barrier")
    A(f"s_lshl_b32 s{sT0}, s{sHEAD}, 2")
    A(f"buffer_load_dword v{vT}, v{vZERO}, {sr(sDBG,4)}, s{sT0} offen sc1")
    for part in range(3):
        static_loads(1, part)
    A("s_waitcnt vmcnt(48)")
    LAB("L_FLAGCHK")
    A(f"v_readfirstlane_b32 s{sT1}, v{vT}")
    NOP(2)
    A(f"s_cmp_lg_u32 s{sT1}, 0")
    A("s_cbranch_scc1 L_FLAGOK")
    A("s_sleep 2")
    A("s_sub_u32 s96, s96, 1")
    A("s_cmp_eq_u32 s96, 0")
    A("s_cbranch_scc1 L_END")
    A(f"buffer_load_dword v{vT}, v{vZERO}, {sr(sDBG,4)}, s{sT0} offen sc1")
    A("s_waitcnt vmcnt(0)")
    A("s_branch L_FLAGCHK")
    LAB("L_FLAGOK")
    TS(0, 1)
    ticket_atomic(vTICK2)
    ticket_atomic(vTICK)
    A(f"buffer_load_dwordx2 {vr(vQN,2)}, v{vQOFF}, {sr(sWS,4)}, s{sREG} offen offset:{Q_OFF} sc1")
    static_loads(1, 3)
    A(f"s_mov_b32 s{sQTAG}, 0")
    A(f"s_mov_b32 s{sLDPH}, 0")
    A(f"s_mov_b32 s{sLIM}, {NDYN}")
    A(f"s_add_u32 s{sTB}, s{sHOFF}, {NSTAT*8192}")
    A(f"s_mov_b32 s{sBOFF}, 0")
    A(f"s_mov_b32 s{sPROC}, 0")
    A("s_waitcnt vmcnt(16)")
    decode(vTICK2)
    loadK(RING, sNOFF); loadK(RING+16, sT3); loadV(RING+32, sNOFF); loadV(RING+48, sT3)
    A(f"s_mov_b32 s{sCUR}, s{sLDPH}")
    A("s_waitcnt vmcnt(12)")
    decode(vTICK)
    ticket_atomic(vTICK)
    A("s_branch L_SETUP")

    L.append(".p2align 6")
    LAB("L_LOOP")
    A("s_waitcnt vmcnt(12)")
    decode(vTICK)
    ticket_atomic(vTICK)
    A(f"s_cmp_lg_u32 s{sCUR}, s{sPROC}")
    A("s_cbranch_scc1 L_SWITCH")
    LAB("L_BODY")
    kdots(RING, vS0)
    loadK(RING, sNOFF)
    A("s_waitcnt vmcnt(13)")
    kdots(RING+16, vS1)
    loadK(RING+16, sT3)
    softmax_update()
    A("s_waitcnt vmcnt(13)")
    vmfma(RING+32, vP0)
    loadV(RING+32, sNOFF)
    A("s_waitcnt vmcnt(13)")
    vmfma(RING+48, vP1)
    loadV(RING+48, sT3)
    A(f"s_mov_b32 s{sCUR}, s{sLDPH}")
    A("s_branch L_LOOP")

    LAB("L_SWITCH")
    TS(0, "s95") if False else None
    NOP(8)
    A(f"v_add_f32_dpp v{vL}, v{vL}, v{vL} row_ror:8 {DPPM}")
    xrow_reduce("v_add_f32", vL, vY)
    A(f"s_and_b32 s{sT0}, s{sPROC}, 1")
    A(f"s_mul_i32 s{sT0}, s{sT0}, 4224")
    A(f"v_add_u32 v{vX}, s{sT0}, v{vSCR}")
    exec_set(0x00ff00ff00ff00ff)
    A(f"ds_write_b128 v{vX}, {vr(vACC,4)}")
    A(f"ds_write_b128 v{vX}, {vr(vACC+4,4)} offset:512")
    A("s_mov_b64 exec, 1")
    A(f"ds_write_b64 v{vX}, {vr(vM,2)} offset:1024")
    A(f"s_lshl_b32 s{sT1}, s{sPROC}, 2")
    A(f"s_add_u32 s{sT1}, s{sT1}, {LDS_CNT}")
    A(f"v_mov_b32 v{vX}, s{sT1}")
    A(f"v_mov_b32 v{vY}, 1")
    A("s_waitcnt lgkmcnt(0)")
    A(f"ds_add_rtn_u32 v{vY}, v{vX}, v{vY}")
    A("s_waitcnt lgkmcnt(0)")
    A(f"v_readfirstlane_b32 s{sT1}, v{vY}")
    exec_all()
    NOP(2)
    A(f"s_cmp_lg_u32 s{sT1}, 3")
    A("s_cbranch_scc1 L_NOPUB")
    A(f"s_add_u32 s{sT0}, s{sT0}, {LDS_PART}")
    A(f"v_mov_b32 v{vX}, s{sT0}")
    A(f"v_lshl_add_u32 v{vY}, v0, 4, s{sT0}")
    for w in range(4):
        A(f"ds_read_b64 {vr(vB0+2*w,2)}, v{vX} offset:{1056*w+1024}")
    for w in range(4):
        A(f"ds_read_b128 {vr(vQ+4*w,4)}, v{vY} offset:{1056*w}")
    A("s_waitcnt lgkmcnt(4)")
    A(f"v_max3_f32 v{vM}, v{vB0}, v{vB0+2}, v{vB0+4}")
    A(f"v_max_f32 v{vM}, v{vM}, v{vB0+6}")
    for w in range(4):
        A(f"v_sub_f32 v{vB0+2*w}, v{vB0+2*w}, v{vM}")
    for w in range(4):
        A(f"v_exp_f32 v{vB0+2*w}, v{vB0+2*w}")
    NOP(1)
    A(f"v_mul_f32 v{vL}, v{vB0}, v{vB0+1}")
    for w in range(1, 4):
        A(f"v_fmac_f32 v{vL}, v{vB0+2*w}, v{vB0+2*w+1}")
    A("s_waitcnt lgkmcnt(0)")
    for r in range(4):
        A(f"v_mul_f32 v{vACC+r}, v{vB0}, v{vQ+r}")
    for w in range(1, 4):
        for r in range(4):
            A(f"v_fmac_f32 v{vACC+r}, v{vB0+2*w}, v{vQ+4*w+r}")
    for r in range(4):
        A(f"v_min_u32 v{vACC+r}, -2, v{vACC+r}")
    A(f"v_min_u32 v{vM}, -2, v{vM}")
    A(f"v_min_u32 v{vL}, -2, v{vL}")
    A(f"s_mul_i32 s{sT0}, s{sPROC}, 15")
    A(f"s_add_u32 s{sT0}, s{sT0}, s{sC}")
    A(f"s_mul_i32 s{sT0}, s{sT0}, {PSLOT}")
    A(f"s_add_u32 s{sT0}, s{sT0}, s{sREG}")
    A(f"s_add_u32 s{sT0}, s{sT0}, {P_OFF}")
    A(f"v_lshlrev_b32 v{vX}, 4, v0")
    A(f"buffer_store_dwordx4 {vr(vACC,4)}, v{vX}, {sr(sWS,4)}, s{sT0} offen sc1")
    A("s_mov_b64 exec, 1")
    A(f"buffer_store_dwordx2 {vr(vM,2)}, v{vZERO}, {sr(sWS,4)}, s{sT0} offen offset:1024 sc1")
    exec_all()
    NOP(2)
    LAB("L_NOPUB")
    if DEBUG_TS:
        A(f"s_lshl_b32 s95, s{sPROC}, 3")
        A("s_add_u32 s95, s95, 12")
        TS(0, "s95")
    A(f"s_add_u32 s{sPROC}, s{sPROC}, 1")
    A(f"s_cmp_ge_u32 s{sPROC}, 4")
    A("s_cbranch_scc1 L_END")
    LAB("L_SETUP")
    A(f"s_cmp_eq_u32 s{sQTAG}, s{sPROC}")
    A("s_cbranch_scc1 L_QCHK")
    LAB("L_QSLOW")
    A(f"s_mov_b32 s{sQTAG}, -1")
    A(f"s_lshl_b32 s{sT1}, s{sPROC}, 9")
    A(f"s_add_u32 s{sT1}, s{sT1}, s{sREG}")
    A(f"buffer_load_dwordx2 {vr(vQN,2)}, v{vQOFF}, {sr(sWS,4)}, s{sT1} offen offset:{Q_OFF} sc1")
    A("s_waitcnt vmcnt(0)")
    LAB("L_QCHK")
    A(f"v_max_u32 v{vX}, v{vQN}, v{vQN+1}")
    A(f"v_cmp_eq_u32 vcc, -1, v{vX}")
    A("s_cbranch_vccz L_QOK")
    spin_guard("L_QSLOW")
    LAB("L_QOK")
    A(f"ds_write_b64 v{vQB}, {vr(vQN,2)}")
    A("s_waitcnt lgkmcnt(0)")
    for j in range(4):
        A(f"ds_read_b128 {vr(vQ+4*j,4)}, v{vQR} offset:{128*j}")
    for k in range(8):
        A(f"v_mov_b32 v{vACC+k}, 0")
    A(f"v_mov_b32 v{vL}, 0")
    A(f"v_mov_b32 v{vM}, {f32(-1e30)}")
    A("s_waitcnt lgkmcnt(0)")
    if DEBUG_TS:
        A(f"s_lshl_b32 s95, s{sPROC}, 3")
        A("s_add_u32 s95, s95, 8")
        TS(0, "s95")
    A(f"s_bitcmp1_b32 s{sPROC}, 0")
    A("s_cbranch_scc1 L_STAT1")
    statics(0)
    A("s_branch L_STATDONE")
    LAB("L_STAT1")
    statics(1)
    LAB("L_STATDONE")
    A(f"s_cmp_lg_u32 s{sCUR}, s{sPROC}")
    A("s_cbranch_scc1 L_SWITCH")
    A("s_branch L_BODY")

sS = 2
sX, sWQ, sWO, sWG, sWU, sWD, sOUT = 40, 44, 56, 60, 64, 68, 80
sKK, sBX, sMYREG = 4, 5, 6
sA0, sA1, sA2, sA3 = 7, 8, 9, 10
sRINGB = 11
wM8, wM16 = 4, 8
wOFF8, wOFFG, wOFFQ, wPI8 = 1, 2, 3, 12
wGOFF, wML, wR2W, wXPK = 13, 14, 15, 16
wRW, wHR, wL16, wZOFF = 17, 18, 19, 20
wL4, wZERO, wC0, wQR = 21, 22, 23, 0
wB = 24
wT = 28
RES_V = 64
LDS_DOWN = 0
LDS_RING = 100352
NRING = 10
LDS_X = LDS_RING + 4*NRING*1024
LDS_RED2 = LDS_X + 3584
LDS_RED = LDS_RED2 + 14336

def wo_tile(rg, cg):
    return ar((rg*7+cg)*4, 4)
def gu_tile(t, m):
    i = t*2 + m
    if i < 8:
        return ar(224 + i*4, 4)
    return vr(RES_V + (i-8)*4, 4)

def check_sentinel(regs, t, label_retry, label_ok):
    regs = list(regs)
    A(f"v_max_u32 v{t}, v{regs[0]}, v{regs[1]}")
    rest = regs[2:]
    while len(rest) >= 2:
        A(f"v_max3_u32 v{t}, v{t}, v{rest[0]}, v{rest[1]}")
        rest = rest[2:]
    if rest:
        A(f"v_max_u32 v{t}, v{t}, v{rest[0]}")
    A(f"v_cmp_eq_u32 vcc, -1, v{t}")
    A(f"s_cbranch_vccz {label_ok}")
    spin_guard(label_retry)
    LAB(label_ok)

def wq_dma(i):
    t, h = i // 2, i % 2
    A(f"s_add_u32 m0, s{sRINGB}, {(i % NRING)*1024}")
    A(f"s_add_u32 s{sA0}, s{sA3}, {t*4*8192 + h*256}")
    A(f"buffer_load_dwordx4 v{wOFFQ}, {sr(sWQ,4)}, s{sA0} offen lds")

def wq_base():
    A(f"s_mul_i32 s{sA3}, s3, {112*8192}")
    A(f"s_lshl_b32 s{sA0}, s{sS}, 9")
    A(f"s_add_u32 s{sA3}, s{sA3}, s{sA0}")

def layernorm(xp0, xp1):
    t = wT
    A(f"v_add_u32 v{t+10}, s{sBX}, v{wL4}")
    A(f"v_add_u32 v{t+11}, s{sBX}, v{wXPK}")
    for k in range(3):
        A(f"ds_read2st64_b32 {vr(t+2*k,2)}, v{t+10} offset0:{2*k} offset1:{2*k+1}")
    A(f"ds_read_b32 v{t+6}, v{t+10} offset:1536")
    A(f"ds_read_b32 v{xp0}, v{t+11}")
    A(f"ds_read_b32 v{xp1}, v{t+11} offset:256")
    A("s_waitcnt lgkmcnt(2)")
    A(f"v_add_f32 v{t+8}, v{t}, v{t+1}")
    for k in range(2, 7):
        A(f"v_add_f32 v{t+8}, v{t+8}, v{t+k}")
    wave_reduce("v_add_f32", t+8, t+9)
    A(f"v_mul_f32 v{t+8}, {f32(1/448)}, v{t+8}")
    for k in range(7):
        A(f"v_sub_f32 v{t+k}, v{t+k}, v{t+8}")
    A(f"v_mul_f32 v{t+7}, v{t}, v{t}")
    for k in range(1, 7):
        A(f"v_fmac_f32 v{t+7}, v{t+k}, v{t+k}")
    wave_reduce("v_add_f32", t+7, t+9)
    A(f"v_mul_f32 v{t+7}, {f32(1/448)}, v{t+7}")
    bf16_round(t+8, t+8)
    bf16_round(t+7, t+7)
    A(f"v_add_f32 v{t+7}, {f32(1e-5)}, v{t+7}")
    bf16_round(t+7, t+7)
    A(f"v_sqrt_f32 v{t+7}, v{t+7}")
    NOP(1)
    bf16_round(t+7, t+7)
    A(f"v_rcp_f32 v{t+7}, v{t+7}")
    A("s_waitcnt lgkmcnt(0)")
    for x in (xp0, xp1):
        A(f"v_sub_f32 v{x}, v{x}, v{t+8}")
    for x in (xp0, xp1):
        bf16_round(x, x)
    for x in (xp0, xp1):
        A(f"v_mul_f32 v{x}, v{x}, v{t+7}")
    for x in (xp0, xp1):
        A(f"v_cvt_pk_bf16_f32 v{x}, v{x}, v{x}")
    NOP(1)

def red_write(acc0, acc1):
    NOP(8)
    exec_set(0x00ff00ff00ff00ff)
    for m, acc in ((0, acc0), (1, acc1)):
        for r in range(4):
            A(f"ds_write_b32 v{wRW}, v{acc+r} offset:{m*2048 + r*128}")
    exec_all()
    A("s_waitcnt lgkmcnt(0)")
    A("s_barrier")

def gather_vec(off, tag):
    t = wT
    exec_set((1 << 56) - 1)
    A(f"s_sub_u32 s{sA1}, s{sKK}, 2")
    A(f"s_mul_i32 s{sA1}, s{sA1}, 1792")
    A(f"s_add_u32 s{sA1}, s{sA1}, {off}")
    A(f"v_add_u32 v{t+34}, s{sBX}, v{wPI8}")
    A(f"ds_read_b64 {vr(t+32,2)}, v{t+34} offset:{0}")
    LAB(f"L_G{tag}")
    for s in range(16):
        A(f"s_add_u32 s{sA0}, s{sA1}, {s*REGION}")
        A(f"buffer_load_dwordx2 {vr(t+2*s,2)}, v{wPI8}, {sr(sWS,4)}, s{sA0} offen offset:0 sc1")
    A("s_waitcnt vmcnt(0)")
    check_sentinel(range(t, t+32), t+35, f"L_G{tag}", f"L_G{tag}OK")
    for s in range(1, 16):
        A(f"v_add_f32 v{t}, v{t}, v{t+2*s}")
        A(f"v_add_f32 v{t+1}, v{t+1}, v{t+2*s+1}")
    bf16_round(t, t)
    bf16_round(t+1, t+1)
    A("s_waitcnt lgkmcnt(0)")
    A(f"v_add_f32 v{t}, v{t}, v{t+32}")
    A(f"v_add_f32 v{t+1}, v{t+1}, v{t+33}")
    bf16_round(t, t)
    bf16_round(t+1, t+1)

def bcast8(dst, src, u):
    A(f"v_mov_b32_dpp v{dst}, v{src} row_newbcast:{u} row_mask:0xf bank_mask:0x3")
    A(f"v_mov_b32_dpp v{dst}, v{src} row_newbcast:{8+u} row_mask:0xf bank_mask:0xc")

def service():
    LAB("L_SERVICE")
    TS(0, 0)
    t = wT
    srd(sX, 16, 1792)
    srd(sWQ, 22, 448*4096*2)
    srd(sWO, 24, 448*4096*2)
    srd(sWG, 28, 448*1792*2)
    srd(sWU, 30, 448*1792*2)
    srd(sWD, 32, 448*1792*2)
    srd(sOUT, 34, 1792)
    A(f"s_mul_i32 s{sMYREG}, s{sS}, {REGION}")
    G, N, U, E8 = t, t+1, t+2, t+3
    A(f"v_lshrrev_b32 v{G}, 4, v0")
    A(f"v_and_b32 v{N}, 15, v0")
    A(f"v_and_b32 v{U}, 7, v0")
    A(f"v_lshrrev_b32 v{E8}, 3, v0")
    A(f"v_lshlrev_b32 v{t+4}, 4, v{N}")
    A(f"s_movk_i32 s{sA0}, 0x2000")
    A(f"v_mad_u32_u24 v{wOFFQ}, v{G}, s{sA0}, v{t+4}")
    A(f"s_movk_i32 s{sA0}, 3584")
    A(f"v_mad_u32_u24 v{wOFFG}, v{G}, s{sA0}, v{t+4}")
    A(f"v_lshlrev_b32 v{t+4}, 4, v{U}")
    A(f"s_movk_i32 s{sA0}, 896")
    A(f"v_mad_u32_u24 v{wOFF8}, v{E8}, s{sA0}, v{t+4}")
    A(f"s_mul_i32 s{sRINGB}, s3, {NRING*1024}")
    A(f"s_add_u32 s{sRINGB}, s{sRINGB}, {LDS_RING}")
    wq_base()
    for i in range(NRING):
        wq_dma(i)
    A(f"s_mul_i32 s{sA0}, s3, 56")
    A(f"v_add_u32 v{t+4}, s{sA0}, v0")
    A(f"v_lshlrev_b32 v{wPI8}, 3, v{t+4}")
    A(f"v_lshlrev_b32 v{t+4}, 1, v{t+4}")
    A(f"v_and_b32 v{t+5}, 0xffffffe0, v{t+4}")
    A(f"v_and_b32 v{t+6}, 3, v{t+4}")
    A(f"v_lshl_add_u32 v{t+5}, v{t+6}, 3, v{t+5}")
    A(f"v_bfe_u32 v{t+6}, v{t+4}, 2, 3")
    A(f"v_add_u32 v{t+5}, v{t+5}, v{t+6}")
    A(f"v_lshlrev_b32 v{wC0}, 1, v{t+5}")
    exec_set((1 << 56) - 1)
    for b in range(2):
        for i in range(2):
            A(f"buffer_load_ushort v{t+8+2*b+i}, v{wC0}, {sr(sX,4)}, 0 offen offset:{b*896+16*i}")
    exec_all()
    for i in range(4):
        A(f"v_mov_b32 v{t+12+i}, -1")
    A(f"v_lshlrev_b32 v{wL16}, 4, v0")
    A(f"s_mul_i32 s{sA1}, s3, {CLEAR_PER_WAVE*1024}")
    A(f"s_add_u32 s{sA1}, s{sA1}, s{sMYREG}")
    for i in range(CLEAR_PER_WAVE):
        A(f"s_add_u32 s{sA0}, s{sA1}, {i*1024}")
        A(f"buffer_store_dwordx4 {vr(t+12,4)}, v{wL16}, {sr(sWS,4)}, s{sA0} offen sc1")
    masks8(wM8, t+16)
    masks16(wM16, t+16)
    A(f"v_mov_b32 v{wZERO}, 0")
    A(f"v_lshlrev_b32 v{wL4}, 2, v0")
    A(f"v_add_u32 v{wL4}, {LDS_X}, v{wL4}")
    A(f"v_lshrrev_b32 v{t+4}, 2, v{U}")
    A(f"v_lshlrev_b32 v{t+4}, 5, v{t+4}")
    A(f"v_lshl_add_u32 v{t+4}, v{E8}, 2, v{t+4}")
    A(f"v_and_b32 v{t+5}, 3, v0")
    A(f"v_add_u32 v{t+4}, v{t+4}, v{t+5}")
    A(f"s_lshl_b32 s{sA0}, s3, 6")
    A(f"v_add_u32 v{t+4}, s{sA0}, v{t+4}")
    A(f"v_lshlrev_b32 v{wGOFF}, 2, v{t+4}")
    A(f"v_min_u32 v{t+4}, 14, v{N}")
    A(f"v_mul_u32_u24 v{t+4}, {PSLOT}, v{t+4}")
    A(f"v_add_u32 v{wML}, 1024, v{t+4}")
    A(f"v_lshrrev_b32 v{t+4}, 1, v{G}")
    A(f"s_lshl_b32 s{sA0}, s3, 1")
    A(f"v_add_u32 v{t+4}, s{sA0}, v{t+4}")
    A(f"v_mul_u32_u24 v{t+4}, 1792, v{t+4}")
    A(f"v_and_b32 v{t+5}, 1, v{G}")
    A(f"v_lshlrev_b32 v{t+5}, 7, v{t+5}")
    A(f"v_lshl_add_u32 v{t+5}, v{U}, 4, v{t+5}")
    A(f"v_add_u32 v{t+4}, v{t+4}, v{t+5}")
    A(f"v_add_u32 v{wR2W}, {LDS_RED2}, v{t+4}")
    A(f"s_lshl_b32 s{sA0}, s3, 9")
    A(f"v_add_u32 v{wZOFF}, s{sA0}, v{t+5}")
    A(f"s_mul_i32 s{sA0}, s3, 112")
    A(f"v_lshl_add_u32 v{t+4}, v{N}, 2, v{G}")
    A(f"v_add_u32 v{t+4}, s{sA0}, v{t+4}")
    A(f"v_and_b32 v{t+5}, 0xffffffe0, v{t+4}")
    A(f"v_and_b32 v{t+6}, 7, v{t+4}")
    A(f"v_lshl_add_u32 v{t+5}, v{t+6}, 2, v{t+5}")
    A(f"v_bfe_u32 v{t+6}, v{t+4}, 3, 2")
    A(f"v_add_u32 v{t+5}, v{t+5}, v{t+6}")
    A(f"v_lshlrev_b32 v{t+5}, 2, v{t+5}")
    A(f"v_add_u32 v{wXPK}, {LDS_X}, v{t+5}")
    A(f"v_lshl_add_u32 v{t+4}, v{G}, 5, v{N}")
    A(f"v_lshlrev_b32 v{t+4}, 4, v{t+4}")
    A(f"s_lshl_b32 s{sA0}, s3, 2")
    A(f"s_add_u32 s{sA0}, s{sA0}, {LDS_RED}")
    A(f"v_add_u32 v{wRW}, s{sA0}, v{t+4}")
    A(f"v_lshl_add_u32 v{t+4}, v{U}, 3, v{E8}")
    A(f"v_lshlrev_b32 v{t+4}, 4, v{t+4}")
    A(f"v_add_u32 v{wHR}, {LDS_RED}, v{t+4}")
    A("s_waitcnt vmcnt(0)")
    for i in range(4):
        A(f"v_lshlrev_b32 v{t+8+i}, 16, v{t+8+i}")
    A(f"v_add_u32 v{wPI8}, {LDS_X}, v{wPI8}")
    exec_set((1 << 56) - 1)
    A(f"ds_write_b64 v{wPI8}, {vr(t+8,2)}")
    A(f"ds_write_b64 v{wPI8}, {vr(t+10,2)} offset:1792")
    exec_all()
    A(f"v_subrev_u32 v{wPI8}, {LDS_X}, v{wPI8}")
    A("s_waitcnt lgkmcnt(0)")
    A("s_barrier")
    A("s_cmp_lg_u32 s3, 0")
    A("s_cbranch_scc1 L_SVNOFLAG")
    A(f"s_lshl_b32 s{sA0}, s{sS}, 2")
    A(f"v_mov_b32 v{t}, 1")
    A("s_mov_b64 exec, 1")
    A(f"buffer_store_dword v{t}, v{wZERO}, {sr(sDBG,4)}, s{sA0} offen sc1")
    exec_all()
    LAB("L_SVNOFLAG")
    A(f"s_mov_b32 s{sKK}, 0")

    LAB("L_SVLOOP")
    A(f"s_and_b32 s{sBX}, s{sKK}, 1")
    A(f"s_mul_i32 s{sBX}, s{sBX}, 1792")
    A(f"s_cmp_lt_u32 s{sKK}, 2")
    A("s_cbranch_scc1 L_SVQ")
    A(f"s_sub_u32 s{sA1}, s{sKK}, 2")
    A(f"s_mul_i32 s{sA1}, s{sA1}, {15*PSLOT}")
    A(f"s_add_u32 s{sA1}, s{sA1}, s{sMYREG}")
    A(f"s_add_u32 s{sA1}, s{sA1}, {P_OFF}")
    LAB("L_WG")
    A(f"buffer_load_dwordx2 {vr(t+16,2)}, v{wML}, {sr(sWS,4)}, s{sA1} offen sc1")
    for c in range(15):
        A(f"s_add_u32 s{sA0}, s{sA1}, {c*PSLOT}")
        A(f"buffer_load_dword v{t+c}, v{wGOFF}, {sr(sWS,4)}, s{sA0} offen sc1")
    A("s_waitcnt vmcnt(0)")
    check_sentinel(list(range(t, t+15)) + [t+16, t+17], t+18, "L_WG", "L_WGOK")
    if DEBUG_TS:
        A(f"s_lshl_b32 s95, s{sKK}, 5")
        TS(0, "s95")
    A(f"v_mov_b32 v{t+18}, v{t+16}")
    row_reduce("v_max_f32", t+18)
    A(f"v_sub_f32 v{t+16}, v{t+16}, v{t+18}")
    A(f"v_exp_f32 v{t+16}, v{t+16}")
    A(f"v_and_b32 v{t+19}, 15, v0")
    A(f"v_cmp_gt_u32 vcc, 15, v{t+19}")
    A(f"v_mul_f32 v{t+17}, v{t+16}, v{t+17}")
    NOP(1)
    A(f"v_cndmask_b32 v{t+17}, 0, v{t+17}, vcc")
    row_reduce("v_add_f32", t+17)
    A(f"v_rcp_f32 v{t+17}, v{t+17}")
    A(f"v_mov_b32 v{t+18}, 0")
    A(f"v_mul_f32 v{t+16}, v{t+16}, v{t+17}")
    NOP(2)
    for c in range(15):
        A(f"v_fmac_f32_dpp v{t+18}, v{t+16}, v{t+c} row_newbcast:{c} {DPPM}")
    A(f"v_cvt_pk_bf16_f32 v{t+30}, v{t+18}, v{t+18}")
    NOP(2)
    for rg in range(8):
        bt = t + 28 + (rg % 2)
        bb = (wB, t+32)[rg % 2]
        bcast8(bt, t+30, rg)
        for j in range(4):
            A(f"v_and_b32 v{bb+j}, v{bt}, v{wM8+j}")
        NOP(2)
        for cg in range(7):
            c = "0" if rg == 0 else vr(t+4*cg, 4)
            A(f"v_mfma_f32_16x16x32_bf16 {vr(t+4*cg,4)}, {wo_tile(rg,cg)}, {vr(bb,4)}, {c}")
    NOP(8)
    exec_set(0xff00ff0000ff00ff)
    for cg in range(7):
        A(f"ds_write_b128 v{wR2W}, {vr(t+4*cg,4)} offset:{cg*256}")
    exec_all()
    A("s_waitcnt lgkmcnt(0)")
    A("s_barrier")
    exec_set((1 << 56) - 1)
    A(f"v_add_u32 v{t+16}, {LDS_RED2}, v{wPI8}")
    for p in range(8):
        A(f"ds_read_b64 {vr(t+2*p,2)}, v{t+16} offset:{p*1792}")
    A(f"s_sub_u32 s{sA1}, s{sKK}, 2")
    A(f"s_mul_i32 s{sA1}, s{sA1}, 1792")
    A(f"s_add_u32 s{sA1}, s{sA1}, s{sMYREG}")
    A("s_waitcnt lgkmcnt(0)")
    for p in range(1, 8):
        A(f"v_add_f32 v{t}, v{t}, v{t+2*p}")
        A(f"v_add_f32 v{t+1}, v{t+1}, v{t+2*p+1}")
    A(f"v_min_u32 v{t}, -2, v{t}")
    A(f"v_min_u32 v{t+1}, -2, v{t+1}")
    A(f"buffer_store_dwordx2 {vr(t,2)}, v{wPI8}, {sr(sWS,4)}, s{sA1} offen offset:{Y_OFF} sc1")
    exec_all()
    if DEBUG_TS:
        A(f"s_lshl_b32 s95, s{sKK}, 5")
        A("s_add_u32 s95, s95, 4")
        TS(0, "s95")
    A(f"s_add_u32 s{sBX}, s{sBX}, {LDS_X}")
    gather_vec(Y_OFF, "Y")
    A(f"ds_write_b64 v{t+34}, {vr(t,2)}")
    exec_all()
    A(f"s_sub_u32 s{sBX}, s{sBX}, {LDS_X}")
    A("s_waitcnt lgkmcnt(0)")
    A("s_barrier")
    if DEBUG_TS:
        A(f"s_lshl_b32 s95, s{sKK}, 5")
        A("s_add_u32 s95, s95, 8")
        TS(0, "s95")
    XP = t + 12
    layernorm(XP, XP+1)
    AG, AU = t+16, t+20
    for tt in range(28):
        bb = (wB, t+24)[tt % 2]
        for j in range(4):
            A(f"v_and_b32_dpp v{bb+j}, v{XP+tt//16}, v{wM16+j} row_newbcast:{tt%16} {DPPM}")
        NOP(2)
        for m, acc in ((0, AG), (1, AU)):
            c = "0" if tt == 0 else vr(acc, 4)
            A(f"v_mfma_f32_16x16x32_bf16 {vr(acc,4)}, {gu_tile(tt,m)}, {vr(bb,4)}, {c}")
    red_write(AG, AU)
    for k in range(2):
        for m in range(2):
            A(f"ds_read_b128 {vr(t+4*(2*k+m),4)}, v{wHR} offset:{m*2048 + k*1024}")
    DT = t + 20
    A(f"s_lshl_b32 s{sA0}, s3, 11")
    A(f"v_add_u32 v{t+16}, s{sA0}, v{wL16}")
    A(f"v_add_u32 v{t+17}, {56*1024}, v{t+16}")
    def dread(i):
        rg, ci = i // 2, i % 2
        if rg < 8:
            A(f"ds_read_b128 {vr(DT+4*(i%4),4)}, v{t+16} offset:{(rg*7+ci)*1024}")
        else:
            A(f"ds_read_b128 {vr(DT+4*(i%4),4)}, v{t+17} offset:{((rg-8)*7+ci)*1024}")
    for i in range(4):
        dread(i)
    A("s_waitcnt lgkmcnt(4)")
    for q in range(4):
        b = t + 4*q
        A(f"v_add_f32 v{b}, v{b}, v{b+1}")
        A(f"v_add_f32 v{b+2}, v{b+2}, v{b+3}")
    for q in range(4):
        b = t + 4*q
        A(f"v_add_f32 v{b}, v{b}, v{b+2}")
    for q in range(4):
        bf16_round(t+4*q, t+4*q)
    for k in range(2):
        A(f"v_mul_f32 v{t+8*k}, {f32(-LOG2E)}, v{t+8*k}")
    for k in range(2):
        A(f"v_exp_f32 v{t+8*k}, v{t+8*k}")
    NOP(1)
    for k in range(2):
        A(f"v_add_f32 v{t+8*k}, 1.0, v{t+8*k}")
    for k in range(2):
        A(f"v_rcp_f32 v{t+8*k}, v{t+8*k}")
    NOP(1)
    for k in range(2):
        bf16_round(t+8*k, t+8*k)
    for k in range(2):
        A(f"v_mul_f32 v{t+8*k}, v{t+8*k}, v{t+8*k+4}")
    HP = (t+1, t+2)
    for k in range(2):
        A(f"v_cvt_pk_bf16_f32 v{HP[k]}, v{t+8*k}, v{t+8*k}")
    NOP(2)
    AD = (t+4, t+8)
    for rg in range(14):
        bt = t + 3
        bb = (wB, t+12)[rg % 2]
        bcast8(bt, HP[rg // 8], rg % 8)
        for j in range(4):
            A(f"v_and_b32 v{bb+j}, v{bt}, v{wM8+j}")
        for ci in range(2):
            i = rg*2 + ci
            rem = min(27 - i, 3)
            A(f"s_waitcnt lgkmcnt({rem})")
            if ci == 0:
                NOP(1)
            c = "0" if rg == 0 else vr(AD[ci], 4)
            A(f"v_mfma_f32_16x16x32_bf16 {vr(AD[ci],4)}, {vr(DT+4*(i%4),4)}, {vr(bb,4)}, {c}")
            if i + 4 < 28:
                dread(i + 4)
    NOP(8)
    for k in range(8):
        A(f"v_mov_b32_dpp v{t+12+k}, v{t+4+k} row_ror:8 {DPPM}")
    NOP(1)
    for k in range(8):
        A(f"v_permlane32_swap_b32 v{t+12+k}, v{t+20+k}")
    NOP(1)
    for k in range(8):
        A(f"v_add_f32 v{t+4+k}, v{t+4+k}, v{t+20+k}")
    for k in range(8):
        A(f"v_min_u32 v{t+4+k}, -2, v{t+4+k}")
    A(f"s_sub_u32 s{sA1}, s{sKK}, 2")
    A(f"s_mul_i32 s{sA1}, s{sA1}, 1792")
    A(f"s_add_u32 s{sA1}, s{sA1}, s{sMYREG}")
    A(f"s_add_u32 s{sA1}, s{sA1}, {Z_OFF}")
    A("s_cmp_eq_u32 s3, 3")
    A(f"s_cselect_b32 s{sA2}, 0x80000000, s{sA1}")
    exec_set(0x00ff00ff)
    A(f"buffer_store_dwordx4 {vr(t+4,4)}, v{wZOFF}, {sr(sWS,4)}, s{sA1} offen sc1")
    A(f"buffer_store_dwordx4 {vr(t+8,4)}, v{wZOFF}, {sr(sWS,4)}, s{sA2} offen offset:256 sc1")
    exec_all()
    if DEBUG_TS:
        A(f"s_lshl_b32 s95, s{sKK}, 5")
        A("s_add_u32 s95, s95, 12")
        TS(0, "s95")
    A(f"s_cmp_lt_u32 s{sKK}, 4")
    A("s_cbranch_scc1 L_SVZ")
    A(f"s_cmp_lg_u32 s{sS}, 0")
    A("s_cbranch_scc1 L_SVNEXT")
    LAB("L_SVZ")
    NOP(2)
    A(f"s_add_u32 s{sBX}, s{sBX}, {LDS_X}")
    gather_vec(Z_OFF, "Z")
    A(f"s_sub_u32 s{sBX}, s{sBX}, {LDS_X}")
    A(f"s_cmp_lt_u32 s{sKK}, 4")
    A("s_cbranch_scc1 L_SVZ2")
    A(f"s_lshr_b32 s{sA0}, s{sBX}, 1")
    A(f"buffer_store_short_d16_hi v{t}, v{wC0}, {sr(sOUT,4)}, s{sA0} offen")
    A(f"buffer_store_short_d16_hi v{t+1}, v{wC0}, {sr(sOUT,4)}, s{sA0} offen offset:16")
    exec_all()
    if DEBUG_TS:
        A(f"s_lshl_b32 s95, s{sKK}, 5")
        A("s_add_u32 s95, s95, 16")
        TS(0, "s95")
    A("s_branch L_SVNEXT")
    LAB("L_SVZ2")
    A(f"ds_write_b64 v{t+34}, {vr(t,2)}")
    exec_all()
    A("s_waitcnt lgkmcnt(0)")
    LAB("L_SVQ")
    A("s_barrier")
    if DEBUG_TS:
        A(f"s_lshl_b32 s95, s{sKK}, 5")
        A("s_add_u32 s95, s95, 16")
        TS(0, "s95")
    layernorm(XP, XP+1)
    wq_base()
    A(f"v_add_u32 v{t+14}, s{sRINGB}, v{wL16}")
    QT = t + 28
    for tt in range(28):
        bb = (wB, t+24)[tt % 2]
        for h in range(2):
            i = tt*2 + h
            outstanding_after = min(55 - i, NRING - 1 - h)
            if h == 0:
                A(f"s_waitcnt vmcnt({max(min(55 - i - 1, NRING - 2), 0)})")
            A(f"ds_read_b128 {vr(QT+4*h,4)}, v{t+14} offset:{(i % NRING)*1024}")
        for j in range(4):
            A(f"v_and_b32_dpp v{bb+j}, v{XP+tt//16}, v{wM16+j} row_newbcast:{tt%16} {DPPM}")
        A("s_waitcnt lgkmcnt(0)")
        for h in range(2):
            i = tt*2 + h
            if i + NRING < 56:
                wq_dma(i + NRING)
        NOP(1)
        for h, acc in ((0, AG), (1, AU)):
            c = "0" if tt == 0 else vr(acc, 4)
            A(f"v_mfma_f32_16x16x32_bf16 {vr(acc,4)}, {vr(QT+4*h,4)}, {vr(bb,4)}, {c}")
        NOP(4)
    for i in range(NRING):
        wq_dma(i)
    red_write(AG, AU)
    A("s_cmp_ge_u32 s3, 2")
    A("s_cbranch_scc1 L_SVQDONE")
    A(f"s_lshl_b32 s{sA0}, s3, 11")
    A(f"s_add_u32 s{sA0}, s{sA0}, {LDS_RED}")
    A(f"v_lshl_add_u32 v{t+8}, v0, 5, s{sA0}")
    A(f"ds_read_b128 {vr(t,4)}, v{t+8}")
    A(f"ds_read_b128 {vr(t+4,4)}, v{t+8} offset:16")
    A(f"s_lshl_b32 s{sA1}, s{sKK}, 9")
    A(f"s_add_u32 s{sA1}, s{sA1}, s{sMYREG}")
    A(f"s_lshl_b32 s{sA0}, s3, 8")
    A(f"s_add_u32 s{sA1}, s{sA1}, s{sA0}")
    A(f"v_lshlrev_b32 v{t+9}, 2, v0")
    A("s_waitcnt lgkmcnt(0)")
    for q in range(2):
        b = t + 4*q
        A(f"v_add_f32 v{b}, v{b}, v{b+1}")
        A(f"v_add_f32 v{b+2}, v{b+2}, v{b+3}")
        A(f"v_add_f32 v{b}, v{b}, v{b+2}")
    A(f"v_cvt_pk_bf16_f32 v{t}, v{t}, v{t+4}")
    A(f"v_min_u32 v{t}, -2, v{t}")
    A(f"buffer_store_dword v{t}, v{t+9}, {sr(sWS,4)}, s{sA1} offen offset:{Q_OFF} sc1")
    LAB("L_SVQDONE")
    if DEBUG_TS:
        A(f"s_lshl_b32 s95, s{sKK}, 5")
        A("s_add_u32 s95, s95, 20")
        TS(0, "s95")
    A(f"s_cmp_lg_u32 s{sKK}, 1")
    A("s_cbranch_scc1 L_SVNEXT")
    A(f"s_lshl_b32 s{sA1}, s{sS}, 8")
    A(f"s_lshl_b32 s{sA0}, s3, 6")
    A(f"s_add_u32 s{sA1}, s{sA1}, s{sA0}")
    A(f"s_mul_i32 s{sA1}, s{sA1}, 896")
    for rg in range(8):
        A(f"s_add_u32 s{sA0}, s{sA1}, {rg*8*896}")
        for cg in range(7):
            A(f"buffer_load_dwordx4 {wo_tile(rg,cg)}, v{wOFF8}, {sr(sWO,4)}, s{sA0} offen offset:{cg*128} nt")
    A(f"s_mul_i32 s{sA1}, s3, {112*3584}")
    A(f"s_mul_i32 s{sA0}, s{sS}, 224")
    A(f"s_add_u32 s{sA1}, s{sA1}, s{sA0}")
    for tt in range(28):
        A(f"s_add_u32 s{sA0}, s{sA1}, {tt*4*3584}")
        A(f"buffer_load_dwordx4 {gu_tile(tt,0)}, v{wOFFG}, {sr(sWG,4)}, s{sA0} offen nt")
        A(f"buffer_load_dwordx4 {gu_tile(tt,1)}, v{wOFFG}, {sr(sWU,4)}, s{sA0} offen nt")
    A(f"s_mul_i32 s{sA1}, s{sS}, {112*896}")
    A(f"s_lshl_b32 s{sA0}, s3, 8")
    A(f"s_add_u32 s{sA1}, s{sA1}, s{sA0}")
    A(f"s_lshl_b32 s{sA2}, s3, 11")
    A("s_cmp_eq_u32 s3, 3")
    A("s_cbranch_scc1 L_SVD3")
    for rg in range(14):
        A(f"s_add_u32 m0, s{sA2}, {(rg*7+1)*1024}")
        A(f"s_add_u32 s{sA0}, s{sA1}, {rg*8*896+128}")
        A(f"buffer_load_dwordx4 v{wOFF8}, {sr(sWD,4)}, s{sA0} offen nt lds")
    LAB("L_SVD3")
    for rg in range(14):
        A(f"s_add_u32 m0, s{sA2}, {(rg*7)*1024}")
        A(f"s_add_u32 s{sA0}, s{sA1}, {rg*8*896}")
        A(f"buffer_load_dwordx4 v{wOFF8}, {sr(sWD,4)}, s{sA0} offen nt lds")
    A(f"v_and_b32 v{t+1}, 15, v0")
    A(f"v_lshlrev_b32 v{t+1}, 2, v{t+1}")
    LAB("L_SVFL")
    A(f"buffer_load_dword v{t}, v{t+1}, {sr(sDBG,4)}, 0 offen sc1")
    A("s_waitcnt vmcnt(0)")
    A(f"v_cmp_eq_u32 vcc, 0, v{t}")
    A("s_cbranch_vccz L_SVNEXT")
    spin_guard("L_SVFL")
    LAB("L_SVNEXT")
    A(f"s_add_u32 s{sKK}, s{sKK}, 1")
    A(f"s_cmp_lt_u32 s{sKK}, 6")
    A("s_cbranch_scc1 L_SVLOOP")

def main():
    global DEBUG_TS
    out = f"cdna_kernels/{NAME}.s"
    for a in sys.argv[1:]:
        if a == "--ts":
            DEBUG_TS = True
        elif a == "--statdef":
            globals()["STATPOL"] = ""
        else:
            out = a
    header()
    stream()
    service()
    footer()
    open(out, "w").write("\n".join(x for x in L if x is not None) + "\n")
    print("wrote", out, len(L), "lines")

main()
```

```python
import struct, sys

NAME = "interleave_layers__mha_block_cached__glu_gated_glu__decode"
DEBUG_TS = False
SPIN_MAX = 400000
STATPOL = "nt"
MALLMASK = None

def f32(x):
    return "0x%08x" % struct.unpack("<I", struct.pack("<f", x))[0]

LOG2E = 1.4426950408889634
REGION = 98304
Q_OFF, Y_OFF, Z_OFF, P_OFF = 256, 2304, 9472, 16640
PSLOT = 1152
CLEAR_PER_WAVE = 21
NDYN = 784
NSTAT = 240
TS_OFF = 0x200000

L = []
def A(s):
    L.append("    " + s)
def LAB(s):
    L.append(s + ":")
def NOP(n):
    if n > 0:
        A(f"s_nop {n-1}")
def vr(a, n):
    return f"v[{a}:{a+n-1}]"
def ar(a, n):
    return f"a[{a}:{a+n-1}]"
def sr(a, n):
    return f"s[{a}:{a+n-1}]"
DPPM = "row_mask:0xf bank_mask:0xf"

def srd(dst, ptr, nbytes):
    A(f"s_mov_b32 s{dst}, s{ptr}")
    A(f"s_and_b32 s{dst+1}, s{ptr+1}, 0xffff")
    A(f"s_mov_b32 s{dst+2}, {nbytes}")
    A(f"s_mov_b32 s{dst+3}, 0x20000")

def exec_set(val):
    lo, hi = val & 0xffffffff, val >> 32
    A(f"s_mov_b32 exec_lo, 0x{lo:x}")
    A(f"s_mov_b32 exec_hi, 0x{hi:x}")
def exec_all():
    A("s_mov_b64 exec, -1")

def xrow_reduce(op, x, t):
    A(f"v_mov_b32 v{t}, v{x}")
    NOP(2)
    A(f"v_permlane16_swap_b32 v{x}, v{t}")
    NOP(1)
    A(f"{op} v{x}, v{x}, v{t}")
    A(f"v_mov_b32 v{t}, v{x}")
    NOP(2)
    A(f"v_permlane32_swap_b32 v{x}, v{t}")
    NOP(1)
    A(f"{op} v{x}, v{x}, v{t}")

def row_reduce(op, x):
    for ctl in ("quad_perm:[1,0,3,2]", "quad_perm:[2,3,0,1]", "row_half_mirror", "row_mirror"):
        NOP(2)
        A(f"{op}_dpp v{x}, v{x}, v{x} {ctl} {DPPM}")

def wave_reduce(op, x, t):
    row_reduce(op, x)
    xrow_reduce(op, x, t)

def bf16_round(dst, src):
    A(f"v_cvt_pk_bf16_f32 v{dst}, v{src}, v{src}")
    A(f"v_and_b32 v{dst}, 0xffff0000, v{dst}")

ts_id = [0]
def TS(idx_sgpr_or_const, slot):
    if not DEBUG_TS:
        return
    A("s_memrealtime s[98:99]")
    A("s_waitcnt lgkmcnt(0)")
    A("v_mov_b32 v62, s98")
    A(f"s_add_u32 s98, s97, {slot*4}" if isinstance(slot, int) else f"s_add_u32 s98, s97, {slot}")
    A("v_mov_b32 v63, 0")
    A("s_mov_b64 s[100:101], exec")
    A("s_mov_b64 exec, 1")
    A("buffer_store_dword v62, v63, s[48:51], s98 offen")
    A("s_mov_b64 exec, s[100:101]")

def header():
    L.append("; Kernarg: 0 A_x, 8 A_k_cache, 16 A_v_cache, 24 A_wq, 32 A_wo, 40 B_x, 48 B_w_gate, 56 B_w_up,")
    L.append("; @launch grid=(256,1,1) block=(256,1,1) lds=163840")
    L.append('.amdgcn_target "amdgcn-amd-amdhsa--gfx950"')
    L.append(".text")
    L.append(f".globl {NAME}_kernel")
    L.append(".p2align 8")
    L.append(f".type {NAME}_kernel,@function")
    LAB(f"{NAME}_kernel")
    A("s_cmp_ge_u32 s2, 256")
    A("s_cbranch_scc1 L_END")
    A("s_load_dwordx16 s[16:31], s[0:1], 0")
    A("s_load_dwordx8 s[32:39], s[0:1], 64")
    A("v_lshrrev_b32 v1, 6, v0")
    A("v_and_b32 v0, 63, v0")
    A("v_readfirstlane_b32 s3, v1")
    A(f"s_mov_b32 s96, {SPIN_MAX}")
    A("s_waitcnt lgkmcnt(0)")
    srd(48, 38, 0x40000000 if DEBUG_TS else 16 * REGION)
    srd(52, 36, 256)
    if DEBUG_TS:
        A("s_lshl_b32 s97, s2, 2")
        A("s_add_u32 s97, s97, s3")
        A("s_lshl_b32 s97, s97, 8")
        A(f"s_add_u32 s97, s97, {TS_OFF}")
    A("s_cmp_lt_u32 s2, 16")
    A("s_cbranch_scc1 L_SERVICE")

def footer():
    LAB("L_END")
    A("s_endpgm")
    L.append('.section .rodata,"a"')
    L.append(".p2align 6")
    L.append(f".amdhsa_kernel {NAME}_kernel")
    L.append("  .amdhsa_next_free_vgpr 512")
    L.append("  .amdhsa_next_free_sgpr 102")
    L.append("  .amdhsa_accum_offset 256")
    L.append("  .amdhsa_group_segment_fixed_size 0")
    L.append("  .amdhsa_kernarg_size 96")
    L.append("  .amdhsa_user_sgpr_count 2")
    L.append("  .amdhsa_user_sgpr_kernarg_segment_ptr 1")
    L.append("  .amdhsa_system_sgpr_workgroup_id_x 1")
    L.append("  .amdhsa_float_denorm_mode_32 3")
    L.append(".end_amdhsa_kernel")

def spin_guard(label_retry):
    A("s_sleep 2")
    A("s_sub_u32 s96, s96, 1")
    A("s_cmp_eq_u32 s96, 0")
    A("s_cbranch_scc1 L_END")
    A(f"s_branch {label_retry}")

def masks16(m, t):
    A(f"v_and_b32 v{t}, 15, v0")
    A(f"v_and_b32 v{t+1}, 1, v0")
    A(f"v_lshlrev_b32 v{t+1}, 4, v{t+1}")
    A(f"v_mov_b32 v{m}, 0xffff")
    A(f"v_lshlrev_b32 v{t+1}, v{t+1}, v{m}")
    A(f"v_lshrrev_b32 v{t}, 1, v{t}")
    for j in range(4):
        A(f"v_cmp_eq_u32 vcc, {j}, v{t}")
        NOP(2)
        A(f"v_cndmask_b32 v{m+j}, 0, v{t+1}, vcc")

def masks8(m, t):
    A(f"v_and_b32 v{t}, 7, v0")
    A(f"v_and_b32 v{t+1}, 1, v0")
    A(f"v_lshlrev_b32 v{t+1}, 4, v{t+1}")
    A(f"v_mov_b32 v{m}, 0xffff")
    A(f"v_lshlrev_b32 v{t+1}, v{t+1}, v{m}")
    A(f"v_lshrrev_b32 v{t}, 1, v{t}")
    for j in range(4):
        A(f"v_cmp_eq_u32 vcc, {j}, v{t}")
        NOP(2)
        A(f"v_cndmask_b32 v{m+j}, 0, v{t+1}, vcc")

vKOFF, vVOFF, vLDSK = 1, 2, 3
vMSK = 4
vZERO, vONE, vTICK = 8, 9, 10
vQOFF = 11
vM, vL = 12, 13
vS0, vS1, vSa, vSb, vX, vY, vF, vT = 14, 15, 16, 17, 18, 19, 20, 21
vP0, vP1 = 22, 23
vB0, vB1 = 24, 28
vACC = 32
vQ = 40
vQN = 56
vSCR, vQB, vQR = 58, 59, 60
vTICK2 = 61
RING = 64
KST = 128
sK, sV, sWS, sDBG = 40, 44, 48, 52
sHEAD, sC, sWV, sHOFF = 4, 5, 6, 7
sLDPH, sLIM, sTB, sNOFF, sCUR, sPROC, sQTAG, sT0 = 8, 9, 10, 11, 12, 13, 14, 15
sCC, sREG, sT1, sT2, sBOFF, sT3, sPEND, sPOL = 72, 73, 74, 75, 76, 77, 78, 79
LDS_SCR = 131072
LDS_PART = LDS_SCR
LDS_CNT = LDS_SCR + 8448
LDS_QB = LDS_SCR + 8704

def loadK(dst, soff, pol="nt"):
    for j in range(4):
        A(f"buffer_load_dwordx4 {vr(dst+4*j,4)}, v{vKOFF}, {sr(sK,4)}, s{soff} offen offset:{128*j} {pol}")
def loadV(dst, soff, agpr=False, pol="nt"):
    for j in range(4):
        d = ar(dst+4*j, 4) if agpr else vr(dst+4*j, 4)
        A(f"buffer_load_dwordx4 {d}, v{vVOFF}, {sr(sV,4)}, s{soff} offen offset:{256*j} {pol}")

def kdots(R, S):
    for i in range(8):
        for (acc, k) in ((vSa, i), (vSb, 8 + i)):
            c = "0" if i == 0 else f"v{acc}"
            A(f"v_dot2_f32_bf16 v{acc}, v{R+k}, v{vQ+k}, {c}")
    NOP(3)
    A(f"v_add_f32 v{S}, v{vSa}, v{vSb}")

def kdots_lds(ldsoff, S):
    tmp = (vB0, vB1)
    A(f"ds_read_b128 {vr(tmp[0],4)}, v{vLDSK} offset:{ldsoff}")
    A(f"ds_read_b128 {vr(tmp[1],4)}, v{vLDSK} offset:{ldsoff+1024}")
    for j in range(4):
        A(f"s_waitcnt lgkmcnt({1 if j < 3 else 0})")
        acc = vSa if j % 2 == 0 else vSb
        for i in range(4):
            c = "0" if (j < 2 and i == 0) else f"v{acc}"
            A(f"v_dot2_f32_bf16 v{acc}, v{tmp[j%2]+i}, v{vQ+4*j+i}, {c}")
        if j < 2:
            A(f"ds_read_b128 {vr(tmp[j%2],4)}, v{vLDSK} offset:{ldsoff+1024*(j+2)}")
    NOP(3)
    A(f"v_add_f32 v{S}, v{vSa}, v{vSb}")

def softmax_update():
    for ctl in ("quad_perm:[1,0,3,2]", "quad_perm:[2,3,0,1]", "row_half_mirror"):
        NOP(1)
        A(f"v_add_f32_dpp v{vS0}, v{vS0}, v{vS0} {ctl} {DPPM}")
        A(f"v_add_f32_dpp v{vS1}, v{vS1}, v{vS1} {ctl} {DPPM}")
        NOP(1)
    A(f"v_cvt_pk_bf16_f32 v{vT}, v{vS0}, v{vS1}")
    A(f"v_lshlrev_b32 v{vS0}, 16, v{vT}")
    A(f"v_and_b32 v{vS1}, 0xffff0000, v{vT}")
    A(f"v_max_f32 v{vX}, v{vS0}, v{vS1}")
    NOP(2)
    A(f"v_max_f32_dpp v{vX}, v{vX}, v{vX} row_ror:8 {DPPM}")
    xrow_reduce("v_max_f32", vX, vY)
    A(f"v_mul_f32 v{vX}, s{sCC}, v{vX}")
    A(f"v_ceil_f32 v{vX}, v{vX}")
    A(f"v_max_f32 v{vX}, v{vX}, v{vM}")
    A(f"v_sub_f32 v{vF}, v{vM}, v{vX}")
    A(f"v_fma_f32 v{vS0}, v{vS0}, s{sCC}, -v{vX}")
    A(f"v_fma_f32 v{vS1}, v{vS1}, s{sCC}, -v{vX}")
    A(f"v_exp_f32 v{vF}, v{vF}")
    A(f"v_exp_f32 v{vS0}, v{vS0}")
    A(f"v_exp_f32 v{vS1}, v{vS1}")
    A(f"v_mov_b32 v{vM}, v{vX}")
    for k in range(8):
        A(f"v_mul_f32 v{vACC+k}, v{vACC+k}, v{vF}")
    A(f"v_fma_f32 v{vL}, v{vL}, v{vF}, v{vS0}")
    A(f"v_cvt_pk_bf16_f32 v{vP0}, v{vS0}, v{vS0}")
    A(f"v_cvt_pk_bf16_f32 v{vP1}, v{vS1}, v{vS1}")
    A(f"v_add_f32 v{vL}, v{vL}, v{vS1}")

def vmfma(R, P, agpr=False):
    rr = (lambda k: ar(R+4*k, 4)) if agpr else (lambda k: vr(R+4*k, 4))
    for j in range(4):
        A(f"v_and_b32 v{vB0+j}, v{P}, v{vMSK+j}")
    for j in range(4):
        A(f"v_and_b32_dpp v{vB1+j}, v{P}, v{vMSK+j} row_ror:8 {DPPM}")
    a0, a1 = vr(vACC, 4), vr(vACC+4, 4)
    A(f"v_mfma_f32_16x16x32_bf16 {a0}, {rr(0)}, {vr(vB0,4)}, {a0}")
    A(f"v_mfma_f32_16x16x32_bf16 {a1}, {rr(1)}, {vr(vB0,4)}, {a1}")
    A(f"v_mfma_f32_16x16x32_bf16 {a0}, {rr(2)}, {vr(vB1,4)}, {a0}")
    A(f"v_mfma_f32_16x16x32_bf16 {a1}, {rr(3)}, {vr(vB1,4)}, {a1}")

def ticket_atomic(dst):
    A("s_mov_b64 exec, 1")
    A(f"buffer_atomic_add v{dst}, v{vZERO}, {sr(sWS,4)}, s{sREG} offen sc0 sc1")
    exec_all()

dec_n = [0]
def decode(src):
    n = dec_n[0]; dec_n[0] += 1
    A(f"v_readfirstlane_b32 s{sT0}, v{src}")
    A(f"v_mov_b32 v{src}, 1")
    A(f"s_add_u32 s{sT0}, s{sT0}, 1")
    LAB(f"L_DEC{n}")
    A(f"s_cmp_lt_u32 s{sT0}, s{sLIM}")
    A(f"s_cbranch_scc1 L_DOK{n}")
    A(f"s_add_u32 s{sLDPH}, s{sLDPH}, 1")
    A(f"s_add_u32 s{sLIM}, s{sLIM}, {NDYN}")
    A(f"s_sub_u32 s{sTB}, s{sTB}, {NDYN*8192}")
    A(f"s_xor_b32 s{sBOFF}, s{sBOFF}, 0x08000000")
    A(f"s_cmp_lt_u32 s{sLDPH}, 4")
    A(f"s_cbranch_scc0 L_DFIN{n}")
    A(f"s_lshl_b32 s{sT1}, s{sLDPH}, 9")
    A(f"s_add_u32 s{sT1}, s{sT1}, s{sREG}")
    A(f"buffer_load_dwordx2 {vr(vQN,2)}, v{vQOFF}, {sr(sWS,4)}, s{sT1} offen offset:{Q_OFF} sc1")
    A(f"s_mov_b32 s{sQTAG}, s{sLDPH}")
    A(f"s_branch L_DEC{n}")
    LAB(f"L_DFIN{n}")
    A(f"s_mov_b32 s{sLIM}, -1")
    LAB(f"L_DOK{n}")
    A(f"s_lshl_b32 s{sNOFF}, s{sT0}, 13")
    A(f"s_add_u32 s{sNOFF}, s{sNOFF}, s{sTB}")
    A(f"s_add_u32 s{sNOFF}, s{sNOFF}, s{sBOFF}")
    A(f"s_cmp_ge_u32 s{sLDPH}, 4")
    A(f"s_cselect_b32 s{sNOFF}, 0x80000000, s{sNOFF}")
    A(f"s_add_u32 s{sT3}, s{sNOFF}, 4096")
    if MALLMASK is not None:
        A(f"s_and_b32 s{sPOL}, s{sT0}, {MALLMASK}")
        A(f"s_lshr_b32 s{sT1}, s{sLDPH}, 1")
        A(f"s_or_b32 s{sPOL}, s{sPOL}, s{sT1}")

pol_n = [0]
def ring_load(fn, dst, soff):
    if MALLMASK is None:
        fn(dst, soff)
        return
    n = pol_n[0]; pol_n[0] += 1
    A(f"s_cmp_lg_u32 s{sPOL}, 0")
    A(f"s_cbranch_scc1 L_PN{n}")
    fn(dst, soff, pol="")
    A(f"s_branch L_PD{n}")
    LAB(f"L_PN{n}")
    fn(dst, soff)
    LAB(f"L_PD{n}")

def static_loads(b, part):
    def soff(u):
        A(f"s_add_u32 s{sT1}, s{sT2}, {b*0x08000000 + u*4096}")
    if part == 0:
        for u in range(4):
            soff(u); loadK(KST + (b*4+u)*16, sT1)
    elif part == 1:
        for u in range(4):
            soff(4+u)
            for j in range(4):
                A(f"s_add_u32 m0, s{sT3}, {(b*4+u)*4096 + 896*j}")
                NOP(1)
                A(f"buffer_load_dwordx4 v{vKOFF}, {sr(sK,4)}, s{sT1} offen offset:{128*j} nt lds")
    else:
        for u in range(4*(part-2), 4*(part-2)+4):
            soff(u); loadV((b*8+u)*16, sT1, agpr=True, pol=STATPOL)

def statics(b):
    for blk in range(4):
        for i, S in ((0, vS0), (1, vS1)):
            u = blk*2 + i
            if u < 4:
                kdots(KST + (b*4+u)*16, S)
            else:
                kdots_lds((b*4+u-4)*4096, S)
        softmax_update()
        vmfma((b*8+blk*2)*16, vP0, agpr=True)
        vmfma((b*8+blk*2+1)*16, vP1, agpr=True)
        NOP(4)

def stream():
    TS(0, 0)
    A(f"s_sub_u32 s{sT0}, s2, 16")
    A(f"s_mul_hi_u32 s{sHEAD}, s{sT0}, 0x11111112")
    A(f"s_mul_i32 s{sT1}, s{sHEAD}, 15")
    A(f"s_sub_u32 s{sC}, s{sT0}, s{sT1}")
    A(f"s_lshl_b32 s{sWV}, s{sC}, 2")
    A(f"s_add_u32 s{sWV}, s{sWV}, s3")
    A(f"s_lshl_b32 s{sHOFF}, s{sHEAD}, 23")
    srd(sK, 18, 0x10000000)
    srd(sV, 20, 0x10000000)
    A(f"v_lshrrev_b32 v{vX}, 3, v0")
    A(f"v_and_b32 v{vY}, 7, v0")
    A(f"v_lshlrev_b32 v{vX}, 9, v{vX}")
    A(f"v_lshl_add_u32 v{vKOFF}, v{vY}, 4, v{vX}")
    A(f"v_lshrrev_b32 v{vX}, 4, v0")
    A(f"v_and_b32 v{vY}, 15, v0")
    A(f"v_lshlrev_b32 v{vX}, 10, v{vX}")
    A(f"v_lshl_add_u32 v{vVOFF}, v{vY}, 4, v{vX}")
    A(f"s_lshl_b32 s{sT2}, s{sWV}, 15")
    A(f"s_add_u32 s{sT2}, s{sT2}, s{sHOFF}")
    A(f"s_lshl_b32 s{sT3}, s3, 15")
    for part in range(4):
        static_loads(0, part)
    A(f"s_mov_b32 s{sCC}, {f32(LOG2E/16)}")
    A(f"s_mul_i32 s{sREG}, s{sHEAD}, {REGION}")
    A(f"v_mov_b32 v{vZERO}, 0")
    A(f"v_mov_b32 v{vTICK}, 1")
    A(f"v_mov_b32 v{vTICK2}, 1")
    A(f"v_lshlrev_b32 v{vQOFF}, 3, v0")
    A(f"v_lshl_add_u32 v{vLDSK}, v0, 4, s{sT3}")
    masks16(vMSK, vX)
    A(f"v_lshrrev_b32 v{vX}, 4, v0")
    A(f"v_and_b32 v{vY}, 15, v0")
    A(f"v_lshl_add_u32 v{vX}, v{vX}, 3, v{vY}")
    A(f"v_lshlrev_b32 v{vX}, 4, v{vX}")
    A(f"s_mul_i32 s{sT1}, s3, 1056")
    A(f"s_add_u32 s{sT1}, s{sT1}, {LDS_PART}")
    A(f"v_add_u32 v{vSCR}, s{sT1}, v{vX}")
    A(f"s_lshl_b32 s{sT1}, s3, 9")
    A(f"s_add_u32 s{sT1}, s{sT1}, {LDS_QB}")
    A(f"v_lshl_add_u32 v{vQB}, v0, 3, s{sT1}")
    A(f"v_and_b32 v{vY}, 7, v0")
    A(f"v_lshl_add_u32 v{vQR}, v{vY}, 4, s{sT1}")
    A(f"v_lshlrev_b32 v{vX}, 2, v0")
    A(f"v_and_b32 v{vX}, 12, v{vX}")
    A(f"ds_write_b32 v{vX}, v{vZERO} offset:{LDS_CNT}") if False else None
    A(f"v_add_u32 v{vX}, {LDS_CNT}, v{vX}")
    A(f"ds_write_b32 v{vX}, v{vZERO}")
    A("s_waitcnt lgkmcnt(0)")
    A("s_barrier")
    A(f"s_lshl_b32 s{sT0}, s{sHEAD}, 2")
    A(f"buffer_load_dword v{vT}, v{vZERO}, {sr(sDBG,4)}, s{sT0} offen sc1")
    for part in range(3):
        static_loads(1, part)
    A("s_waitcnt vmcnt(48)")
    LAB("L_FLAGCHK")
    A(f"v_readfirstlane_b32 s{sT1}, v{vT}")
    NOP(2)
    A(f"s_cmp_lg_u32 s{sT1}, 0")
    A("s_cbranch_scc1 L_FLAGOK")
    A("s_sleep 2")
    A("s_sub_u32 s96, s96, 1")
    A("s_cmp_eq_u32 s96, 0")
    A("s_cbranch_scc1 L_END")
    A(f"buffer_load_dword v{vT}, v{vZERO}, {sr(sDBG,4)}, s{sT0} offen sc1")
    A("s_waitcnt vmcnt(0)")
    A("s_branch L_FLAGCHK")
    LAB("L_FLAGOK")
    TS(0, 1)
    ticket_atomic(vTICK2)
    ticket_atomic(vTICK)
    A(f"buffer_load_dwordx2 {vr(vQN,2)}, v{vQOFF}, {sr(sWS,4)}, s{sREG} offen offset:{Q_OFF} sc1")
    static_loads(1, 3)
    A(f"s_mov_b32 s{sQTAG}, 0")
    A(f"s_mov_b32 s{sLDPH}, 0")
    A(f"s_mov_b32 s{sLIM}, {NDYN}")
    A(f"s_add_u32 s{sTB}, s{sHOFF}, {NSTAT*8192}")
    A(f"s_mov_b32 s{sBOFF}, 0")
    A(f"s_mov_b32 s{sPROC}, 0")
    A("s_waitcnt vmcnt(16)")
    decode(vTICK2)
    loadK(RING, sNOFF); loadK(RING+16, sT3); loadV(RING+32, sNOFF); loadV(RING+48, sT3)
    A(f"s_mov_b32 s{sCUR}, s{sLDPH}")
    A("s_waitcnt vmcnt(12)")
    decode(vTICK)
    ticket_atomic(vTICK)
    A("s_branch L_SETUP")

    L.append(".p2align 6")
    LAB("L_LOOP")
    A("s_waitcnt vmcnt(12)")
    decode(vTICK)
    ticket_atomic(vTICK)
    A(f"s_cmp_lg_u32 s{sCUR}, s{sPROC}")
    A("s_cbranch_scc1 L_SWITCH")
    LAB("L_BODY")
    kdots(RING, vS0)
    ring_load(loadK, RING, sNOFF)
    A("s_waitcnt vmcnt(13)")
    kdots(RING+16, vS1)
    ring_load(loadK, RING+16, sT3)
    softmax_update()
    A("s_waitcnt vmcnt(13)")
    vmfma(RING+32, vP0)
    ring_load(loadV, RING+32, sNOFF)
    A("s_waitcnt vmcnt(13)")
    vmfma(RING+48, vP1)
    ring_load(loadV, RING+48, sT3)
    A(f"s_mov_b32 s{sCUR}, s{sLDPH}")
    A(f"s_cmp_eq_u32 s{sPEND}, 0")
    A("s_cbranch_scc1 L_LOOP")
    A(f"s_mov_b32 s{sPEND}, 1")
    LAB("L_DOSTAT")
    NOP(4)
    A(f"s_bitcmp1_b32 s{sPROC}, 0")
    A("s_cbranch_scc1 L_STAT1")
    statics(0)
    A("s_branch L_STATDONE")
    LAB("L_STAT1")
    statics(1)
    LAB("L_STATDONE")
    A(f"s_cmp_eq_u32 s{sPEND}, 1")
    A(f"s_mov_b32 s{sPEND}, 0")
    A("s_cbranch_scc1 L_LOOP")

    LAB("L_SWITCH")
    A(f"s_cmp_lg_u32 s{sPEND}, 0")
    A("s_cbranch_scc1 L_DOSTAT")
    NOP(8)
    A(f"v_add_f32_dpp v{vL}, v{vL}, v{vL} row_ror:8 {DPPM}")
    xrow_reduce("v_add_f32", vL, vY)
    A(f"s_and_b32 s{sT0}, s{sPROC}, 1")
    A(f"s_mul_i32 s{sT0}, s{sT0}, 4224")
    A(f"v_add_u32 v{vX}, s{sT0}, v{vSCR}")
    exec_set(0x00ff00ff00ff00ff)
    A(f"ds_write_b128 v{vX}, {vr(vACC,4)}")
    A(f"ds_write_b128 v{vX}, {vr(vACC+4,4)} offset:512")
    A("s_mov_b64 exec, 1")
    A(f"ds_write_b64 v{vX}, {vr(vM,2)} offset:1024")
    A(f"s_lshl_b32 s{sT1}, s{sPROC}, 2")
    A(f"s_add_u32 s{sT1}, s{sT1}, {LDS_CNT}")
    A(f"v_mov_b32 v{vX}, s{sT1}")
    A(f"v_mov_b32 v{vY}, 1")
    A("s_waitcnt lgkmcnt(0)")
    A(f"ds_add_rtn_u32 v{vY}, v{vX}, v{vY}")
    A("s_waitcnt lgkmcnt(0)")
    A(f"v_readfirstlane_b32 s{sT1}, v{vY}")
    exec_all()
    NOP(2)
    A(f"s_cmp_lg_u32 s{sT1}, 3")
    A("s_cbranch_scc1 L_NOPUB")
    A(f"s_add_u32 s{sT0}, s{sT0}, {LDS_PART}")
    A(f"v_mov_b32 v{vX}, s{sT0}")
    A(f"v_lshl_add_u32 v{vY}, v0, 4, s{sT0}")
    for w in range(4):
        A(f"ds_read_b64 {vr(vB0+2*w,2)}, v{vX} offset:{1056*w+1024}")
    for w in range(4):
        A(f"ds_read_b128 {vr(vQ+4*w,4)}, v{vY} offset:{1056*w}")
    A("s_waitcnt lgkmcnt(4)")
    A(f"v_max3_f32 v{vM}, v{vB0}, v{vB0+2}, v{vB0+4}")
    A(f"v_max_f32 v{vM}, v{vM}, v{vB0+6}")
    for w in range(4):
        A(f"v_sub_f32 v{vB0+2*w}, v{vB0+2*w}, v{vM}")
    for w in range(4):
        A(f"v_exp_f32 v{vB0+2*w}, v{vB0+2*w}")
    NOP(1)
    A(f"v_mul_f32 v{vL}, v{vB0}, v{vB0+1}")
    for w in range(1, 4):
        A(f"v_fmac_f32 v{vL}, v{vB0+2*w}, v{vB0+2*w+1}")
    A("s_waitcnt lgkmcnt(0)")
    for r in range(4):
        A(f"v_mul_f32 v{vACC+r}, v{vB0}, v{vQ+r}")
    for w in range(1, 4):
        for r in range(4):
            A(f"v_fmac_f32 v{vACC+r}, v{vB0+2*w}, v{vQ+4*w+r}")
    for r in range(4):
        A(f"v_min_u32 v{vACC+r}, -2, v{vACC+r}")
    A(f"v_min_u32 v{vM}, -2, v{vM}")
    A(f"v_min_u32 v{vL}, -2, v{vL}")
    A(f"s_mul_i32 s{sT0}, s{sPROC}, 15")
    A(f"s_add_u32 s{sT0}, s{sT0}, s{sC}")
    A(f"s_mul_i32 s{sT0}, s{sT0}, {PSLOT}")
    A(f"s_add_u32 s{sT0}, s{sT0}, s{sREG}")
    A(f"s_add_u32 s{sT0}, s{sT0}, {P_OFF}")
    A(f"v_lshlrev_b32 v{vX}, 4, v0")
    A(f"buffer_store_dwordx4 {vr(vACC,4)}, v{vX}, {sr(sWS,4)}, s{sT0} offen sc1")
    A("s_mov_b64 exec, 1")
    A(f"buffer_store_dwordx2 {vr(vM,2)}, v{vZERO}, {sr(sWS,4)}, s{sT0} offen offset:1024 sc1")
    exec_all()
    NOP(2)
    LAB("L_NOPUB")
    if DEBUG_TS:
        A(f"s_lshl_b32 s95, s{sPROC}, 3")
        A("s_add_u32 s95, s95, 12")
        TS(0, "s95")
    A(f"s_add_u32 s{sPROC}, s{sPROC}, 1")
    A(f"s_cmp_ge_u32 s{sPROC}, 4")
    A("s_cbranch_scc1 L_END")
    LAB("L_SETUP")
    A(f"s_cmp_eq_u32 s{sQTAG}, s{sPROC}")
    A("s_cbranch_scc1 L_QCHK")
    LAB("L_QSLOW")
    A(f"s_mov_b32 s{sQTAG}, -1")
    A(f"s_lshl_b32 s{sT1}, s{sPROC}, 9")
    A(f"s_add_u32 s{sT1}, s{sT1}, s{sREG}")
    A(f"buffer_load_dwordx2 {vr(vQN,2)}, v{vQOFF}, {sr(sWS,4)}, s{sT1} offen offset:{Q_OFF} sc1")
    A("s_waitcnt vmcnt(0)")
    LAB("L_QCHK")
    A(f"v_max_u32 v{vX}, v{vQN}, v{vQN+1}")
    A(f"v_cmp_eq_u32 vcc, -1, v{vX}")
    A("s_cbranch_vccz L_QOK")
    spin_guard("L_QSLOW")
    LAB("L_QOK")
    A(f"ds_write_b64 v{vQB}, {vr(vQN,2)}")
    A("s_waitcnt lgkmcnt(0)")
    for j in range(4):
        A(f"ds_read_b128 {vr(vQ+4*j,4)}, v{vQR} offset:{128*j}")
    for k in range(8):
        A(f"v_mov_b32 v{vACC+k}, 0")
    A(f"v_mov_b32 v{vL}, 0")
    A(f"v_mov_b32 v{vM}, {f32(-1e30)}")
    A("s_waitcnt lgkmcnt(0)")
    if DEBUG_TS:
        A(f"s_lshl_b32 s95, s{sPROC}, 3")
        A("s_add_u32 s95, s95, 8")
        TS(0, "s95")
    A(f"s_mov_b32 s{sPEND}, 2")
    A(f"s_cmp_lg_u32 s{sCUR}, s{sPROC}")
    A("s_cbranch_scc1 L_SWITCH")
    A("s_branch L_BODY")

sS = 2
sX, sWQ, sWO, sWG, sWU, sWD, sOUT = 40, 44, 56, 60, 64, 68, 80
sKK, sBX, sMYREG = 4, 5, 6
sA0, sA1, sA2, sA3 = 7, 8, 9, 10
sRINGB = 11
wM8, wM16 = 4, 8
wOFF8, wOFFG, wOFFQ, wPI8 = 1, 2, 3, 12
wGOFF, wML, wR2W, wXPK = 13, 14, 15, 16
wRW, wHR, wL16, wZOFF = 17, 18, 19, 20
wL4, wZERO, wC0, wQR = 21, 22, 23, 0
wB = 24
wT = 28
RES_V = 64
LDS_DOWN = 0
LDS_RING = 100352
NRING = 10
LDS_X = LDS_RING + 4*NRING*1024
LDS_RED2 = LDS_X + 3584
LDS_RED = LDS_RED2 + 14336

def wo_tile(rg, cg):
    return ar((rg*7+cg)*4, 4)
def gu_tile(t, m):
    i = t*2 + m
    if i < 8:
        return ar(224 + i*4, 4)
    return vr(RES_V + (i-8)*4, 4)

def check_sentinel(regs, t, label_retry, label_ok):
    regs = list(regs)
    A(f"v_max_u32 v{t}, v{regs[0]}, v{regs[1]}")
    rest = regs[2:]
    while len(rest) >= 2:
        A(f"v_max3_u32 v{t}, v{t}, v{rest[0]}, v{rest[1]}")
        rest = rest[2:]
    if rest:
        A(f"v_max_u32 v{t}, v{t}, v{rest[0]}")
    A(f"v_cmp_eq_u32 vcc, -1, v{t}")
    A(f"s_cbranch_vccz {label_ok}")
    spin_guard(label_retry)
    LAB(label_ok)

def wq_dma(i):
    t, h = i // 2, i % 2
    A(f"s_add_u32 m0, s{sRINGB}, {(i % NRING)*1024}")
    A(f"s_add_u32 s{sA0}, s{sA3}, {t*4*8192 + h*256}")
    A(f"buffer_load_dwordx4 v{wOFFQ}, {sr(sWQ,4)}, s{sA0} offen lds")

def wq_base():
    A(f"s_mul_i32 s{sA3}, s3, {112*8192}")
    A(f"s_lshl_b32 s{sA0}, s{sS}, 9")
    A(f"s_add_u32 s{sA3}, s{sA3}, s{sA0}")

def layernorm(xp0, xp1):
    t = wT
    A(f"v_add_u32 v{t+10}, s{sBX}, v{wL4}")
    A(f"v_add_u32 v{t+11}, s{sBX}, v{wXPK}")
    for k in range(3):
        A(f"ds_read2st64_b32 {vr(t+2*k,2)}, v{t+10} offset0:{2*k} offset1:{2*k+1}")
    A(f"ds_read_b32 v{t+6}, v{t+10} offset:1536")
    A(f"ds_read_b32 v{xp0}, v{t+11}")
    A(f"ds_read_b32 v{xp1}, v{t+11} offset:256")
    A("s_waitcnt lgkmcnt(2)")
    A(f"v_add_f32 v{t+8}, v{t}, v{t+1}")
    for k in range(2, 7):
        A(f"v_add_f32 v{t+8}, v{t+8}, v{t+k}")
    wave_reduce("v_add_f32", t+8, t+9)
    A(f"v_mul_f32 v{t+8}, {f32(1/448)}, v{t+8}")
    for k in range(7):
        A(f"v_sub_f32 v{t+k}, v{t+k}, v{t+8}")
    A(f"v_mul_f32 v{t+7}, v{t}, v{t}")
    for k in range(1, 7):
        A(f"v_fmac_f32 v{t+7}, v{t+k}, v{t+k}")
    wave_reduce("v_add_f32", t+7, t+9)
    A(f"v_mul_f32 v{t+7}, {f32(1/448)}, v{t+7}")
    bf16_round(t+8, t+8)
    bf16_round(t+7, t+7)
    A(f"v_add_f32 v{t+7}, {f32(1e-5)}, v{t+7}")
    bf16_round(t+7, t+7)
    A(f"v_sqrt_f32 v{t+7}, v{t+7}")
    NOP(1)
    bf16_round(t+7, t+7)
    A(f"v_rcp_f32 v{t+7}, v{t+7}")
    A("s_waitcnt lgkmcnt(0)")
    for x in (xp0, xp1):
        A(f"v_sub_f32 v{x}, v{x}, v{t+8}")
    for x in (xp0, xp1):
        bf16_round(x, x)
    for x in (xp0, xp1):
        A(f"v_mul_f32 v{x}, v{x}, v{t+7}")
    for x in (xp0, xp1):
        A(f"v_cvt_pk_bf16_f32 v{x}, v{x}, v{x}")
    NOP(1)

def red_write(acc0, acc1):
    NOP(8)
    exec_set(0x00ff00ff00ff00ff)
    for m, acc in ((0, acc0), (1, acc1)):
        for r in range(4):
            A(f"ds_write_b32 v{wRW}, v{acc+r} offset:{m*2048 + r*128}")
    exec_all()
    A("s_waitcnt lgkmcnt(0)")
    A("s_barrier")

def gather_vec(off, tag):
    t = wT
    exec_set((1 << 56) - 1)
    A(f"s_sub_u32 s{sA1}, s{sKK}, 2")
    A(f"s_mul_i32 s{sA1}, s{sA1}, 1792")
    A(f"s_add_u32 s{sA1}, s{sA1}, {off}")
    A(f"v_add_u32 v{t+34}, s{sBX}, v{wPI8}")
    A(f"ds_read_b64 {vr(t+32,2)}, v{t+34} offset:{0}")
    LAB(f"L_G{tag}")
    for s in range(16):
        A(f"s_add_u32 s{sA0}, s{sA1}, {s*REGION}")
        A(f"buffer_load_dwordx2 {vr(t+2*s,2)}, v{wPI8}, {sr(sWS,4)}, s{sA0} offen offset:0 sc1")
    A("s_waitcnt vmcnt(0)")
    check_sentinel(range(t, t+32), t+35, f"L_G{tag}", f"L_G{tag}OK")
    for s in range(1, 16):
        A(f"v_add_f32 v{t}, v{t}, v{t+2*s}")
        A(f"v_add_f32 v{t+1}, v{t+1}, v{t+2*s+1}")
    bf16_round(t, t)
    bf16_round(t+1, t+1)
    A("s_waitcnt lgkmcnt(0)")
    A(f"v_add_f32 v{t}, v{t}, v{t+32}")
    A(f"v_add_f32 v{t+1}, v{t+1}, v{t+33}")
    bf16_round(t, t)
    bf16_round(t+1, t+1)

def bcast8(dst, src, u):
    A(f"v_mov_b32_dpp v{dst}, v{src} row_newbcast:{u} row_mask:0xf bank_mask:0x3")
    A(f"v_mov_b32_dpp v{dst}, v{src} row_newbcast:{8+u} row_mask:0xf bank_mask:0xc")

def q_publish(done):
    t = wT
    A("s_cmp_ge_u32 s3, 2")
    A(f"s_cbranch_scc1 {done}")
    A(f"s_lshl_b32 s{sA0}, s3, 11")
    A(f"s_add_u32 s{sA0}, s{sA0}, {LDS_RED}")
    A(f"v_lshl_add_u32 v{t+8}, v0, 5, s{sA0}")
    A(f"ds_read_b128 {vr(t,4)}, v{t+8}")
    A(f"ds_read_b128 {vr(t+4,4)}, v{t+8} offset:16")
    A(f"s_lshl_b32 s{sA1}, s{sKK}, 9")
    A(f"s_add_u32 s{sA1}, s{sA1}, s{sMYREG}")
    A(f"s_lshl_b32 s{sA0}, s3, 8")
    A(f"s_add_u32 s{sA1}, s{sA1}, s{sA0}")
    A(f"v_lshlrev_b32 v{t+9}, 2, v0")
    A("s_waitcnt lgkmcnt(0)")
    for q in range(2):
        b = t + 4*q
        A(f"v_add_f32 v{b}, v{b}, v{b+1}")
        A(f"v_add_f32 v{b+2}, v{b+2}, v{b+3}")
        A(f"v_add_f32 v{b}, v{b}, v{b+2}")
    A(f"v_cvt_pk_bf16_f32 v{t}, v{t}, v{t+4}")
    A(f"v_min_u32 v{t}, -2, v{t}")
    A(f"buffer_store_dword v{t}, v{t+9}, {sr(sWS,4)}, s{sA1} offen offset:{Q_OFF} sc1")
    LAB(done)

def service():
    LAB("L_SERVICE")
    TS(0, 0)
    t = wT
    srd(sX, 16, 1792)
    srd(sWQ, 22, 448*4096*2)
    srd(sWO, 24, 448*4096*2)
    srd(sWG, 28, 448*1792*2)
    srd(sWU, 30, 448*1792*2)
    srd(sWD, 32, 448*1792*2)
    srd(sOUT, 34, 1792)
    A(f"s_mul_i32 s{sMYREG}, s{sS}, {REGION}")
    G, N, U, E8 = t, t+1, t+2, t+3
    A(f"v_lshrrev_b32 v{G}, 4, v0")
    A(f"v_and_b32 v{N}, 15, v0")
    A(f"v_and_b32 v{U}, 7, v0")
    A(f"v_lshrrev_b32 v{E8}, 3, v0")
    A(f"v_lshlrev_b32 v{t+4}, 4, v{N}")
    A(f"s_movk_i32 s{sA0}, 0x2000")
    A(f"v_mad_u32_u24 v{wOFFQ}, v{G}, s{sA0}, v{t+4}")
    A(f"s_movk_i32 s{sA0}, 3584")
    A(f"v_mad_u32_u24 v{wOFFG}, v{G}, s{sA0}, v{t+4}")
    A(f"v_lshlrev_b32 v{t+4}, 4, v{U}")
    A(f"s_movk_i32 s{sA0}, 896")
    A(f"v_mad_u32_u24 v{wOFF8}, v{E8}, s{sA0}, v{t+4}")
    A(f"s_mul_i32 s{sRINGB}, s3, {NRING*1024}")
    A(f"s_add_u32 s{sRINGB}, s{sRINGB}, {LDS_RING}")
    wq_base()
    for i in range(56):
        A(f"s_add_u32 s{sA0}, s{sA3}, {(i//2)*4*8192 + (i%2)*256}")
        A(f"buffer_load_dwordx4 {ar(4*i,4)}, v{wOFFQ}, {sr(sWQ,4)}, s{sA0} offen")
    A(f"s_mul_i32 s{sA0}, s3, 56")
    A(f"v_add_u32 v{t+4}, s{sA0}, v0")
    A(f"v_lshlrev_b32 v{wPI8}, 3, v{t+4}")
    A(f"v_lshlrev_b32 v{t+4}, 1, v{t+4}")
    A(f"v_and_b32 v{t+5}, 0xffffffe0, v{t+4}")
    A(f"v_and_b32 v{t+6}, 3, v{t+4}")
    A(f"v_lshl_add_u32 v{t+5}, v{t+6}, 3, v{t+5}")
    A(f"v_bfe_u32 v{t+6}, v{t+4}, 2, 3")
    A(f"v_add_u32 v{t+5}, v{t+5}, v{t+6}")
    A(f"v_lshlrev_b32 v{wC0}, 1, v{t+5}")
    exec_set((1 << 56) - 1)
    for b in range(2):
        for i in range(2):
            A(f"buffer_load_ushort v{t+8+2*b+i}, v{wC0}, {sr(sX,4)}, 0 offen offset:{b*896+16*i}")
    exec_all()
    for i in range(4):
        A(f"v_mov_b32 v{t+12+i}, -1")
    A(f"v_lshlrev_b32 v{wL16}, 4, v0")
    A(f"s_mul_i32 s{sA1}, s3, {CLEAR_PER_WAVE*1024}")
    A(f"s_add_u32 s{sA1}, s{sA1}, s{sMYREG}")
    for i in range(CLEAR_PER_WAVE):
        A(f"s_add_u32 s{sA0}, s{sA1}, {i*1024}")
        A(f"buffer_store_dwordx4 {vr(t+12,4)}, v{wL16}, {sr(sWS,4)}, s{sA0} offen sc1")
    masks8(wM8, t+16)
    masks16(wM16, t+16)
    A(f"v_mov_b32 v{wZERO}, 0")
    A(f"v_lshlrev_b32 v{wL4}, 2, v0")
    A(f"v_add_u32 v{wL4}, {LDS_X}, v{wL4}")
    A(f"v_lshrrev_b32 v{t+4}, 2, v{U}")
    A(f"v_lshlrev_b32 v{t+4}, 5, v{t+4}")
    A(f"v_lshl_add_u32 v{t+4}, v{E8}, 2, v{t+4}")
    A(f"v_and_b32 v{t+5}, 3, v0")
    A(f"v_add_u32 v{t+4}, v{t+4}, v{t+5}")
    A(f"s_lshl_b32 s{sA0}, s3, 6")
    A(f"v_add_u32 v{t+4}, s{sA0}, v{t+4}")
    A(f"v_lshlrev_b32 v{wGOFF}, 2, v{t+4}")
    A(f"v_min_u32 v{t+4}, 14, v{N}")
    A(f"v_mul_u32_u24 v{t+4}, {PSLOT}, v{t+4}")
    A(f"v_add_u32 v{wML}, 1024, v{t+4}")
    A(f"v_lshrrev_b32 v{t+4}, 1, v{G}")
    A(f"s_lshl_b32 s{sA0}, s3, 1")
    A(f"v_add_u32 v{t+4}, s{sA0}, v{t+4}")
    A(f"v_mul_u32_u24 v{t+4}, 1792, v{t+4}")
    A(f"v_and_b32 v{t+5}, 1, v{G}")
    A(f"v_lshlrev_b32 v{t+5}, 7, v{t+5}")
    A(f"v_lshl_add_u32 v{t+5}, v{U}, 4, v{t+5}")
    A(f"v_add_u32 v{t+4}, v{t+4}, v{t+5}")
    A(f"v_add_u32 v{wR2W}, {LDS_RED2}, v{t+4}")
    A(f"s_lshl_b32 s{sA0}, s3, 9")
    A(f"v_add_u32 v{wZOFF}, s{sA0}, v{t+5}")
    A(f"s_mul_i32 s{sA0}, s3, 112")
    A(f"v_lshl_add_u32 v{t+4}, v{N}, 2, v{G}")
    A(f"v_add_u32 v{t+4}, s{sA0}, v{t+4}")
    A(f"v_and_b32 v{t+5}, 0xffffffe0, v{t+4}")
    A(f"v_and_b32 v{t+6}, 7, v{t+4}")
    A(f"v_lshl_add_u32 v{t+5}, v{t+6}, 2, v{t+5}")
    A(f"v_bfe_u32 v{t+6}, v{t+4}, 3, 2")
    A(f"v_add_u32 v{t+5}, v{t+5}, v{t+6}")
    A(f"v_lshlrev_b32 v{t+5}, 2, v{t+5}")
    A(f"v_add_u32 v{wXPK}, {LDS_X}, v{t+5}")
    A(f"v_lshl_add_u32 v{t+4}, v{G}, 5, v{N}")
    A(f"v_lshlrev_b32 v{t+4}, 4, v{t+4}")
    A(f"s_lshl_b32 s{sA0}, s3, 2")
    A(f"s_add_u32 s{sA0}, s{sA0}, {LDS_RED}")
    A(f"v_add_u32 v{wRW}, s{sA0}, v{t+4}")
    A(f"v_lshl_add_u32 v{t+4}, v{U}, 3, v{E8}")
    A(f"v_lshlrev_b32 v{t+4}, 4, v{t+4}")
    A(f"v_add_u32 v{wHR}, {LDS_RED}, v{t+4}")
    A("s_waitcnt vmcnt(0)")
    for i in range(4):
        A(f"v_lshlrev_b32 v{t+8+i}, 16, v{t+8+i}")
    A(f"v_add_u32 v{wPI8}, {LDS_X}, v{wPI8}")
    exec_set((1 << 56) - 1)
    A(f"ds_write_b64 v{wPI8}, {vr(t+8,2)}")
    A(f"ds_write_b64 v{wPI8}, {vr(t+10,2)} offset:1792")
    exec_all()
    A(f"v_subrev_u32 v{wPI8}, {LDS_X}, v{wPI8}")
    A("s_waitcnt lgkmcnt(0)")
    A("s_barrier")
    A("s_cmp_lg_u32 s3, 0")
    A("s_cbranch_scc1 L_SVNOFLAG")
    A(f"s_lshl_b32 s{sA0}, s{sS}, 2")
    A(f"v_mov_b32 v{t}, 1")
    A("s_mov_b64 exec, 1")
    A(f"buffer_store_dword v{t}, v{wZERO}, {sr(sDBG,4)}, s{sA0} offen sc1")
    exec_all()
    LAB("L_SVNOFLAG")
    A(f"s_mov_b32 s{sKK}, 0")
    XP = t + 12
    AG, AU = t+16, t+20
    LAB("L_SVQ0")
    A(f"s_mul_i32 s{sBX}, s{sKK}, 1792")
    if DEBUG_TS:
        A(f"s_lshl_b32 s95, s{sKK}, 5")
        A("s_add_u32 s95, s95, 16")
        TS(0, "s95")
    layernorm(XP, XP+1)
    for tt in range(28):
        bb = (wB, t+24)[tt % 2]
        for j in range(4):
            A(f"v_and_b32_dpp v{bb+j}, v{XP+tt//16}, v{wM16+j} row_newbcast:{tt%16} {DPPM}")
        NOP(2)
        for h, acc in ((0, AG), (1, AU)):
            c = "0" if tt == 0 else vr(acc, 4)
            A(f"v_mfma_f32_16x16x32_bf16 {vr(acc,4)}, {ar(8*tt+4*h,4)}, {vr(bb,4)}, {c}")
    red_write(AG, AU)
    q_publish("L_SVQ0DONE")
    if DEBUG_TS:
        A(f"s_lshl_b32 s95, s{sKK}, 5")
        A("s_add_u32 s95, s95, 20")
        TS(0, "s95")
    A("s_waitcnt lgkmcnt(0)")
    A("s_barrier")
    A(f"s_add_u32 s{sKK}, s{sKK}, 1")
    A(f"s_cmp_lt_u32 s{sKK}, 2")
    A("s_cbranch_scc1 L_SVQ0")
    for i in range(NRING):
        wq_dma(i)
    A(f"s_lshl_b32 s{sA1}, s{sS}, 8")
    A(f"s_lshl_b32 s{sA0}, s3, 6")
    A(f"s_add_u32 s{sA1}, s{sA1}, s{sA0}")
    A(f"s_mul_i32 s{sA1}, s{sA1}, 896")
    for rg in range(8):
        A(f"s_add_u32 s{sA0}, s{sA1}, {rg*8*896}")
        for cg in range(7):
            A(f"buffer_load_dwordx4 {wo_tile(rg,cg)}, v{wOFF8}, {sr(sWO,4)}, s{sA0} offen offset:{cg*128} nt")
    A(f"s_mul_i32 s{sA1}, s3, {112*3584}")
    A(f"s_mul_i32 s{sA0}, s{sS}, 224")
    A(f"s_add_u32 s{sA1}, s{sA1}, s{sA0}")
    for tt in range(28):
        A(f"s_add_u32 s{sA0}, s{sA1}, {tt*4*3584}")
        A(f"buffer_load_dwordx4 {gu_tile(tt,0)}, v{wOFFG}, {sr(sWG,4)}, s{sA0} offen nt")
        A(f"buffer_load_dwordx4 {gu_tile(tt,1)}, v{wOFFG}, {sr(sWU,4)}, s{sA0} offen nt")
    A(f"s_mul_i32 s{sA1}, s{sS}, {112*896}")
    A(f"s_lshl_b32 s{sA0}, s3, 8")
    A(f"s_add_u32 s{sA1}, s{sA1}, s{sA0}")
    A(f"s_lshl_b32 s{sA2}, s3, 11")
    A("s_cmp_eq_u32 s3, 3")
    A("s_cbranch_scc1 L_SVD3")
    for rg in range(14):
        A(f"s_add_u32 m0, s{sA2}, {(rg*7+1)*1024}")
        A(f"s_add_u32 s{sA0}, s{sA1}, {rg*8*896+128}")
        A(f"buffer_load_dwordx4 v{wOFF8}, {sr(sWD,4)}, s{sA0} offen nt lds")
    LAB("L_SVD3")
    for rg in range(14):
        A(f"s_add_u32 m0, s{sA2}, {(rg*7)*1024}")
        A(f"s_add_u32 s{sA0}, s{sA1}, {rg*8*896}")
        A(f"buffer_load_dwordx4 v{wOFF8}, {sr(sWD,4)}, s{sA0} offen nt lds")
    A(f"v_and_b32 v{t+1}, 15, v0")
    A(f"v_lshlrev_b32 v{t+1}, 2, v{t+1}")
    LAB("L_SVFL")
    A(f"buffer_load_dword v{t}, v{t+1}, {sr(sDBG,4)}, 0 offen sc1")
    A("s_waitcnt vmcnt(0)")
    A(f"v_cmp_eq_u32 vcc, 0, v{t}")
    A("s_cbranch_vccz L_SVLOOP")
    spin_guard("L_SVFL")

    LAB("L_SVLOOP")
    A(f"s_and_b32 s{sBX}, s{sKK}, 1")
    A(f"s_mul_i32 s{sBX}, s{sBX}, 1792")
    A(f"s_sub_u32 s{sA1}, s{sKK}, 2")
    A(f"s_mul_i32 s{sA1}, s{sA1}, {15*PSLOT}")
    A(f"s_add_u32 s{sA1}, s{sA1}, s{sMYREG}")
    A(f"s_add_u32 s{sA1}, s{sA1}, {P_OFF}")
    LAB("L_WG")
    A(f"buffer_load_dwordx2 {vr(t+16,2)}, v{wML}, {sr(sWS,4)}, s{sA1} offen sc1")
    for c in range(15):
        A(f"s_add_u32 s{sA0}, s{sA1}, {c*PSLOT}")
        A(f"buffer_load_dword v{t+c}, v{wGOFF}, {sr(sWS,4)}, s{sA0} offen sc1")
    A("s_waitcnt vmcnt(0)")
    check_sentinel(list(range(t, t+15)) + [t+16, t+17], t+18, "L_WG", "L_WGOK")
    if DEBUG_TS:
        A(f"s_lshl_b32 s95, s{sKK}, 5")
        TS(0, "s95")
    A(f"v_mov_b32 v{t+18}, v{t+16}")
    row_reduce("v_max_f32", t+18)
    A(f"v_sub_f32 v{t+16}, v{t+16}, v{t+18}")
    A(f"v_exp_f32 v{t+16}, v{t+16}")
    A(f"v_and_b32 v{t+19}, 15, v0")
    A(f"v_cmp_gt_u32 vcc, 15, v{t+19}")
    A(f"v_mul_f32 v{t+17}, v{t+16}, v{t+17}")
    NOP(1)
    A(f"v_cndmask_b32 v{t+17}, 0, v{t+17}, vcc")
    row_reduce("v_add_f32", t+17)
    A(f"v_rcp_f32 v{t+17}, v{t+17}")
    A(f"v_mov_b32 v{t+18}, 0")
    A(f"v_mul_f32 v{t+16}, v{t+16}, v{t+17}")
    NOP(2)
    for c in range(15):
        A(f"v_fmac_f32_dpp v{t+18}, v{t+16}, v{t+c} row_newbcast:{c} {DPPM}")
    A(f"v_cvt_pk_bf16_f32 v{t+30}, v{t+18}, v{t+18}")
    NOP(2)
    for rg in range(8):
        bt = t + 28 + (rg % 2)
        bb = (wB, t+32)[rg % 2]
        bcast8(bt, t+30, rg)
        for j in range(4):
            A(f"v_and_b32 v{bb+j}, v{bt}, v{wM8+j}")
        NOP(2)
        for cg in range(7):
            c = "0" if rg == 0 else vr(t+4*cg, 4)
            A(f"v_mfma_f32_16x16x32_bf16 {vr(t+4*cg,4)}, {wo_tile(rg,cg)}, {vr(bb,4)}, {c}")
    NOP(8)
    exec_set(0xff00ff0000ff00ff)
    for cg in range(7):
        A(f"ds_write_b128 v{wR2W}, {vr(t+4*cg,4)} offset:{cg*256}")
    exec_all()
    A("s_waitcnt lgkmcnt(0)")
    A("s_barrier")
    exec_set((1 << 56) - 1)
    A(f"v_add_u32 v{t+16}, {LDS_RED2}, v{wPI8}")
    for p in range(8):
        A(f"ds_read_b64 {vr(t+2*p,2)}, v{t+16} offset:{p*1792}")
    A(f"s_sub_u32 s{sA1}, s{sKK}, 2")
    A(f"s_mul_i32 s{sA1}, s{sA1}, 1792")
    A(f"s_add_u32 s{sA1}, s{sA1}, s{sMYREG}")
    A("s_waitcnt lgkmcnt(0)")
    for p in range(1, 8):
        A(f"v_add_f32 v{t}, v{t}, v{t+2*p}")
        A(f"v_add_f32 v{t+1}, v{t+1}, v{t+2*p+1}")
    A(f"v_min_u32 v{t}, -2, v{t}")
    A(f"v_min_u32 v{t+1}, -2, v{t+1}")
    A(f"buffer_store_dwordx2 {vr(t,2)}, v{wPI8}, {sr(sWS,4)}, s{sA1} offen offset:{Y_OFF} sc1")
    exec_all()
    if DEBUG_TS:
        A(f"s_lshl_b32 s95, s{sKK}, 5")
        A("s_add_u32 s95, s95, 4")
        TS(0, "s95")
    A(f"s_add_u32 s{sBX}, s{sBX}, {LDS_X}")
    gather_vec(Y_OFF, "Y")
    A(f"ds_write_b64 v{t+34}, {vr(t,2)}")
    exec_all()
    A(f"s_sub_u32 s{sBX}, s{sBX}, {LDS_X}")
    A("s_waitcnt lgkmcnt(0)")
    A("s_barrier")
    if DEBUG_TS:
        A(f"s_lshl_b32 s95, s{sKK}, 5")
        A("s_add_u32 s95, s95, 8")
        TS(0, "s95")
    XP = t + 12
    layernorm(XP, XP+1)
    AG, AU = t+16, t+20
    for tt in range(28):
        bb = (wB, t+24)[tt % 2]
        for j in range(4):
            A(f"v_and_b32_dpp v{bb+j}, v{XP+tt//16}, v{wM16+j} row_newbcast:{tt%16} {DPPM}")
        NOP(2)
        for m, acc in ((0, AG), (1, AU)):
            c = "0" if tt == 0 else vr(acc, 4)
            A(f"v_mfma_f32_16x16x32_bf16 {vr(acc,4)}, {gu_tile(tt,m)}, {vr(bb,4)}, {c}")
    red_write(AG, AU)
    for k in range(2):
        for m in range(2):
            A(f"ds_read_b128 {vr(t+4*(2*k+m),4)}, v{wHR} offset:{m*2048 + k*1024}")
    DT = t + 20
    A(f"s_lshl_b32 s{sA0}, s3, 11")
    A(f"v_add_u32 v{t+16}, s{sA0}, v{wL16}")
    A(f"v_add_u32 v{t+17}, {56*1024}, v{t+16}")
    def dread(i):
        rg, ci = i // 2, i % 2
        if rg < 8:
            A(f"ds_read_b128 {vr(DT+4*(i%4),4)}, v{t+16} offset:{(rg*7+ci)*1024}")
        else:
            A(f"ds_read_b128 {vr(DT+4*(i%4),4)}, v{t+17} offset:{((rg-8)*7+ci)*1024}")
    for i in range(4):
        dread(i)
    A("s_waitcnt lgkmcnt(4)")
    for q in range(4):
        b = t + 4*q
        A(f"v_add_f32 v{b}, v{b}, v{b+1}")
        A(f"v_add_f32 v{b+2}, v{b+2}, v{b+3}")
    for q in range(4):
        b = t + 4*q
        A(f"v_add_f32 v{b}, v{b}, v{b+2}")
    for q in range(4):
        bf16_round(t+4*q, t+4*q)
    for k in range(2):
        A(f"v_mul_f32 v{t+8*k}, {f32(-LOG2E)}, v{t+8*k}")
    for k in range(2):
        A(f"v_exp_f32 v{t+8*k}, v{t+8*k}")
    NOP(1)
    for k in range(2):
        A(f"v_add_f32 v{t+8*k}, 1.0, v{t+8*k}")
    for k in range(2):
        A(f"v_rcp_f32 v{t+8*k}, v{t+8*k}")
    NOP(1)
    for k in range(2):
        bf16_round(t+8*k, t+8*k)
    for k in range(2):
        A(f"v_mul_f32 v{t+8*k}, v{t+8*k}, v{t+8*k+4}")
    HP = (t+1, t+2)
    for k in range(2):
        A(f"v_cvt_pk_bf16_f32 v{HP[k]}, v{t+8*k}, v{t+8*k}")
    NOP(2)
    AD = (t+4, t+8)
    for rg in range(14):
        bt = t + 3
        bb = (wB, t+12)[rg % 2]
        bcast8(bt, HP[rg // 8], rg % 8)
        for j in range(4):
            A(f"v_and_b32 v{bb+j}, v{bt}, v{wM8+j}")
        for ci in range(2):
            i = rg*2 + ci
            rem = min(27 - i, 3)
            A(f"s_waitcnt lgkmcnt({rem})")
            if ci == 0:
                NOP(1)
            c = "0" if rg == 0 else vr(AD[ci], 4)
            A(f"v_mfma_f32_16x16x32_bf16 {vr(AD[ci],4)}, {vr(DT+4*(i%4),4)}, {vr(bb,4)}, {c}")
            if i + 4 < 28:
                dread(i + 4)
    NOP(8)
    for k in range(8):
        A(f"v_mov_b32_dpp v{t+12+k}, v{t+4+k} row_ror:8 {DPPM}")
    NOP(1)
    for k in range(8):
        A(f"v_permlane32_swap_b32 v{t+12+k}, v{t+20+k}")
    NOP(1)
    for k in range(8):
        A(f"v_add_f32 v{t+4+k}, v{t+4+k}, v{t+20+k}")
    for k in range(8):
        A(f"v_min_u32 v{t+4+k}, -2, v{t+4+k}")
    A(f"s_sub_u32 s{sA1}, s{sKK}, 2")
    A(f"s_mul_i32 s{sA1}, s{sA1}, 1792")
    A(f"s_add_u32 s{sA1}, s{sA1}, s{sMYREG}")
    A(f"s_add_u32 s{sA1}, s{sA1}, {Z_OFF}")
    A("s_cmp_eq_u32 s3, 3")
    A(f"s_cselect_b32 s{sA2}, 0x80000000, s{sA1}")
    exec_set(0x00ff00ff)
    A(f"buffer_store_dwordx4 {vr(t+4,4)}, v{wZOFF}, {sr(sWS,4)}, s{sA1} offen sc1")
    A(f"buffer_store_dwordx4 {vr(t+8,4)}, v{wZOFF}, {sr(sWS,4)}, s{sA2} offen offset:256 sc1")
    exec_all()
    if DEBUG_TS:
        A(f"s_lshl_b32 s95, s{sKK}, 5")
        A("s_add_u32 s95, s95, 12")
        TS(0, "s95")
    A(f"s_cmp_lt_u32 s{sKK}, 4")
    A("s_cbranch_scc1 L_SVZ")
    A(f"s_cmp_lg_u32 s{sS}, 0")
    A("s_cbranch_scc1 L_SVNEXT")
    LAB("L_SVZ")
    NOP(2)
    A(f"s_add_u32 s{sBX}, s{sBX}, {LDS_X}")
    gather_vec(Z_OFF, "Z")
    A(f"s_sub_u32 s{sBX}, s{sBX}, {LDS_X}")
    A(f"s_cmp_lt_u32 s{sKK}, 4")
    A("s_cbranch_scc1 L_SVZ2")
    A(f"s_lshr_b32 s{sA0}, s{sBX}, 1")
    A(f"buffer_store_short_d16_hi v{t}, v{wC0}, {sr(sOUT,4)}, s{sA0} offen")
    A(f"buffer_store_short_d16_hi v{t+1}, v{wC0}, {sr(sOUT,4)}, s{sA0} offen offset:16")
    exec_all()
    if DEBUG_TS:
        A(f"s_lshl_b32 s95, s{sKK}, 5")
        A("s_add_u32 s95, s95, 16")
        TS(0, "s95")
    A("s_branch L_SVNEXT")
    LAB("L_SVZ2")
    A(f"ds_write_b64 v{t+34}, {vr(t,2)}")
    exec_all()
    A("s_waitcnt lgkmcnt(0)")
    LAB("L_SVQ")
    A("s_barrier")
    if DEBUG_TS:
        A(f"s_lshl_b32 s95, s{sKK}, 5")
        A("s_add_u32 s95, s95, 16")
        TS(0, "s95")
    layernorm(XP, XP+1)
    wq_base()
    A(f"v_add_u32 v{t+14}, s{sRINGB}, v{wL16}")
    QT = t + 28
    for tt in range(28):
        bb = (wB, t+24)[tt % 2]
        for h in range(2):
            i = tt*2 + h
            outstanding_after = min(55 - i, NRING - 1 - h)
            if h == 0:
                A(f"s_waitcnt vmcnt({max(min(55 - i - 1, NRING - 2), 0)})")
            A(f"ds_read_b128 {vr(QT+4*h,4)}, v{t+14} offset:{(i % NRING)*1024}")
        for j in range(4):
            A(f"v_and_b32_dpp v{bb+j}, v{XP+tt//16}, v{wM16+j} row_newbcast:{tt%16} {DPPM}")
        A("s_waitcnt lgkmcnt(0)")
        for h in range(2):
            i = tt*2 + h
            if i + NRING < 56:
                wq_dma(i + NRING)
        NOP(1)
        for h, acc in ((0, AG), (1, AU)):
            c = "0" if tt == 0 else vr(acc, 4)
            A(f"v_mfma_f32_16x16x32_bf16 {vr(acc,4)}, {vr(QT+4*h,4)}, {vr(bb,4)}, {c}")
        NOP(4)
    for i in range(NRING):
        wq_dma(i)
    red_write(AG, AU)
    q_publish("L_SVQDONE")
    if DEBUG_TS:
        A(f"s_lshl_b32 s95, s{sKK}, 5")
        A("s_add_u32 s95, s95, 20")
        TS(0, "s95")
    LAB("L_SVNEXT")
    A(f"s_add_u32 s{sKK}, s{sKK}, 1")
    A(f"s_cmp_lt_u32 s{sKK}, 6")
    A("s_cbranch_scc1 L_SVLOOP")

def main():
    global DEBUG_TS
    out = f"cdna_kernels/{NAME}.s"
    for a in sys.argv[1:]:
        if a == "--ts":
            DEBUG_TS = True
        elif a.startswith("--mall="):
            globals()["MALLMASK"] = int(a[7:])
        elif a == "--statdef":
            globals()["STATPOL"] = ""
        else:
            out = a
    header()
    stream()
    service()
    footer()
    open(out, "w").write("\n".join(x for x in L if x is not None) + "\n")
    print("wrote", out, len(L), "lines")

main()
```

```python
import struct, sys

NAME = "interleave_layers__mha_block_cached__glu_gated_glu__decode"
DEBUG_TS = False
SPIN_MAX = 400000
STATPOL = "nt"
CODEPF = 3
PROBE = False
WQPOL = ""
NOCOMP = False
MLPOLL = False
TSLITE = False
STATQ = 16
MALLMASK = None

def f32(x):
    return "0x%08x" % struct.unpack("<I", struct.pack("<f", x))[0]

LOG2E = 1.4426950408889634
REGION = 98304
Q_OFF, Y_OFF, Z_OFF, P_OFF = 256, 2304, 9472, 16640
PSLOT = 1152
CLEAR_PER_WAVE = 21
NDYN = 784
NSTAT = 240
TS_OFF = 0x200000

L = []
def A(s):
    L.append("    " + s)
def LAB(s):
    L.append(s + ":")
def NOP(n):
    if n > 0:
        A(f"s_nop {n-1}")
def vr(a, n):
    return f"v[{a}:{a+n-1}]"
def ar(a, n):
    return f"a[{a}:{a+n-1}]"
def sr(a, n):
    return f"s[{a}:{a+n-1}]"
DPPM = "row_mask:0xf bank_mask:0xf"

def srd(dst, ptr, nbytes):
    A(f"s_mov_b32 s{dst}, s{ptr}")
    A(f"s_and_b32 s{dst+1}, s{ptr+1}, 0xffff")
    A(f"s_mov_b32 s{dst+2}, {nbytes}")
    A(f"s_mov_b32 s{dst+3}, 0x20000")

def exec_set(val):
    lo, hi = val & 0xffffffff, val >> 32
    A(f"s_mov_b32 exec_lo, 0x{lo:x}")
    A(f"s_mov_b32 exec_hi, 0x{hi:x}")
def exec_all():
    A("s_mov_b64 exec, -1")

def xrow_reduce(op, x, t):
    A(f"v_mov_b32 v{t}, v{x}")
    NOP(2)
    A(f"v_permlane16_swap_b32 v{x}, v{t}")
    NOP(1)
    A(f"{op} v{x}, v{x}, v{t}")
    A(f"v_mov_b32 v{t}, v{x}")
    NOP(2)
    A(f"v_permlane32_swap_b32 v{x}, v{t}")
    NOP(1)
    A(f"{op} v{x}, v{x}, v{t}")

def row_reduce(op, x):
    for ctl in ("quad_perm:[1,0,3,2]", "quad_perm:[2,3,0,1]", "row_half_mirror", "row_mirror"):
        NOP(2)
        A(f"{op}_dpp v{x}, v{x}, v{x} {ctl} {DPPM}")

def wave_reduce(op, x, t):
    row_reduce(op, x)
    xrow_reduce(op, x, t)

def bf16_round(dst, src):
    A(f"v_cvt_pk_bf16_f32 v{dst}, v{src}, v{src}")
    A(f"v_and_b32 v{dst}, 0xffff0000, v{dst}")

ts_id = [0]
def TS(idx_sgpr_or_const, slot, lite=False):
    if not DEBUG_TS or (TSLITE and not lite):
        return
    A("s_memrealtime s[98:99]")
    A("s_waitcnt lgkmcnt(0)")
    A("v_mov_b32 v62, s98")
    A(f"s_add_u32 s98, s97, {slot*4}" if isinstance(slot, int) else f"s_add_u32 s98, s97, {slot}")
    A("v_mov_b32 v63, 0")
    A("s_mov_b64 s[100:101], exec")
    A("s_mov_b64 exec, 1")
    A("buffer_store_dword v62, v63, s[48:51], s98 offen")
    A("s_mov_b64 exec, s[100:101]")

def header():
    L.append("; Kernarg: 0 A_x, 8 A_k_cache, 16 A_v_cache, 24 A_wq, 32 A_wo, 40 B_x, 48 B_w_gate, 56 B_w_up,")
    L.append("; @launch grid=(256,1,1) block=(256,1,1) lds=163840")
    L.append('.amdgcn_target "amdgcn-amd-amdhsa--gfx950"')
    L.append(".text")
    L.append(f".globl {NAME}_kernel")
    L.append(".p2align 8")
    L.append(f".type {NAME}_kernel,@function")
    LAB(f"{NAME}_kernel")
    A("s_cmp_ge_u32 s2, 256")
    A("s_cbranch_scc1 L_END")
    A("s_load_dwordx16 s[16:31], s[0:1], 0")
    A("s_load_dwordx8 s[32:39], s[0:1], 64")
    if CODEPF:
        A("s_getpc_b64 s[4:5]")
        A("v_lshlrev_b32 v2, 6, v0")
        for i in range(CODEPF):
            A(f"global_load_dword v61, v2, s[4:5]")
            A(f"v_add_u32 v2, 0x4000, v2")
    A("v_lshrrev_b32 v1, 6, v0")
    A("v_and_b32 v0, 63, v0")
    A("v_readfirstlane_b32 s3, v1")
    A(f"s_mov_b32 s96, {SPIN_MAX}")
    A("s_waitcnt lgkmcnt(0)")
    srd(48, 38, 0x40000000 if DEBUG_TS else 16 * REGION)
    srd(52, 36, 256)
    if DEBUG_TS:
        A("s_lshl_b32 s97, s2, 2")
        A("s_add_u32 s97, s97, s3")
        A("s_lshl_b32 s97, s97, 8")
        A(f"s_add_u32 s97, s97, {TS_OFF}")
    A("s_cmp_lt_u32 s2, 16")
    A("s_cbranch_scc1 L_SERVICE")

def footer():
    LAB("L_END")
    A("s_endpgm")
    L.append(f".fill (({NAME}_kernel + {CODEPF*16384+256} - .) / 4), 4, 0xbf800000")
    L.append('.section .rodata,"a"')
    L.append(".p2align 6")
    L.append(f".amdhsa_kernel {NAME}_kernel")
    L.append("  .amdhsa_next_free_vgpr 512")
    L.append("  .amdhsa_next_free_sgpr 102")
    L.append("  .amdhsa_accum_offset 256")
    L.append("  .amdhsa_group_segment_fixed_size 0")
    L.append("  .amdhsa_kernarg_size 96")
    L.append("  .amdhsa_user_sgpr_count 2")
    L.append("  .amdhsa_user_sgpr_kernarg_segment_ptr 1")
    L.append("  .amdhsa_system_sgpr_workgroup_id_x 1")
    L.append("  .amdhsa_float_denorm_mode_32 3")
    L.append(".end_amdhsa_kernel")

def spin_guard(label_retry):
    A("s_sleep 2")
    A("s_sub_u32 s96, s96, 1")
    A("s_cmp_eq_u32 s96, 0")
    A("s_cbranch_scc1 L_END")
    A(f"s_branch {label_retry}")

def masks16(m, t):
    A(f"v_and_b32 v{t}, 15, v0")
    A(f"v_and_b32 v{t+1}, 1, v0")
    A(f"v_lshlrev_b32 v{t+1}, 4, v{t+1}")
    A(f"v_mov_b32 v{m}, 0xffff")
    A(f"v_lshlrev_b32 v{t+1}, v{t+1}, v{m}")
    A(f"v_lshrrev_b32 v{t}, 1, v{t}")
    for j in range(4):
        A(f"v_cmp_eq_u32 vcc, {j}, v{t}")
        NOP(2)
        A(f"v_cndmask_b32 v{m+j}, 0, v{t+1}, vcc")

def masks8(m, t):
    A(f"v_and_b32 v{t}, 7, v0")
    A(f"v_and_b32 v{t+1}, 1, v0")
    A(f"v_lshlrev_b32 v{t+1}, 4, v{t+1}")
    A(f"v_mov_b32 v{m}, 0xffff")
    A(f"v_lshlrev_b32 v{t+1}, v{t+1}, v{m}")
    A(f"v_lshrrev_b32 v{t}, 1, v{t}")
    for j in range(4):
        A(f"v_cmp_eq_u32 vcc, {j}, v{t}")
        NOP(2)
        A(f"v_cndmask_b32 v{m+j}, 0, v{t+1}, vcc")

vKOFF, vVOFF, vLDSK = 1, 2, 3
vMSK = 4
vZERO, vONE, vTICK = 8, 9, 10
vQOFF = 11
vM, vL = 12, 13
vS0, vS1, vSa, vSb, vX, vY, vF, vT = 14, 15, 16, 17, 18, 19, 20, 21
vP0, vP1 = 22, 23
vB0, vB1 = 24, 28
vACC = 32
vQ = 40
vQN = 56
vSCR, vQB, vQR = 58, 59, 60
vTICK2 = 61
RING = 64
KST = 128
sK, sV, sWS, sDBG = 40, 44, 48, 52
sHEAD, sC, sWV, sHOFF = 4, 5, 6, 7
sLDPH, sLIM, sTB, sNOFF, sCUR, sPROC, sQTAG, sT0 = 8, 9, 10, 11, 12, 13, 14, 15
sCC, sREG, sT1, sT2, sBOFF, sT3, sPEND, sPOL = 72, 73, 74, 75, 76, 77, 78, 79
LDS_SCR = 131072
LDS_PART = LDS_SCR
LDS_CNT = LDS_SCR + 8448
LDS_QB = LDS_SCR + 8704

def loadK(dst, soff, pol="nt"):
    for j in range(4):
        A(f"buffer_load_dwordx4 {vr(dst+4*j,4)}, v{vKOFF}, {sr(sK,4)}, s{soff} offen offset:{128*j} {pol}")
def loadV(dst, soff, agpr=False, pol="nt"):
    for j in range(4):
        d = ar(dst+4*j, 4) if agpr else vr(dst+4*j, 4)
        A(f"buffer_load_dwordx4 {d}, v{vVOFF}, {sr(sV,4)}, s{soff} offen offset:{256*j} {pol}")

def kdots(R, S):
    for i in range(8):
        for (acc, k) in ((vSa, i), (vSb, 8 + i)):
            c = "0" if i == 0 else f"v{acc}"
            A(f"v_dot2_f32_bf16 v{acc}, v{R+k}, v{vQ+k}, {c}")
    NOP(3)
    A(f"v_add_f32 v{S}, v{vSa}, v{vSb}")

def kdots_lds(ldsoff, S):
    tmp = (vB0, vB1)
    A(f"ds_read_b128 {vr(tmp[0],4)}, v{vLDSK} offset:{ldsoff}")
    A(f"ds_read_b128 {vr(tmp[1],4)}, v{vLDSK} offset:{ldsoff+1024}")
    for j in range(4):
        A(f"s_waitcnt lgkmcnt({1 if j < 3 else 0})")
        acc = vSa if j % 2 == 0 else vSb
        for i in range(4):
            c = "0" if (j < 2 and i == 0) else f"v{acc}"
            A(f"v_dot2_f32_bf16 v{acc}, v{tmp[j%2]+i}, v{vQ+4*j+i}, {c}")
        if j < 2:
            A(f"ds_read_b128 {vr(tmp[j%2],4)}, v{vLDSK} offset:{ldsoff+1024*(j+2)}")
    NOP(3)
    A(f"v_add_f32 v{S}, v{vSa}, v{vSb}")

def softmax_update():
    for ctl in ("quad_perm:[1,0,3,2]", "quad_perm:[2,3,0,1]", "row_half_mirror"):
        NOP(1)
        A(f"v_add_f32_dpp v{vS0}, v{vS0}, v{vS0} {ctl} {DPPM}")
        A(f"v_add_f32_dpp v{vS1}, v{vS1}, v{vS1} {ctl} {DPPM}")
        NOP(1)
    A(f"v_cvt_pk_bf16_f32 v{vT}, v{vS0}, v{vS1}")
    A(f"v_lshlrev_b32 v{vS0}, 16, v{vT}")
    A(f"v_and_b32 v{vS1}, 0xffff0000, v{vT}")
    A(f"v_max_f32 v{vX}, v{vS0}, v{vS1}")
    NOP(2)
    A(f"v_max_f32_dpp v{vX}, v{vX}, v{vX} row_ror:8 {DPPM}")
    xrow_reduce("v_max_f32", vX, vY)
    A(f"v_mul_f32 v{vX}, s{sCC}, v{vX}")
    A(f"v_ceil_f32 v{vX}, v{vX}")
    A(f"v_max_f32 v{vX}, v{vX}, v{vM}")
    A(f"v_sub_f32 v{vF}, v{vM}, v{vX}")
    A(f"v_fma_f32 v{vS0}, v{vS0}, s{sCC}, -v{vX}")
    A(f"v_fma_f32 v{vS1}, v{vS1}, s{sCC}, -v{vX}")
    A(f"v_exp_f32 v{vF}, v{vF}")
    A(f"v_exp_f32 v{vS0}, v{vS0}")
    A(f"v_exp_f32 v{vS1}, v{vS1}")
    A(f"v_mov_b32 v{vM}, v{vX}")
    for k in range(8):
        A(f"v_mul_f32 v{vACC+k}, v{vACC+k}, v{vF}")
    A(f"v_fma_f32 v{vL}, v{vL}, v{vF}, v{vS0}")
    A(f"v_cvt_pk_bf16_f32 v{vP0}, v{vS0}, v{vS0}")
    A(f"v_cvt_pk_bf16_f32 v{vP1}, v{vS1}, v{vS1}")
    A(f"v_add_f32 v{vL}, v{vL}, v{vS1}")

def vmfma(R, P, agpr=False):
    rr = (lambda k: ar(R+4*k, 4)) if agpr else (lambda k: vr(R+4*k, 4))
    for j in range(4):
        A(f"v_and_b32 v{vB0+j}, v{P}, v{vMSK+j}")
    for j in range(4):
        A(f"v_and_b32_dpp v{vB1+j}, v{P}, v{vMSK+j} row_ror:8 {DPPM}")
    a0, a1 = vr(vACC, 4), vr(vACC+4, 4)
    A(f"v_mfma_f32_16x16x32_bf16 {a0}, {rr(0)}, {vr(vB0,4)}, {a0}")
    A(f"v_mfma_f32_16x16x32_bf16 {a1}, {rr(1)}, {vr(vB0,4)}, {a1}")
    A(f"v_mfma_f32_16x16x32_bf16 {a0}, {rr(2)}, {vr(vB1,4)}, {a0}")
    A(f"v_mfma_f32_16x16x32_bf16 {a1}, {rr(3)}, {vr(vB1,4)}, {a1}")

def ticket_atomic(dst):
    A("s_mov_b64 exec, 1")
    A(f"buffer_atomic_add v{dst}, v{vZERO}, {sr(sWS,4)}, s{sREG} offen sc0 sc1")
    exec_all()

dec_n = [0]
def decode(src):
    n = dec_n[0]; dec_n[0] += 1
    A(f"v_readfirstlane_b32 s{sT0}, v{src}")
    A(f"v_mov_b32 v{src}, 1")
    A(f"s_add_u32 s{sT0}, s{sT0}, 1")
    LAB(f"L_DEC{n}")
    A(f"s_cmp_lt_u32 s{sT0}, s{sLIM}")
    A(f"s_cbranch_scc1 L_DOK{n}")
    A(f"s_add_u32 s{sLDPH}, s{sLDPH}, 1")
    A(f"s_add_u32 s{sLIM}, s{sLIM}, {NDYN}")
    A(f"s_sub_u32 s{sTB}, s{sTB}, {NDYN*8192}")
    A(f"s_xor_b32 s{sBOFF}, s{sBOFF}, 0x08000000")
    A(f"s_cmp_lt_u32 s{sLDPH}, 4")
    A(f"s_cbranch_scc0 L_DFIN{n}")
    A(f"s_lshl_b32 s{sT1}, s{sLDPH}, 9")
    A(f"s_add_u32 s{sT1}, s{sT1}, s{sREG}")
    A(f"buffer_load_dwordx2 {vr(vQN,2)}, v{vQOFF}, {sr(sWS,4)}, s{sT1} offen offset:{Q_OFF} sc1")
    A(f"s_mov_b32 s{sQTAG}, s{sLDPH}")
    A(f"s_branch L_DEC{n}")
    LAB(f"L_DFIN{n}")
    A(f"s_mov_b32 s{sLIM}, -1")
    LAB(f"L_DOK{n}")
    A(f"s_lshl_b32 s{sNOFF}, s{sT0}, 13")
    A(f"s_add_u32 s{sNOFF}, s{sNOFF}, s{sTB}")
    A(f"s_add_u32 s{sNOFF}, s{sNOFF}, s{sBOFF}")
    A(f"s_cmp_ge_u32 s{sLDPH}, 4")
    A(f"s_cselect_b32 s{sNOFF}, 0x80000000, s{sNOFF}")
    A(f"s_add_u32 s{sT3}, s{sNOFF}, 4096")
    if MALLMASK is not None:
        A(f"s_and_b32 s{sPOL}, s{sT0}, {MALLMASK}")
        A(f"s_lshr_b32 s{sT1}, s{sLDPH}, 1")
        A(f"s_or_b32 s{sPOL}, s{sPOL}, s{sT1}")

pol_n = [0]
def ring_load(fn, dst, soff):
    if MALLMASK is None:
        fn(dst, soff)
        return
    n = pol_n[0]; pol_n[0] += 1
    A(f"s_cmp_lg_u32 s{sPOL}, 0")
    A(f"s_cbranch_scc1 L_PN{n}")
    fn(dst, soff, pol="")
    A(f"s_branch L_PD{n}")
    LAB(f"L_PN{n}")
    fn(dst, soff)
    LAB(f"L_PD{n}")

def static_loads(b, part):
    def soff(u):
        A(f"s_add_u32 s{sT1}, s{sT2}, {b*0x08000000 + u*60*4096}")
        if STATQ < 60:
            A(f"s_waitcnt vmcnt({STATQ-4})")
    if part == 0:
        for u in range(4):
            soff(u); loadK(KST + (b*4+u)*16, sT1)
    elif part == 1:
        for u in range(4):
            soff(4+u)
            for j in range(4):
                A(f"s_add_u32 m0, s{sT3}, {(b*4+u)*4096 + 896*j}")
                NOP(1)
                A(f"buffer_load_dwordx4 v{vKOFF}, {sr(sK,4)}, s{sT1} offen offset:{128*j} nt lds")
    else:
        for u in range(4*(part-2), 4*(part-2)+4):
            soff(u); loadV((b*8+u)*16, sT1, agpr=True, pol=STATPOL)

def statics(b):
    for blk in range(4):
        for i, S in ((0, vS0), (1, vS1)):
            u = blk*2 + i
            if u < 4:
                kdots(KST + (b*4+u)*16, S)
            else:
                kdots_lds((b*4+u-4)*4096, S)
        softmax_update()
        vmfma((b*8+blk*2)*16, vP0, agpr=True)
        vmfma((b*8+blk*2+1)*16, vP1, agpr=True)
        NOP(4)

def stream():
    TS(0, 0)
    A(f"s_sub_u32 s{sT0}, s2, 16")
    A(f"s_mul_hi_u32 s{sHEAD}, s{sT0}, 0x11111112")
    A(f"s_mul_i32 s{sT1}, s{sHEAD}, 15")
    A(f"s_sub_u32 s{sC}, s{sT0}, s{sT1}")
    A(f"s_lshl_b32 s{sWV}, s{sC}, 2")
    A(f"s_add_u32 s{sWV}, s{sWV}, s3")
    A(f"s_lshl_b32 s{sHOFF}, s{sHEAD}, 23")
    srd(sK, 18, 0x10000000)
    srd(sV, 20, 0x10000000)
    A(f"v_lshrrev_b32 v{vX}, 3, v0")
    A(f"v_and_b32 v{vY}, 7, v0")
    A(f"v_lshlrev_b32 v{vX}, 9, v{vX}")
    A(f"v_lshl_add_u32 v{vKOFF}, v{vY}, 4, v{vX}")
    A(f"v_lshrrev_b32 v{vX}, 4, v0")
    A(f"v_and_b32 v{vY}, 15, v0")
    A(f"v_lshlrev_b32 v{vX}, 10, v{vX}")
    A(f"v_lshl_add_u32 v{vVOFF}, v{vY}, 4, v{vX}")
    A(f"s_lshl_b32 s{sT2}, s{sWV}, 12")
    A(f"s_add_u32 s{sT2}, s{sT2}, s{sHOFF}")
    A(f"s_lshl_b32 s{sT3}, s3, 15")
    for part in range(4):
        static_loads(0, part)
    TS(0, 20)
    A(f"s_mov_b32 s{sCC}, {f32(LOG2E/16)}")
    A(f"s_mul_i32 s{sREG}, s{sHEAD}, {REGION}")
    A(f"v_mov_b32 v{vZERO}, 0")
    A(f"v_mov_b32 v{vTICK}, 1")
    A(f"v_mov_b32 v{vTICK2}, 1")
    A(f"v_lshlrev_b32 v{vQOFF}, 3, v0")
    A(f"v_lshl_add_u32 v{vLDSK}, v0, 4, s{sT3}")
    masks16(vMSK, vX)
    A(f"v_lshrrev_b32 v{vX}, 4, v0")
    A(f"v_and_b32 v{vY}, 15, v0")
    A(f"v_lshl_add_u32 v{vX}, v{vX}, 3, v{vY}")
    A(f"v_lshlrev_b32 v{vX}, 4, v{vX}")
    A(f"s_mul_i32 s{sT1}, s3, 1056")
    A(f"s_add_u32 s{sT1}, s{sT1}, {LDS_PART}")
    A(f"v_add_u32 v{vSCR}, s{sT1}, v{vX}")
    A(f"s_lshl_b32 s{sT1}, s3, 9")
    A(f"s_add_u32 s{sT1}, s{sT1}, {LDS_QB}")
    A(f"v_lshl_add_u32 v{vQB}, v0, 3, s{sT1}")
    A(f"v_and_b32 v{vY}, 7, v0")
    A(f"v_lshl_add_u32 v{vQR}, v{vY}, 4, s{sT1}")
    A(f"v_lshlrev_b32 v{vX}, 2, v0")
    A(f"v_and_b32 v{vX}, 12, v{vX}")
    A(f"ds_write_b32 v{vX}, v{vZERO} offset:{LDS_CNT}") if False else None
    A(f"v_add_u32 v{vX}, {LDS_CNT}, v{vX}")
    A(f"ds_write_b32 v{vX}, v{vZERO}")
    A("s_waitcnt lgkmcnt(0)")
    A("s_barrier")
    A(f"s_lshl_b32 s{sT0}, s{sHEAD}, 2")
    A(f"buffer_load_dword v{vT}, v{vZERO}, {sr(sDBG,4)}, s{sT0} offen sc1")
    for part in range(3):
        static_loads(1, part)
    A("s_waitcnt vmcnt(48)")
    LAB("L_FLAGCHK")
    A(f"v_readfirstlane_b32 s{sT1}, v{vT}")
    NOP(2)
    A(f"s_cmp_lg_u32 s{sT1}, 0")
    A("s_cbranch_scc1 L_FLAGOK")
    A("s_sleep 2")
    A("s_sub_u32 s96, s96, 1")
    A("s_cmp_eq_u32 s96, 0")
    A("s_cbranch_scc1 L_END")
    A(f"buffer_load_dword v{vT}, v{vZERO}, {sr(sDBG,4)}, s{sT0} offen sc1")
    A("s_waitcnt vmcnt(0)")
    A("s_branch L_FLAGCHK")
    LAB("L_FLAGOK")
    TS(0, 1)
    ticket_atomic(vTICK2)
    ticket_atomic(vTICK)
    A(f"buffer_load_dwordx2 {vr(vQN,2)}, v{vQOFF}, {sr(sWS,4)}, s{sREG} offen offset:{Q_OFF} sc1")
    static_loads(1, 3)
    A(f"s_mov_b32 s{sQTAG}, 0")
    A(f"s_mov_b32 s{sLDPH}, 0")
    A(f"s_mov_b32 s{sLIM}, {NDYN}")
    A(f"s_add_u32 s{sTB}, s{sHOFF}, {NSTAT*8192}")
    A(f"s_mov_b32 s{sBOFF}, 0")
    A(f"s_mov_b32 s{sPROC}, 0")
    A("s_waitcnt vmcnt(16)")
    decode(vTICK2)
    loadK(RING, sNOFF); loadK(RING+16, sT3); loadV(RING+32, sNOFF); loadV(RING+48, sT3)
    A(f"s_mov_b32 s{sCUR}, s{sLDPH}")
    A("s_waitcnt vmcnt(12)")
    decode(vTICK)
    ticket_atomic(vTICK)
    A("s_branch L_SETUP")

    L.append(".p2align 6")
    LAB("L_LOOP")
    A("s_waitcnt vmcnt(12)")
    decode(vTICK)
    ticket_atomic(vTICK)
    A(f"s_cmp_lg_u32 s{sCUR}, s{sPROC}")
    A("s_cbranch_scc1 L_SWITCH")
    LAB("L_BODY")
    if not NOCOMP: kdots(RING, vS0)
    ring_load(loadK, RING, sNOFF)
    A("s_waitcnt vmcnt(13)")
    if not NOCOMP: kdots(RING+16, vS1)
    ring_load(loadK, RING+16, sT3)
    if not NOCOMP: softmax_update()
    A("s_waitcnt vmcnt(13)")
    if not NOCOMP: vmfma(RING+32, vP0)
    ring_load(loadV, RING+32, sNOFF)
    A("s_waitcnt vmcnt(13)")
    if not NOCOMP: vmfma(RING+48, vP1)
    ring_load(loadV, RING+48, sT3)
    A(f"s_mov_b32 s{sCUR}, s{sLDPH}")
    A(f"s_cmp_eq_u32 s{sPEND}, 0")
    A("s_cbranch_scc1 L_LOOP")
    A(f"s_mov_b32 s{sPEND}, 1")
    LAB("L_DOSTAT")
    NOP(4)
    A(f"s_bitcmp1_b32 s{sPROC}, 0")
    A("s_cbranch_scc1 L_STAT1")
    statics(0)
    A("s_branch L_STATDONE")
    LAB("L_STAT1")
    statics(1)
    LAB("L_STATDONE")
    A(f"s_cmp_eq_u32 s{sPEND}, 1")
    A(f"s_mov_b32 s{sPEND}, 0")
    A("s_cbranch_scc1 L_LOOP")

    LAB("L_SWITCH")
    A(f"s_cmp_lg_u32 s{sPEND}, 0")
    A("s_cbranch_scc1 L_DOSTAT")
    NOP(8)
    A(f"v_add_f32_dpp v{vL}, v{vL}, v{vL} row_ror:8 {DPPM}")
    xrow_reduce("v_add_f32", vL, vY)
    A(f"s_and_b32 s{sT0}, s{sPROC}, 1")
    A(f"s_mul_i32 s{sT0}, s{sT0}, 4224")
    A(f"v_add_u32 v{vX}, s{sT0}, v{vSCR}")
    exec_set(0x00ff00ff00ff00ff)
    A(f"ds_write_b128 v{vX}, {vr(vACC,4)}")
    A(f"ds_write_b128 v{vX}, {vr(vACC+4,4)} offset:512")
    A("s_mov_b64 exec, 1")
    A(f"ds_write_b64 v{vX}, {vr(vM,2)} offset:1024")
    A(f"s_lshl_b32 s{sT1}, s{sPROC}, 2")
    A(f"s_add_u32 s{sT1}, s{sT1}, {LDS_CNT}")
    A(f"v_mov_b32 v{vX}, s{sT1}")
    A(f"v_mov_b32 v{vY}, 1")
    A("s_waitcnt lgkmcnt(0)")
    A(f"ds_add_rtn_u32 v{vY}, v{vX}, v{vY}")
    A("s_waitcnt lgkmcnt(0)")
    A(f"v_readfirstlane_b32 s{sT1}, v{vY}")
    exec_all()
    NOP(2)
    A(f"s_cmp_lg_u32 s{sT1}, 3")
    A("s_cbranch_scc1 L_NOPUB")
    A(f"s_add_u32 s{sT0}, s{sT0}, {LDS_PART}")
    A(f"v_mov_b32 v{vX}, s{sT0}")
    A(f"v_lshl_add_u32 v{vY}, v0, 4, s{sT0}")
    for w in range(4):
        A(f"ds_read_b64 {vr(vB0+2*w,2)}, v{vX} offset:{1056*w+1024}")
    for w in range(4):
        A(f"ds_read_b128 {vr(vQ+4*w,4)}, v{vY} offset:{1056*w}")
    A("s_waitcnt lgkmcnt(4)")
    A(f"v_max3_f32 v{vM}, v{vB0}, v{vB0+2}, v{vB0+4}")
    A(f"v_max_f32 v{vM}, v{vM}, v{vB0+6}")
    for w in range(4):
        A(f"v_sub_f32 v{vB0+2*w}, v{vB0+2*w}, v{vM}")
    for w in range(4):
        A(f"v_exp_f32 v{vB0+2*w}, v{vB0+2*w}")
    NOP(1)
    A(f"v_mul_f32 v{vL}, v{vB0}, v{vB0+1}")
    for w in range(1, 4):
        A(f"v_fmac_f32 v{vL}, v{vB0+2*w}, v{vB0+2*w+1}")
    A("s_waitcnt lgkmcnt(0)")
    for r in range(4):
        A(f"v_mul_f32 v{vACC+r}, v{vB0}, v{vQ+r}")
    for w in range(1, 4):
        for r in range(4):
            A(f"v_fmac_f32 v{vACC+r}, v{vB0+2*w}, v{vQ+4*w+r}")
    for r in range(4):
        A(f"v_min_u32 v{vACC+r}, -2, v{vACC+r}")
    A(f"v_min_u32 v{vM}, -2, v{vM}")
    A(f"v_min_u32 v{vL}, -2, v{vL}")
    A(f"s_mul_i32 s{sT0}, s{sPROC}, 15")
    A(f"s_add_u32 s{sT0}, s{sT0}, s{sC}")
    A(f"s_mul_i32 s{sT0}, s{sT0}, {PSLOT}")
    A(f"s_add_u32 s{sT0}, s{sT0}, s{sREG}")
    A(f"s_add_u32 s{sT0}, s{sT0}, {P_OFF}")
    A(f"v_lshlrev_b32 v{vX}, 4, v0")
    A(f"buffer_store_dwordx4 {vr(vACC,4)}, v{vX}, {sr(sWS,4)}, s{sT0} offen sc1")
    A("s_mov_b64 exec, 1")
    A(f"buffer_store_dwordx2 {vr(vM,2)}, v{vZERO}, {sr(sWS,4)}, s{sT0} offen offset:1024 sc1")
    exec_all()
    NOP(2)
    LAB("L_NOPUB")
    if DEBUG_TS:
        A(f"s_lshl_b32 s95, s{sPROC}, 3")
        A("s_add_u32 s95, s95, 12")
        TS(0, "s95")
    A(f"s_add_u32 s{sPROC}, s{sPROC}, 1")
    A(f"s_cmp_ge_u32 s{sPROC}, 4")
    A("s_cbranch_scc1 L_END")
    LAB("L_SETUP")
    if DEBUG_TS:
        A(f"s_lshl_b32 s95, s{sPROC}, 2")
        A("s_add_u32 s95, s95, 64")
        TS(0, "s95")
    A(f"s_cmp_eq_u32 s{sQTAG}, s{sPROC}")
    A("s_cbranch_scc1 L_QCHK")
    LAB("L_QSLOW")
    A(f"s_mov_b32 s{sQTAG}, -1")
    A(f"s_lshl_b32 s{sT1}, s{sPROC}, 9")
    A(f"s_add_u32 s{sT1}, s{sT1}, s{sREG}")
    A(f"buffer_load_dwordx2 {vr(vQN,2)}, v{vQOFF}, {sr(sWS,4)}, s{sT1} offen offset:{Q_OFF} sc1")
    A("s_waitcnt vmcnt(0)")
    LAB("L_QCHK")
    A(f"v_max_u32 v{vX}, v{vQN}, v{vQN+1}")
    A(f"v_cmp_eq_u32 vcc, -1, v{vX}")
    A("s_cbranch_vccz L_QOK")
    spin_guard("L_QSLOW")
    LAB("L_QOK")
    A(f"ds_write_b64 v{vQB}, {vr(vQN,2)}")
    A("s_waitcnt lgkmcnt(0)")
    for j in range(4):
        A(f"ds_read_b128 {vr(vQ+4*j,4)}, v{vQR} offset:{128*j}")
    for k in range(8):
        A(f"v_mov_b32 v{vACC+k}, 0")
    A(f"v_mov_b32 v{vL}, 0")
    A(f"v_mov_b32 v{vM}, {f32(-1e30)}")
    A("s_waitcnt lgkmcnt(0)")
    if DEBUG_TS:
        A(f"s_lshl_b32 s95, s{sPROC}, 3")
        A("s_add_u32 s95, s95, 8")
        TS(0, "s95")
    A(f"s_mov_b32 s{sPEND}, 2")
    A(f"s_cmp_lg_u32 s{sCUR}, s{sPROC}")
    A("s_cbranch_scc1 L_SWITCH")
    A("s_branch L_BODY")

sS = 2
sX, sWQ, sWO, sWG, sWU, sWD, sOUT = 40, 44, 56, 60, 64, 68, 80
sKK, sBX, sMYREG = 4, 5, 6
sA0, sA1, sA2, sA3 = 7, 8, 9, 10
sRINGB = 11
wM8, wM16 = 4, 8
wOFF8, wOFFG, wOFFQ, wPI8 = 1, 2, 3, 12
wGOFF, wML, wR2W, wXPK = 13, 14, 15, 16
wRW, wHR, wL16, wZOFF = 17, 18, 19, 20
wL4, wZERO, wC0, wQR = 21, 22, 23, 0
wB = 24
wT = 28
RES_V = 64
LDS_DOWN = 0
LDS_RING = 100352
NRING = 10
LDS_X = LDS_RING + 4*NRING*1024
LDS_RED2 = LDS_X + 3584
LDS_RED = LDS_RED2 + 14336

def wo_tile(rg, cg):
    return ar((rg*7+cg)*4, 4)
def gu_tile(t, m):
    i = t*2 + m
    if i < 8:
        return ar(224 + i*4, 4)
    return vr(RES_V + (i-8)*4, 4)

def check_sentinel(regs, t, label_retry, label_ok):
    regs = list(regs)
    A(f"v_max_u32 v{t}, v{regs[0]}, v{regs[1]}")
    rest = regs[2:]
    while len(rest) >= 2:
        A(f"v_max3_u32 v{t}, v{t}, v{rest[0]}, v{rest[1]}")
        rest = rest[2:]
    if rest:
        A(f"v_max_u32 v{t}, v{t}, v{rest[0]}")
    A(f"v_cmp_eq_u32 vcc, -1, v{t}")
    A(f"s_cbranch_vccz {label_ok}")
    spin_guard(label_retry)
    LAB(label_ok)

def wq_dma(i):
    t, h = i // 2, i % 2
    A(f"s_add_u32 m0, s{sRINGB}, {(i % NRING)*1024}")
    A(f"s_add_u32 s{sA0}, s{sA3}, {t*4*8192 + h*256}")
    A(f"buffer_load_dwordx4 v{wOFFQ}, {sr(sWQ,4)}, s{sA0} offen lds")

def wq_base():
    A(f"s_mul_i32 s{sA3}, s3, {112*8192}")
    A(f"s_lshl_b32 s{sA0}, s{sS}, 9")
    A(f"s_add_u32 s{sA3}, s{sA3}, s{sA0}")

def layernorm(xp0, xp1):
    t = wT
    A(f"v_add_u32 v{t+10}, s{sBX}, v{wL4}")
    A(f"v_add_u32 v{t+11}, s{sBX}, v{wXPK}")
    for k in range(3):
        A(f"ds_read2st64_b32 {vr(t+2*k,2)}, v{t+10} offset0:{2*k} offset1:{2*k+1}")
    A(f"ds_read_b32 v{t+6}, v{t+10} offset:1536")
    A(f"ds_read_b32 v{xp0}, v{t+11}")
    A(f"ds_read_b32 v{xp1}, v{t+11} offset:256")
    A("s_waitcnt lgkmcnt(2)")
    A(f"v_add_f32 v{t+8}, v{t}, v{t+1}")
    for k in range(2, 7):
        A(f"v_add_f32 v{t+8}, v{t+8}, v{t+k}")
    wave_reduce("v_add_f32", t+8, t+9)
    A(f"v_mul_f32 v{t+8}, {f32(1/448)}, v{t+8}")
    for k in range(7):
        A(f"v_sub_f32 v{t+k}, v{t+k}, v{t+8}")
    A(f"v_mul_f32 v{t+7}, v{t}, v{t}")
    for k in range(1, 7):
        A(f"v_fmac_f32 v{t+7}, v{t+k}, v{t+k}")
    wave_reduce("v_add_f32", t+7, t+9)
    A(f"v_mul_f32 v{t+7}, {f32(1/448)}, v{t+7}")
    bf16_round(t+8, t+8)
    bf16_round(t+7, t+7)
    A(f"v_add_f32 v{t+7}, {f32(1e-5)}, v{t+7}")
    bf16_round(t+7, t+7)
    A(f"v_sqrt_f32 v{t+7}, v{t+7}")
    NOP(1)
    bf16_round(t+7, t+7)
    A(f"v_rcp_f32 v{t+7}, v{t+7}")
    A("s_waitcnt lgkmcnt(0)")
    for x in (xp0, xp1):
        A(f"v_sub_f32 v{x}, v{x}, v{t+8}")
    for x in (xp0, xp1):
        bf16_round(x, x)
    for x in (xp0, xp1):
        A(f"v_mul_f32 v{x}, v{x}, v{t+7}")
    for x in (xp0, xp1):
        A(f"v_cvt_pk_bf16_f32 v{x}, v{x}, v{x}")
    NOP(1)

def red_write(acc0, acc1):
    NOP(8)
    exec_set(0x00ff00ff00ff00ff)
    for m, acc in ((0, acc0), (1, acc1)):
        for r in range(4):
            A(f"ds_write_b32 v{wRW}, v{acc+r} offset:{m*2048 + r*128}")
    exec_all()
    A("s_waitcnt lgkmcnt(0)")
    A("s_barrier")

def gather_vec(off, tag):
    t = wT
    exec_set((1 << 56) - 1)
    A(f"s_sub_u32 s{sA1}, s{sKK}, 2")
    A(f"s_mul_i32 s{sA1}, s{sA1}, 1792")
    A(f"s_add_u32 s{sA1}, s{sA1}, {off}")
    A(f"v_add_u32 v{t+34}, s{sBX}, v{wPI8}")
    A(f"ds_read_b64 {vr(t+32,2)}, v{t+34} offset:{0}")
    LAB(f"L_G{tag}")
    for s in range(16):
        A(f"s_add_u32 s{sA0}, s{sA1}, {s*REGION}")
        A(f"buffer_load_dwordx2 {vr(t+2*s,2)}, v{wPI8}, {sr(sWS,4)}, s{sA0} offen offset:0 sc1")
    A("s_waitcnt vmcnt(0)")
    check_sentinel(range(t, t+32), t+35, f"L_G{tag}", f"L_G{tag}OK")
    for s in range(1, 16):
        A(f"v_add_f32 v{t}, v{t}, v{t+2*s}")
        A(f"v_add_f32 v{t+1}, v{t+1}, v{t+2*s+1}")
    bf16_round(t, t)
    bf16_round(t+1, t+1)
    A("s_waitcnt lgkmcnt(0)")
    A(f"v_add_f32 v{t}, v{t}, v{t+32}")
    A(f"v_add_f32 v{t+1}, v{t+1}, v{t+33}")
    bf16_round(t, t)
    bf16_round(t+1, t+1)

def bcast8(dst, src, u):
    A(f"v_mov_b32_dpp v{dst}, v{src} row_newbcast:{u} row_mask:0xf bank_mask:0x3")
    A(f"v_mov_b32_dpp v{dst}, v{src} row_newbcast:{8+u} row_mask:0xf bank_mask:0xc")

def q_publish(done):
    t = wT
    A("s_cmp_ge_u32 s3, 2")
    A(f"s_cbranch_scc1 {done}")
    A(f"s_lshl_b32 s{sA0}, s3, 11")
    A(f"s_add_u32 s{sA0}, s{sA0}, {LDS_RED}")
    A(f"v_lshl_add_u32 v{t+8}, v0, 5, s{sA0}")
    A(f"ds_read_b128 {vr(t,4)}, v{t+8}")
    A(f"ds_read_b128 {vr(t+4,4)}, v{t+8} offset:16")
    A(f"s_lshl_b32 s{sA1}, s{sKK}, 9")
    A(f"s_add_u32 s{sA1}, s{sA1}, s{sMYREG}")
    A(f"s_lshl_b32 s{sA0}, s3, 8")
    A(f"s_add_u32 s{sA1}, s{sA1}, s{sA0}")
    A(f"v_lshlrev_b32 v{t+9}, 2, v0")
    A("s_waitcnt lgkmcnt(0)")
    for q in range(2):
        b = t + 4*q
        A(f"v_add_f32 v{b}, v{b}, v{b+1}")
        A(f"v_add_f32 v{b+2}, v{b+2}, v{b+3}")
        A(f"v_add_f32 v{b}, v{b}, v{b+2}")
    A(f"v_cvt_pk_bf16_f32 v{t}, v{t}, v{t+4}")
    A(f"v_min_u32 v{t}, -2, v{t}")
    A(f"buffer_store_dword v{t}, v{t+9}, {sr(sWS,4)}, s{sA1} offen offset:{Q_OFF} sc1")
    LAB(done)

def service():
    LAB("L_SERVICE")
    TS(0, 0, lite=True)
    t = wT
    srd(sX, 16, 1792)
    srd(sWQ, 22, 448*4096*2)
    srd(sWO, 24, 448*4096*2)
    srd(sWG, 28, 448*1792*2)
    srd(sWU, 30, 448*1792*2)
    srd(sWD, 32, 448*1792*2)
    srd(sOUT, 34, 1792)
    A(f"s_mul_i32 s{sMYREG}, s{sS}, {REGION}")
    for i in range(4):
        A(f"v_mov_b32 v{t+12+i}, -1")
    A(f"v_lshlrev_b32 v{wL16}, 4, v0")
    A(f"s_mul_i32 s{sA1}, s3, {CLEAR_PER_WAVE*1024}")
    A(f"s_add_u32 s{sA1}, s{sA1}, s{sMYREG}")
    for i in range(CLEAR_PER_WAVE):
        A(f"s_add_u32 s{sA0}, s{sA1}, {i*1024}")
        A(f"buffer_store_dwordx4 {vr(t+12,4)}, v{wL16}, {sr(sWS,4)}, s{sA0} offen sc1")
    G, N, U, E8 = t, t+1, t+2, t+3
    A(f"v_lshrrev_b32 v{G}, 4, v0")
    A(f"v_and_b32 v{N}, 15, v0")
    A(f"v_and_b32 v{U}, 7, v0")
    A(f"v_lshrrev_b32 v{E8}, 3, v0")
    A(f"v_lshlrev_b32 v{t+4}, 4, v{N}")
    A(f"s_movk_i32 s{sA0}, 0x2000")
    A(f"v_mad_u32_u24 v{wOFFQ}, v{G}, s{sA0}, v{t+4}")
    A(f"s_movk_i32 s{sA0}, 3584")
    A(f"v_mad_u32_u24 v{wOFFG}, v{G}, s{sA0}, v{t+4}")
    A(f"v_lshlrev_b32 v{t+4}, 4, v{U}")
    A(f"s_movk_i32 s{sA0}, 896")
    A(f"v_mad_u32_u24 v{wOFF8}, v{E8}, s{sA0}, v{t+4}")
    A(f"s_mul_i32 s{sRINGB}, s3, {NRING*1024}")
    A(f"s_add_u32 s{sRINGB}, s{sRINGB}, {LDS_RING}")
    wq_base()
    for i in range(56):
        if i == 12:
            A("s_waitcnt vmcnt(12)")
            A("s_barrier")
            A(f"v_mov_b32 v{t+17}, 0")
            A("s_cmp_lg_u32 s3, 0")
            A("s_cbranch_scc1 L_SVNOFLAG")
            A(f"s_lshl_b32 s{sA0}, s{sS}, 2")
            A(f"v_mov_b32 v{t+16}, 1")
            A("s_mov_b64 exec, 1")
            A(f"buffer_store_dword v{t+16}, v{t+17}, {sr(sDBG,4)}, s{sA0} offen sc1")
            exec_all()
            LAB("L_SVNOFLAG")
        A(f"s_add_u32 s{sA0}, s{sA3}, {(i//2)*4*8192 + (i%2)*256}")
        A(f"buffer_load_dwordx4 {ar(4*i,4)}, v{wOFFQ}, {sr(sWQ,4)}, s{sA0} offen {WQPOL}")
    if DEBUG_TS and PROBE:
        A("s_memrealtime s[84:85]")
        A("s_waitcnt vmcnt(55)")
        A("s_memrealtime s[86:87]")
        A("s_waitcnt vmcnt(40)")
        A("s_memrealtime s[88:89]")
        A("s_waitcnt vmcnt(20)")
        A("s_memrealtime s[90:91]")
        A("s_waitcnt vmcnt(0)")
        A("s_memrealtime s[92:93]")
        A("s_waitcnt lgkmcnt(0)")
        A("s_mov_b64 exec, 1")
        A("v_mov_b32 v63, 0")
        for i in range(5):
            A(f"v_mov_b32 v62, s{84+2*i}")
            A(f"buffer_store_dword v62, v63, s[48:51], s97 offen offset:{224+4*i}")
        exec_all()
    A(f"s_mul_i32 s{sA0}, s3, 56")
    A(f"v_add_u32 v{t+4}, s{sA0}, v0")
    A(f"v_lshlrev_b32 v{wPI8}, 3, v{t+4}")
    A(f"v_lshlrev_b32 v{t+4}, 1, v{t+4}")
    A(f"v_and_b32 v{t+5}, 0xffffffe0, v{t+4}")
    A(f"v_and_b32 v{t+6}, 3, v{t+4}")
    A(f"v_lshl_add_u32 v{t+5}, v{t+6}, 3, v{t+5}")
    A(f"v_bfe_u32 v{t+6}, v{t+4}, 2, 3")
    A(f"v_add_u32 v{t+5}, v{t+5}, v{t+6}")
    A(f"v_lshlrev_b32 v{wC0}, 1, v{t+5}")
    exec_set((1 << 56) - 1)
    for b in range(2):
        for i in range(2):
            A(f"buffer_load_ushort v{t+8+2*b+i}, v{wC0}, {sr(sX,4)}, 0 offen offset:{b*896+16*i}")
    exec_all()
    masks8(wM8, t+16)
    masks16(wM16, t+16)
    A(f"v_mov_b32 v{wZERO}, 0")
    A(f"v_lshlrev_b32 v{wL4}, 2, v0")
    A(f"v_add_u32 v{wL4}, {LDS_X}, v{wL4}")
    A(f"v_lshrrev_b32 v{t+4}, 2, v{U}")
    A(f"v_lshlrev_b32 v{t+4}, 5, v{t+4}")
    A(f"v_lshl_add_u32 v{t+4}, v{E8}, 2, v{t+4}")
    A(f"v_and_b32 v{t+5}, 3, v0")
    A(f"v_add_u32 v{t+4}, v{t+4}, v{t+5}")
    A(f"s_lshl_b32 s{sA0}, s3, 6")
    A(f"v_add_u32 v{t+4}, s{sA0}, v{t+4}")
    A(f"v_lshlrev_b32 v{wGOFF}, 2, v{t+4}")
    A(f"v_min_u32 v{t+4}, 14, v{N}")
    A(f"v_mul_u32_u24 v{t+4}, {PSLOT}, v{t+4}")
    A(f"v_add_u32 v{wML}, 1024, v{t+4}")
    A(f"v_lshrrev_b32 v{t+4}, 1, v{G}")
    A(f"s_lshl_b32 s{sA0}, s3, 1")
    A(f"v_add_u32 v{t+4}, s{sA0}, v{t+4}")
    A(f"v_mul_u32_u24 v{t+4}, 1792, v{t+4}")
    A(f"v_and_b32 v{t+5}, 1, v{G}")
    A(f"v_lshlrev_b32 v{t+5}, 7, v{t+5}")
    A(f"v_lshl_add_u32 v{t+5}, v{U}, 4, v{t+5}")
    A(f"v_add_u32 v{t+4}, v{t+4}, v{t+5}")
    A(f"v_add_u32 v{wR2W}, {LDS_RED2}, v{t+4}")
    A(f"s_lshl_b32 s{sA0}, s3, 9")
    A(f"v_add_u32 v{wZOFF}, s{sA0}, v{t+5}")
    A(f"s_mul_i32 s{sA0}, s3, 112")
    A(f"v_lshl_add_u32 v{t+4}, v{N}, 2, v{G}")
    A(f"v_add_u32 v{t+4}, s{sA0}, v{t+4}")
    A(f"v_and_b32 v{t+5}, 0xffffffe0, v{t+4}")
    A(f"v_and_b32 v{t+6}, 7, v{t+4}")
    A(f"v_lshl_add_u32 v{t+5}, v{t+6}, 2, v{t+5}")
    A(f"v_bfe_u32 v{t+6}, v{t+4}, 3, 2")
    A(f"v_add_u32 v{t+5}, v{t+5}, v{t+6}")
    A(f"v_lshlrev_b32 v{t+5}, 2, v{t+5}")
    A(f"v_add_u32 v{wXPK}, {LDS_X}, v{t+5}")
    A(f"v_lshl_add_u32 v{t+4}, v{G}, 5, v{N}")
    A(f"v_lshlrev_b32 v{t+4}, 4, v{t+4}")
    A(f"s_lshl_b32 s{sA0}, s3, 2")
    A(f"s_add_u32 s{sA0}, s{sA0}, {LDS_RED}")
    A(f"v_add_u32 v{wRW}, s{sA0}, v{t+4}")
    A(f"v_lshl_add_u32 v{t+4}, v{U}, 3, v{E8}")
    A(f"v_lshlrev_b32 v{t+4}, 4, v{t+4}")
    A(f"v_add_u32 v{wHR}, {LDS_RED}, v{t+4}")
    if DEBUG_TS:
        TS(0, 1)
        TS(0, 2)
    A("s_waitcnt vmcnt(0)")
    TS(0, 3)
    for i in range(4):
        A(f"v_lshlrev_b32 v{t+8+i}, 16, v{t+8+i}")
    A(f"v_add_u32 v{wPI8}, {LDS_X}, v{wPI8}")
    exec_set((1 << 56) - 1)
    A(f"ds_write_b64 v{wPI8}, {vr(t+8,2)}")
    A(f"ds_write_b64 v{wPI8}, {vr(t+10,2)} offset:1792")
    exec_all()
    A(f"v_subrev_u32 v{wPI8}, {LDS_X}, v{wPI8}")
    A("s_waitcnt lgkmcnt(0)")
    A("s_barrier")
    A(f"s_mov_b32 s{sKK}, 0")
    XP = t + 12
    AG, AU = t+16, t+20
    LAB("L_SVQ0")
    A(f"s_mul_i32 s{sBX}, s{sKK}, 1792")
    if DEBUG_TS:
        A(f"s_lshl_b32 s95, s{sKK}, 5")
        A("s_add_u32 s95, s95, 16")
        TS(0, "s95")
    layernorm(XP, XP+1)
    for tt in range(28):
        bb = (wB, t+24)[tt % 2]
        for j in range(4):
            A(f"v_and_b32_dpp v{bb+j}, v{XP+tt//16}, v{wM16+j} row_newbcast:{tt%16} {DPPM}")
        NOP(2)
        for h, acc in ((0, AG), (1, AU)):
            c = "0" if tt == 0 else vr(acc, 4)
            A(f"v_mfma_f32_16x16x32_bf16 {vr(acc,4)}, {ar(8*tt+4*h,4)}, {vr(bb,4)}, {c}")
    red_write(AG, AU)
    q_publish("L_SVQ0DONE")
    if DEBUG_TS:
        A(f"s_lshl_b32 s95, s{sKK}, 5")
        A("s_add_u32 s95, s95, 20")
        TS(0, "s95")
    A("s_waitcnt lgkmcnt(0)")
    A("s_barrier")
    A(f"s_add_u32 s{sKK}, s{sKK}, 1")
    A(f"s_cmp_lt_u32 s{sKK}, 2")
    A("s_cbranch_scc1 L_SVQ0")
    for i in range(NRING):
        wq_dma(i)
    A(f"s_lshl_b32 s{sA1}, s{sS}, 8")
    A(f"s_lshl_b32 s{sA0}, s3, 6")
    A(f"s_add_u32 s{sA1}, s{sA1}, s{sA0}")
    A(f"s_mul_i32 s{sA1}, s{sA1}, 896")
    for rg in range(8):
        A(f"s_add_u32 s{sA0}, s{sA1}, {rg*8*896}")
        for cg in range(7):
            A(f"buffer_load_dwordx4 {wo_tile(rg,cg)}, v{wOFF8}, {sr(sWO,4)}, s{sA0} offen offset:{cg*128} nt")
    A(f"s_mul_i32 s{sA1}, s3, {112*3584}")
    A(f"s_mul_i32 s{sA0}, s{sS}, 224")
    A(f"s_add_u32 s{sA1}, s{sA1}, s{sA0}")
    for tt in range(28):
        A(f"s_add_u32 s{sA0}, s{sA1}, {tt*4*3584}")
        A(f"buffer_load_dwordx4 {gu_tile(tt,0)}, v{wOFFG}, {sr(sWG,4)}, s{sA0} offen nt")
        A(f"buffer_load_dwordx4 {gu_tile(tt,1)}, v{wOFFG}, {sr(sWU,4)}, s{sA0} offen nt")
    A(f"s_mul_i32 s{sA1}, s{sS}, {112*896}")
    A(f"s_lshl_b32 s{sA0}, s3, 8")
    A(f"s_add_u32 s{sA1}, s{sA1}, s{sA0}")
    A(f"s_lshl_b32 s{sA2}, s3, 11")
    A("s_cmp_eq_u32 s3, 3")
    A("s_cbranch_scc1 L_SVD3")
    for rg in range(14):
        A(f"s_add_u32 m0, s{sA2}, {(rg*7+1)*1024}")
        A(f"s_add_u32 s{sA0}, s{sA1}, {rg*8*896+128}")
        A(f"buffer_load_dwordx4 v{wOFF8}, {sr(sWD,4)}, s{sA0} offen nt lds")
    LAB("L_SVD3")
    for rg in range(14):
        A(f"s_add_u32 m0, s{sA2}, {(rg*7)*1024}")
        A(f"s_add_u32 s{sA0}, s{sA1}, {rg*8*896}")
        A(f"buffer_load_dwordx4 v{wOFF8}, {sr(sWD,4)}, s{sA0} offen nt lds")
    A(f"v_and_b32 v{t+1}, 15, v0")
    A(f"v_lshlrev_b32 v{t+1}, 2, v{t+1}")
    LAB("L_SVFL")
    A(f"buffer_load_dword v{t}, v{t+1}, {sr(sDBG,4)}, 0 offen sc1")
    A("s_waitcnt vmcnt(0)")
    A(f"v_cmp_eq_u32 vcc, 0, v{t}")
    A("s_cbranch_vccz L_SVLOOP")
    spin_guard("L_SVFL")

    LAB("L_SVLOOP")
    A(f"s_and_b32 s{sBX}, s{sKK}, 1")
    A(f"s_mul_i32 s{sBX}, s{sBX}, 1792")
    A(f"s_sub_u32 s{sA1}, s{sKK}, 2")
    A(f"s_mul_i32 s{sA1}, s{sA1}, {15*PSLOT}")
    A(f"s_add_u32 s{sA1}, s{sA1}, s{sMYREG}")
    A(f"s_add_u32 s{sA1}, s{sA1}, {P_OFF}")
    if MLPOLL:
        LAB("L_WG0")
        A(f"buffer_load_dwordx2 {vr(t+16,2)}, v{wML}, {sr(sWS,4)}, s{sA1} offen sc1")
        A("s_waitcnt vmcnt(0)")
        check_sentinel([t+16, t+17], t+18, "L_WG0", "L_WG0OK")
    LAB("L_WG")
    A(f"buffer_load_dwordx2 {vr(t+16,2)}, v{wML}, {sr(sWS,4)}, s{sA1} offen sc1")
    for c in range(15):
        A(f"s_add_u32 s{sA0}, s{sA1}, {c*PSLOT}")
        A(f"buffer_load_dword v{t+c}, v{wGOFF}, {sr(sWS,4)}, s{sA0} offen sc1")
    A("s_waitcnt vmcnt(0)")
    check_sentinel(list(range(t, t+15)) + [t+16, t+17], t+18, "L_WG", "L_WGOK")
    if DEBUG_TS:
        A(f"s_lshl_b32 s95, s{sKK}, 5")
        TS(0, "s95")
    A(f"v_mov_b32 v{t+18}, v{t+16}")
    row_reduce("v_max_f32", t+18)
    A(f"v_sub_f32 v{t+16}, v{t+16}, v{t+18}")
    A(f"v_exp_f32 v{t+16}, v{t+16}")
    A(f"v_and_b32 v{t+19}, 15, v0")
    A(f"v_cmp_gt_u32 vcc, 15, v{t+19}")
    A(f"v_mul_f32 v{t+17}, v{t+16}, v{t+17}")
    NOP(1)
    A(f"v_cndmask_b32 v{t+17}, 0, v{t+17}, vcc")
    row_reduce("v_add_f32", t+17)
    A(f"v_rcp_f32 v{t+17}, v{t+17}")
    A(f"v_mov_b32 v{t+18}, 0")
    A(f"v_mul_f32 v{t+16}, v{t+16}, v{t+17}")
    NOP(2)
    for c in range(15):
        A(f"v_fmac_f32_dpp v{t+18}, v{t+16}, v{t+c} row_newbcast:{c} {DPPM}")
    A(f"v_cvt_pk_bf16_f32 v{t+30}, v{t+18}, v{t+18}")
    NOP(2)
    for rg in range(8):
        bt = t + 28 + (rg % 2)
        bb = (wB, t+32)[rg % 2]
        bcast8(bt, t+30, rg)
        for j in range(4):
            A(f"v_and_b32 v{bb+j}, v{bt}, v{wM8+j}")
        NOP(2)
        for cg in range(7):
            c = "0" if rg == 0 else vr(t+4*cg, 4)
            A(f"v_mfma_f32_16x16x32_bf16 {vr(t+4*cg,4)}, {wo_tile(rg,cg)}, {vr(bb,4)}, {c}")
    NOP(8)
    exec_set(0xff00ff0000ff00ff)
    for cg in range(7):
        A(f"ds_write_b128 v{wR2W}, {vr(t+4*cg,4)} offset:{cg*256}")
    exec_all()
    A("s_waitcnt lgkmcnt(0)")
    A("s_barrier")
    exec_set((1 << 56) - 1)
    A(f"v_add_u32 v{t+16}, {LDS_RED2}, v{wPI8}")
    for p in range(8):
        A(f"ds_read_b64 {vr(t+2*p,2)}, v{t+16} offset:{p*1792}")
    A(f"s_sub_u32 s{sA1}, s{sKK}, 2")
    A(f"s_mul_i32 s{sA1}, s{sA1}, 1792")
    A(f"s_add_u32 s{sA1}, s{sA1}, s{sMYREG}")
    A("s_waitcnt lgkmcnt(0)")
    for p in range(1, 8):
        A(f"v_add_f32 v{t}, v{t}, v{t+2*p}")
        A(f"v_add_f32 v{t+1}, v{t+1}, v{t+2*p+1}")
    A(f"v_min_u32 v{t}, -2, v{t}")
    A(f"v_min_u32 v{t+1}, -2, v{t+1}")
    A(f"buffer_store_dwordx2 {vr(t,2)}, v{wPI8}, {sr(sWS,4)}, s{sA1} offen offset:{Y_OFF} sc1")
    exec_all()
    if DEBUG_TS:
        A(f"s_lshl_b32 s95, s{sKK}, 5")
        A("s_add_u32 s95, s95, 4")
        TS(0, "s95")
    A(f"s_add_u32 s{sBX}, s{sBX}, {LDS_X}")
    gather_vec(Y_OFF, "Y")
    A(f"ds_write_b64 v{t+34}, {vr(t,2)}")
    exec_all()
    A(f"s_sub_u32 s{sBX}, s{sBX}, {LDS_X}")
    A("s_waitcnt lgkmcnt(0)")
    A("s_barrier")
    if DEBUG_TS:
        A(f"s_lshl_b32 s95, s{sKK}, 5")
        A("s_add_u32 s95, s95, 8")
        TS(0, "s95")
    XP = t + 12
    layernorm(XP, XP+1)
    AG, AU = t+16, t+20
    for tt in range(28):
        bb = (wB, t+24)[tt % 2]
        for j in range(4):
            A(f"v_and_b32_dpp v{bb+j}, v{XP+tt//16}, v{wM16+j} row_newbcast:{tt%16} {DPPM}")
        NOP(2)
        for m, acc in ((0, AG), (1, AU)):
            c = "0" if tt == 0 else vr(acc, 4)
            A(f"v_mfma_f32_16x16x32_bf16 {vr(acc,4)}, {gu_tile(tt,m)}, {vr(bb,4)}, {c}")
    red_write(AG, AU)
    for k in range(2):
        for m in range(2):
            A(f"ds_read_b128 {vr(t+4*(2*k+m),4)}, v{wHR} offset:{m*2048 + k*1024}")
    DT = t + 20
    A(f"s_lshl_b32 s{sA0}, s3, 11")
    A(f"v_add_u32 v{t+16}, s{sA0}, v{wL16}")
    A(f"v_add_u32 v{t+17}, {56*1024}, v{t+16}")
    def dread(i):
        rg, ci = i // 2, i % 2
        if rg < 8:
            A(f"ds_read_b128 {vr(DT+4*(i%4),4)}, v{t+16} offset:{(rg*7+ci)*1024}")
        else:
            A(f"ds_read_b128 {vr(DT+4*(i%4),4)}, v{t+17} offset:{((rg-8)*7+ci)*1024}")
    for i in range(4):
        dread(i)
    A("s_waitcnt lgkmcnt(4)")
    for q in range(4):
        b = t + 4*q
        A(f"v_add_f32 v{b}, v{b}, v{b+1}")
        A(f"v_add_f32 v{b+2}, v{b+2}, v{b+3}")
    for q in range(4):
        b = t + 4*q
        A(f"v_add_f32 v{b}, v{b}, v{b+2}")
    for q in range(4):
        bf16_round(t+4*q, t+4*q)
    for k in range(2):
        A(f"v_mul_f32 v{t+8*k}, {f32(-LOG2E)}, v{t+8*k}")
    for k in range(2):
        A(f"v_exp_f32 v{t+8*k}, v{t+8*k}")
    NOP(1)
    for k in range(2):
        A(f"v_add_f32 v{t+8*k}, 1.0, v{t+8*k}")
    for k in range(2):
        A(f"v_rcp_f32 v{t+8*k}, v{t+8*k}")
    NOP(1)
    for k in range(2):
        bf16_round(t+8*k, t+8*k)
    for k in range(2):
        A(f"v_mul_f32 v{t+8*k}, v{t+8*k}, v{t+8*k+4}")
    HP = (t+1, t+2)
    for k in range(2):
        A(f"v_cvt_pk_bf16_f32 v{HP[k]}, v{t+8*k}, v{t+8*k}")
    NOP(2)
    AD = (t+4, t+8)
    for rg in range(14):
        bt = t + 3
        bb = (wB, t+12)[rg % 2]
        bcast8(bt, HP[rg // 8], rg % 8)
        for j in range(4):
            A(f"v_and_b32 v{bb+j}, v{bt}, v{wM8+j}")
        for ci in range(2):
            i = rg*2 + ci
            rem = min(27 - i, 3)
            A(f"s_waitcnt lgkmcnt({rem})")
            if ci == 0:
                NOP(1)
            c = "0" if rg == 0 else vr(AD[ci], 4)
            A(f"v_mfma_f32_16x16x32_bf16 {vr(AD[ci],4)}, {vr(DT+4*(i%4),4)}, {vr(bb,4)}, {c}")
            if i + 4 < 28:
                dread(i + 4)
    NOP(8)
    for k in range(8):
        A(f"v_mov_b32_dpp v{t+12+k}, v{t+4+k} row_ror:8 {DPPM}")
    NOP(1)
    for k in range(8):
        A(f"v_permlane32_swap_b32 v{t+12+k}, v{t+20+k}")
    NOP(1)
    for k in range(8):
        A(f"v_add_f32 v{t+4+k}, v{t+4+k}, v{t+20+k}")
    for k in range(8):
        A(f"v_min_u32 v{t+4+k}, -2, v{t+4+k}")
    A(f"s_sub_u32 s{sA1}, s{sKK}, 2")
    A(f"s_mul_i32 s{sA1}, s{sA1}, 1792")
    A(f"s_add_u32 s{sA1}, s{sA1}, s{sMYREG}")
    A(f"s_add_u32 s{sA1}, s{sA1}, {Z_OFF}")
    A("s_cmp_eq_u32 s3, 3")
    A(f"s_cselect_b32 s{sA2}, 0x80000000, s{sA1}")
    exec_set(0x00ff00ff)
    A(f"buffer_store_dwordx4 {vr(t+4,4)}, v{wZOFF}, {sr(sWS,4)}, s{sA1} offen sc1")
    A(f"buffer_store_dwordx4 {vr(t+8,4)}, v{wZOFF}, {sr(sWS,4)}, s{sA2} offen offset:256 sc1")
    exec_all()
    if DEBUG_TS:
        A(f"s_lshl_b32 s95, s{sKK}, 5")
        A("s_add_u32 s95, s95, 12")
        TS(0, "s95")
    A(f"s_cmp_lt_u32 s{sKK}, 4")
    A("s_cbranch_scc1 L_SVZ")
    A(f"s_cmp_lg_u32 s{sS}, 0")
    A("s_cbranch_scc1 L_SVNEXT")
    LAB("L_SVZ")
    NOP(2)
    A(f"s_add_u32 s{sBX}, s{sBX}, {LDS_X}")
    gather_vec(Z_OFF, "Z")
    A(f"s_sub_u32 s{sBX}, s{sBX}, {LDS_X}")
    A(f"s_cmp_lt_u32 s{sKK}, 4")
    A("s_cbranch_scc1 L_SVZ2")
    A(f"s_lshr_b32 s{sA0}, s{sBX}, 1")
    A(f"buffer_store_short_d16_hi v{t}, v{wC0}, {sr(sOUT,4)}, s{sA0} offen")
    A(f"buffer_store_short_d16_hi v{t+1}, v{wC0}, {sr(sOUT,4)}, s{sA0} offen offset:16")
    exec_all()
    if DEBUG_TS:
        A(f"s_lshl_b32 s95, s{sKK}, 5")
        A("s_add_u32 s95, s95, 16")
        TS(0, "s95", lite=True)
    A("s_branch L_SVNEXT")
    LAB("L_SVZ2")
    A(f"ds_write_b64 v{t+34}, {vr(t,2)}")
    exec_all()
    A("s_waitcnt lgkmcnt(0)")
    LAB("L_SVQ")
    A("s_barrier")
    if DEBUG_TS:
        A(f"s_lshl_b32 s95, s{sKK}, 5")
        A("s_add_u32 s95, s95, 16")
        TS(0, "s95")
    layernorm(XP, XP+1)
    wq_base()
    A(f"v_add_u32 v{t+14}, s{sRINGB}, v{wL16}")
    QT = t + 28
    for tt in range(28):
        bb = (wB, t+24)[tt % 2]
        for h in range(2):
            i = tt*2 + h
            outstanding_after = min(55 - i, NRING - 1 - h)
            if h == 0:
                A(f"s_waitcnt vmcnt({max(min(55 - i - 1, NRING - 2), 0)})")
            A(f"ds_read_b128 {vr(QT+4*h,4)}, v{t+14} offset:{(i % NRING)*1024}")
        for j in range(4):
            A(f"v_and_b32_dpp v{bb+j}, v{XP+tt//16}, v{wM16+j} row_newbcast:{tt%16} {DPPM}")
        A("s_waitcnt lgkmcnt(0)")
        for h in range(2):
            i = tt*2 + h
            if i + NRING < 56:
                wq_dma(i + NRING)
        NOP(1)
        for h, acc in ((0, AG), (1, AU)):
            c = "0" if tt == 0 else vr(acc, 4)
            A(f"v_mfma_f32_16x16x32_bf16 {vr(acc,4)}, {vr(QT+4*h,4)}, {vr(bb,4)}, {c}")
        NOP(4)
    for i in range(NRING):
        wq_dma(i)
    red_write(AG, AU)
    q_publish("L_SVQDONE")
    if DEBUG_TS:
        A(f"s_lshl_b32 s95, s{sKK}, 5")
        A("s_add_u32 s95, s95, 20")
        TS(0, "s95")
    LAB("L_SVNEXT")
    A(f"s_add_u32 s{sKK}, s{sKK}, 1")
    A(f"s_cmp_lt_u32 s{sKK}, 6")
    A("s_cbranch_scc1 L_SVLOOP")

def main():
    global DEBUG_TS
    out = f"cdna_kernels/{NAME}.s"
    for a in sys.argv[1:]:
        if a == "--ts":
            DEBUG_TS = True
        elif a.startswith("--mall="):
            globals()["MALLMASK"] = int(a[7:])
        elif a.startswith("--statq="):
            globals()["STATQ"] = int(a[8:])
        elif a.startswith("--codepf="):
            globals()["CODEPF"] = int(a[9:])
        elif a == "--probe":
            globals()["PROBE"] = True
        elif a == "--wqnt":
            globals()["WQPOL"] = "nt"
        elif a == "--nocomp":
            globals()["NOCOMP"] = True
        elif a == "--mlpoll":
            globals()["MLPOLL"] = True
        elif a == "--tslite":
            DEBUG_TS = True
            globals()["TSLITE"] = True
        elif a == "--statdef":
            globals()["STATPOL"] = ""
        else:
            out = a
    header()
    stream()
    service()
    footer()
    open(out, "w").write("\n".join(x for x in L if x is not None) + "\n")
    print("wrote", out, len(L), "lines")

main()
```

```python
import struct, sys

NAME = "interleave_layers__mha_block_cached__glu_gated_glu__decode"
DEBUG_TS = False
SPIN_MAX = 400000
STATPOL = "nt"
CODEPF = 3
PROBE = False
WQPOL = ""
NOCOMP = 0
MLPOLL = True
TSLITE = False
XHALF = 0
FIX = "--fix" in sys.argv
STATQ = 16
MALLMASK = None

def f32(x):
    return "0x%08x" % struct.unpack("<I", struct.pack("<f", x))[0]

LOG2E = 1.4426950408889634
REGION = 98304
Q_OFF, Y_OFF, Z_OFF, P_OFF = 256, 2304, 9472, 16640
PSLOT = 1152
CLEAR_PER_WAVE = 21
NDYN = 784
NSTAT = 240
TS_OFF = 0x200000

L = []
def A(s):
    L.append("    " + s)
def LAB(s):
    L.append(s + ":")
def NOP(n):
    if n > 0:
        A(f"s_nop {n-1}")
def vr(a, n):
    return f"v[{a}:{a+n-1}]"
def ar(a, n):
    return f"a[{a}:{a+n-1}]"
def sr(a, n):
    return f"s[{a}:{a+n-1}]"
DPPM = "row_mask:0xf bank_mask:0xf"

def srd(dst, ptr, nbytes):
    A(f"s_mov_b32 s{dst}, s{ptr}")
    A(f"s_and_b32 s{dst+1}, s{ptr+1}, 0xffff")
    A(f"s_mov_b32 s{dst+2}, {nbytes}")
    A(f"s_mov_b32 s{dst+3}, 0x20000")

def exec_set(val):
    lo, hi = val & 0xffffffff, val >> 32
    A(f"s_mov_b32 exec_lo, 0x{lo:x}")
    A(f"s_mov_b32 exec_hi, 0x{hi:x}")
def exec_all():
    A("s_mov_b64 exec, -1")

def xrow_reduce(op, x, t):
    A(f"v_mov_b32 v{t}, v{x}")
    NOP(2)
    A(f"v_permlane16_swap_b32 v{x}, v{t}")
    NOP(1)
    A(f"{op} v{x}, v{x}, v{t}")
    A(f"v_mov_b32 v{t}, v{x}")
    NOP(2)
    A(f"v_permlane32_swap_b32 v{x}, v{t}")
    NOP(1)
    A(f"{op} v{x}, v{x}, v{t}")

def row_reduce(op, x):
    for ctl in ("quad_perm:[1,0,3,2]", "quad_perm:[2,3,0,1]", "row_half_mirror", "row_mirror"):
        NOP(2)
        A(f"{op}_dpp v{x}, v{x}, v{x} {ctl} {DPPM}")

def wave_reduce(op, x, t):
    row_reduce(op, x)
    xrow_reduce(op, x, t)

def bf16_round(dst, src):
    A(f"v_cvt_pk_bf16_f32 v{dst}, v{src}, v{src}")
    A(f"v_and_b32 v{dst}, 0xffff0000, v{dst}")

def PR(i):
    if DEBUG_TS and PROBE:
        A(f"s_memtime s[{16+2*i}:{17+2*i}]")
def PRDUMP(n):
    if DEBUG_TS and PROBE:
        A("s_waitcnt lgkmcnt(0)")
        A("s_mov_b64 exec, 1")
        A("v_mov_b32 v63, 0")
        for i in range(n):
            A(f"v_mov_b32 v62, s{16+2*i}")
            A(f"buffer_store_dword v62, v63, s[48:51], s97 offen offset:{224+4*i}")
        exec_all()

TSREG = [62]
def TS(idx_sgpr_or_const, slot, lite=False):
    if not DEBUG_TS or (TSLITE and not lite):
        return
    A("s_memrealtime s[98:99]")
    A("s_waitcnt lgkmcnt(0)")
    A(f"v_mov_b32 v{TSREG[0]}, s98")
    A(f"s_add_u32 s98, s97, {slot*4}" if isinstance(slot, int) else f"s_add_u32 s98, s97, {slot}")
    A("s_mov_b64 s[100:101], exec")
    A("s_mov_b64 exec, 1")
    A(f"buffer_store_dword v{TSREG[0]}, off, s[48:51], s98")
    A("s_mov_b64 exec, s[100:101]")

def header():
    L.append("; Kernarg: 0 A_x, 8 A_k_cache, 16 A_v_cache, 24 A_wq, 32 A_wo, 40 B_x, 48 B_w_gate, 56 B_w_up,")
    L.append("; @launch grid=(256,1,1) block=(256,1,1) lds=163840")
    L.append('.amdgcn_target "amdgcn-amd-amdhsa--gfx950"')
    L.append(".text")
    L.append(f".globl {NAME}_kernel")
    L.append(".p2align 8")
    L.append(f".type {NAME}_kernel,@function")
    LAB(f"{NAME}_kernel")
    A("s_cmp_ge_u32 s2, 256")
    A("s_cbranch_scc1 L_END")
    A("s_load_dwordx16 s[16:31], s[0:1], 0")
    A("s_load_dwordx8 s[32:39], s[0:1], 64")
    if CODEPF:
        A("s_getpc_b64 s[4:5]")
        A("v_lshlrev_b32 v2, 6, v0")
        for i in range(CODEPF):
            A(f"global_load_dword v63, v2, s[4:5]")
            A(f"v_add_u32 v2, 0x4000, v2")
    A("v_lshrrev_b32 v1, 6, v0")
    A("v_and_b32 v0, 63, v0")
    A("v_readfirstlane_b32 s3, v1")
    A(f"s_mov_b32 s96, {SPIN_MAX}")
    A("s_waitcnt lgkmcnt(0)")
    srd(48, 38, 0x40000000 if DEBUG_TS else 16 * REGION)
    srd(52, 36, 256)
    if DEBUG_TS:
        A("s_lshl_b32 s97, s2, 2")
        A("s_add_u32 s97, s97, s3")
        A("s_lshl_b32 s97, s97, 8")
        A(f"s_add_u32 s97, s97, {TS_OFF}")
    A("s_cmp_lt_u32 s2, 16")
    A("s_cbranch_scc1 L_SERVICE")

def footer():
    LAB("L_END")
    A("s_endpgm")
    L.append(f".fill (({NAME}_kernel + {CODEPF*16384+256} - .) / 4), 4, 0xbf800000")
    L.append('.section .rodata,"a"')
    L.append(".p2align 6")
    L.append(f".amdhsa_kernel {NAME}_kernel")
    L.append("  .amdhsa_next_free_vgpr 512")
    L.append("  .amdhsa_next_free_sgpr 102")
    L.append("  .amdhsa_accum_offset 256")
    L.append("  .amdhsa_group_segment_fixed_size 0")
    L.append("  .amdhsa_kernarg_size 96")
    L.append("  .amdhsa_user_sgpr_count 2")
    L.append("  .amdhsa_user_sgpr_kernarg_segment_ptr 1")
    L.append("  .amdhsa_system_sgpr_workgroup_id_x 1")
    L.append("  .amdhsa_float_denorm_mode_32 3")
    L.append(".end_amdhsa_kernel")

def spin_guard(label_retry):
    A("s_sleep 2")
    A("s_sub_u32 s96, s96, 1")
    A("s_cmp_eq_u32 s96, 0")
    A("s_cbranch_scc1 L_END")
    A(f"s_branch {label_retry}")

def masks16(m, t):
    A(f"v_and_b32 v{t}, 15, v0")
    A(f"v_and_b32 v{t+1}, 1, v0")
    A(f"v_lshlrev_b32 v{t+1}, 4, v{t+1}")
    A(f"v_mov_b32 v{m}, 0xffff")
    A(f"v_lshlrev_b32 v{t+1}, v{t+1}, v{m}")
    A(f"v_lshrrev_b32 v{t}, 1, v{t}")
    for j in range(4):
        A(f"v_cmp_eq_u32 vcc, {j}, v{t}")
        NOP(2)
        A(f"v_cndmask_b32 v{m+j}, 0, v{t+1}, vcc")

def masks8(m, t):
    A(f"v_and_b32 v{t}, 7, v0")
    A(f"v_and_b32 v{t+1}, 1, v0")
    A(f"v_lshlrev_b32 v{t+1}, 4, v{t+1}")
    A(f"v_mov_b32 v{m}, 0xffff")
    A(f"v_lshlrev_b32 v{t+1}, v{t+1}, v{m}")
    A(f"v_lshrrev_b32 v{t}, 1, v{t}")
    for j in range(4):
        A(f"v_cmp_eq_u32 vcc, {j}, v{t}")
        NOP(2)
        A(f"v_cndmask_b32 v{m+j}, 0, v{t+1}, vcc")

vKOFF, vVOFF, vTICK = 1, 2, 3
vMSK = 4
vM, vL = 8, 9
vQN = 10
vS0, vS1, vSa, vSb = 12, 13, 14, 15
vX, vY, vF, vT = vSa, vSb, vSb, vSb
vP0, vP1 = vS0, vS1
vB0, vB1 = 16, 20
vACC = 24
vQ = 32
VX = 48
RING = 64
KST = 128
sK, sV, sWS, sDBG = 40, 44, 48, 52
sHEAD, sC, sWV, sHOFF = 4, 5, 6, 7
sLDPH, sLIM, sTB, sNOFF, sCUR, sPROC, sQTAG, sT0 = 8, 9, 10, 11, 12, 13, 14, 15
sCC, sREG, sT1, sT2, sT3, sPEND, sLDSK, sHELD, sHV, sFIX = 72, 73, 74, 75, 76, 77, 78, 79, 80, 81
LDS_KW = 9 * 4096
LDS_SCR = 4 * LDS_KW
LDS_PART = LDS_SCR
LDS_CNT = LDS_SCR + 8448
LDS_QB = LDS_SCR + 8704
FIRST = [300 if FIX else 240, 270]
NDYNB = [1024 - FIRST[0], 1024 - FIRST[1]]

def loadK(dst, soff, pol="nt"):
    for j in range(4):
        A(f"buffer_load_dwordx4 {vr(dst+4*j,4)}, v{vKOFF}, {sr(sK,4)}, s{soff} offen offset:{128*j} {pol}")
def loadV(dst, soff, agpr=False, pol="nt"):
    for j in range(4):
        d = ar(dst+4*j, 4) if agpr else vr(dst+4*j, 4)
        A(f"buffer_load_dwordx4 {d}, v{vVOFF}, {sr(sV,4)}, s{soff} offen offset:{256*j} {pol}")

def kdots(R, S):
    for i in range(8):
        for (acc, k) in ((vSa, i), (vSb, 8 + i)):
            c = "0" if i == 0 else f"v{acc}"
            A(f"v_dot2_f32_bf16 v{acc}, v{R+k}, v{vQ+k}, {c}")
    NOP(3)
    A(f"v_add_f32 v{S}, v{vSa}, v{vSb}")

def kdots_lds(ldsoff, S):
    tmp = (vB0, vB1)
    A(f"ds_read_b128 {vr(tmp[0],4)}, v{vS1} offset:{ldsoff}")
    A(f"ds_read_b128 {vr(tmp[1],4)}, v{vS1} offset:{ldsoff+1024}")
    for j in range(4):
        A(f"s_waitcnt lgkmcnt({1 if j < 3 else 0})")
        acc = vSa if j % 2 == 0 else vSb
        for i in range(4):
            c = "0" if (j < 2 and i == 0) else f"v{acc}"
            A(f"v_dot2_f32_bf16 v{acc}, v{tmp[j%2]+i}, v{vQ+4*j+i}, {c}")
        if j < 2:
            A(f"ds_read_b128 {vr(tmp[j%2],4)}, v{vS1} offset:{ldsoff+1024*(j+2)}")
    NOP(3)
    A(f"v_add_f32 v{S}, v{vSa}, v{vSb}")

def softmax_update():
    for ctl in ("quad_perm:[1,0,3,2]", "quad_perm:[2,3,0,1]", "row_half_mirror"):
        NOP(1)
        A(f"v_add_f32_dpp v{vS0}, v{vS0}, v{vS0} {ctl} {DPPM}")
        A(f"v_add_f32_dpp v{vS1}, v{vS1}, v{vS1} {ctl} {DPPM}")
        NOP(1)
    A(f"v_cvt_pk_bf16_f32 v{vT}, v{vS0}, v{vS1}")
    A(f"v_lshlrev_b32 v{vS0}, 16, v{vT}")
    A(f"v_and_b32 v{vS1}, 0xffff0000, v{vT}")
    A(f"v_max_f32 v{vX}, v{vS0}, v{vS1}")
    NOP(2)
    A(f"v_max_f32_dpp v{vX}, v{vX}, v{vX} row_ror:8 {DPPM}")
    xrow_reduce("v_max_f32", vX, vY)
    A(f"v_mul_f32 v{vX}, s{sCC}, v{vX}")
    A(f"v_ceil_f32 v{vX}, v{vX}")
    A(f"v_max_f32 v{vX}, v{vX}, v{vM}")
    A(f"v_sub_f32 v{vF}, v{vM}, v{vX}")
    A(f"v_fma_f32 v{vS0}, v{vS0}, s{sCC}, -v{vX}")
    A(f"v_fma_f32 v{vS1}, v{vS1}, s{sCC}, -v{vX}")
    A(f"v_exp_f32 v{vF}, v{vF}")
    A(f"v_exp_f32 v{vS0}, v{vS0}")
    A(f"v_exp_f32 v{vS1}, v{vS1}")
    A(f"v_mov_b32 v{vM}, v{vX}")
    A(f"v_fma_f32 v{vL}, v{vL}, v{vF}, v{vS0}")
    A(f"v_cvt_pk_bf16_f32 v{vP0}, v{vS0}, v{vS0}")
    A(f"v_add_f32 v{vL}, v{vL}, v{vS1}")
    A(f"v_cvt_pk_bf16_f32 v{vP1}, v{vS1}, v{vS1}")
    for k in range(8):
        A(f"v_mul_f32 v{vACC+k}, v{vACC+k}, v{vF}")

def vmfma(R, P, agpr=False):
    rr = (lambda k: ar(R+4*k, 4)) if agpr else (lambda k: vr(R+4*k, 4))
    for j in range(4):
        A(f"v_and_b32 v{vB0+j}, v{P}, v{vMSK+j}")
    for j in range(4):
        A(f"v_and_b32_dpp v{vB1+j}, v{P}, v{vMSK+j} row_ror:8 {DPPM}")
    a0, a1 = vr(vACC, 4), vr(vACC+4, 4)
    A(f"v_mfma_f32_16x16x32_bf16 {a0}, {rr(0)}, {vr(vB0,4)}, {a0}")
    A(f"v_mfma_f32_16x16x32_bf16 {a1}, {rr(1)}, {vr(vB0,4)}, {a1}")
    A(f"v_mfma_f32_16x16x32_bf16 {a0}, {rr(2)}, {vr(vB1,4)}, {a0}")
    A(f"v_mfma_f32_16x16x32_bf16 {a1}, {rr(3)}, {vr(vB1,4)}, {a1}")

def ticket_atomic(dst):
    A("s_mov_b64 exec, 1")
    A(f"buffer_atomic_add v{dst}, off, {sr(sWS,4)}, s{sREG} sc0 sc1")
    exec_all()

def q_load(ph):
    A(f"s_lshl_b32 s{sT1}, s{ph}, 9")
    A(f"s_add_u32 s{sT1}, s{sT1}, s{sREG}")
    A(f"v_lshlrev_b32 v{vSa}, 3, v0")
    A(f"buffer_load_dwordx2 {vr(vQN,2)}, v{vSa}, {sr(sWS,4)}, s{sT1} offen offset:{Q_OFF} sc1")

dec_n = [0]
def decode(src, nxt):
    n = dec_n[0]; dec_n[0] += 1
    if FIX:
        A(f"s_mov_b32 s{sT0}, s{sHELD}")
        A(f"s_cmp_lg_u32 s{sHV}, 0")
        A(f"s_mov_b32 s{sHV}, 0")
        A(f"s_cbranch_scc1 L_DEC{n}")
    A(f"v_readfirstlane_b32 s{sT0}, v{src}")
    A(f"v_mov_b32 v{src}, 1")
    A(f"s_add_u32 s{sT0}, s{sT0}, 1")
    LAB(f"L_DEC{n}")
    A(f"s_cmp_lt_u32 s{sT0}, s{sLIM}")
    A(f"s_cbranch_scc1 L_DOK{n}")
    A(f"s_add_u32 s{sLDPH}, s{sLDPH}, 1")
    A(f"s_bitcmp1_b32 s{sLDPH}, 0")
    A(f"s_cselect_b32 s{sT1}, {FIRST[1] + 0x4000}, {FIRST[0]}" if FIRST[0] <= 64 else f"s_cselect_b32 s{sT1}, {FIRST[1] + 0x4000 - FIRST[0]}, 0")
    A(f"s_cselect_b32 s{sT3}, {NDYNB[1] - NDYNB[0]}, 0")
    if FIRST[0] > 64:
        A(f"s_add_u32 s{sT1}, s{sT1}, {FIRST[0]}")
    A(f"s_sub_u32 s{sT1}, s{sT1}, s{sLIM}")
    A(f"s_lshl_b32 s{sT1}, s{sT1}, 13")
    A(f"s_add_u32 s{sTB}, s{sT1}, s{sHOFF}")
    A(f"s_add_u32 s{sLIM}, s{sLIM}, s{sT3}")
    A(f"s_add_u32 s{sLIM}, s{sLIM}, {NDYNB[0]}")
    A(f"s_cmp_lt_u32 s{sLDPH}, 4")
    A(f"s_cbranch_scc0 L_DFIN{n}")
    q_load(sLDPH)
    A(f"s_mov_b32 s{sQTAG}, s{sLDPH}")
    if FIX:
        A(f"s_cmp_lg_u32 s{sLDPH}, 2")
        A(f"s_cbranch_scc1 L_DEC{n}")
        A(f"s_mov_b32 s{sHELD}, s{sT0}")
        A(f"s_mov_b32 s{sHV}, 1")
        A(f"s_mov_b32 s{sNOFF}, s{sFIX}")
        A(f"s_add_u32 s{sT3}, s{sFIX}, {60*4096}")
        A(f"s_branch L_DEND{n}")
    else:
        A(f"s_branch L_DEC{n}")
    LAB(f"L_DFIN{n}")
    A(f"s_mov_b32 s{sLIM}, -1")
    LAB(f"L_DOK{n}")
    A(f"s_lshl_b32 s{sNOFF}, s{sT0}, 13")
    A(f"s_add_u32 s{sNOFF}, s{sNOFF}, s{sTB}")
    A(f"s_cmp_ge_u32 s{sLDPH}, 4")
    A(f"s_cselect_b32 s{sNOFF}, 0x80000000, s{sNOFF}")
    A(f"s_add_u32 s{sT3}, s{sNOFF}, 4096")
    if nxt is not None:
        ticket_atomic(nxt)
    LAB(f"L_DEND{n}")

def static_loads(b, part):
    def soff(u):
        A(f"s_add_u32 s{sT1}, s{sT2}, {b*0x08000000 + u*60*4096}")
        A(f"s_waitcnt vmcnt({STATQ-4})")
    if part == 0:
        for u in range(4):
            soff(u); loadK(KST + (b*4+u)*16, sT1)
    elif part == 1:
        for u in range(4 + b):
            soff(4+u)
            for j in range(4):
                A(f"s_add_u32 m0, s{sLDSK}, {(b*4+u)*4096 + 896*j}")
                NOP(1)
                A(f"buffer_load_dwordx4 v{vKOFF}, {sr(sK,4)}, s{sT1} offen offset:{128*j} nt lds")
    else:
        for u in range(4*(part-2), 4*(part-2)+4):
            soff(u); loadV((b*8+u)*16, sT1, agpr=True)
        if part == 3 and b == 1:
            soff(8); loadV(VX, sT1)

def statics(b):
    for blk in range(4):
        if blk >= 2:
            A(f"v_lshl_add_u32 v{vS1}, v0, 4, s{sLDSK}")
        for i, S in ((0, vS0), (1, vS1)):
            u = blk*2 + i
            if u < 4:
                kdots(KST + (b*4+u)*16, S)
            else:
                kdots_lds((b*4+u-4)*4096, S)
        softmax_update()
        vmfma((b*8+blk*2)*16, vP0, agpr=True)
        vmfma((b*8+blk*2+1)*16, vP1, agpr=True)
        NOP(4)
    if b == 1:
        A(f"v_lshl_add_u32 v{vS1}, v0, 4, s{sLDSK}")
        kdots_lds(8*4096, vS0)
        A(f"v_mov_b32 v{vS1}, {f32(-1e30)}")
        softmax_update()
        vmfma(VX, vP0)
        NOP(4)

def stream():
    TSREG[0] = vB1 + 2
    TS(0, 0)
    A(f"s_sub_u32 s{sT0}, s2, 16")
    A(f"s_mul_hi_u32 s{sHEAD}, s{sT0}, 0x11111112")
    A(f"s_mul_i32 s{sT1}, s{sHEAD}, 15")
    A(f"s_sub_u32 s{sC}, s{sT0}, s{sT1}")
    A(f"s_lshl_b32 s{sWV}, s{sC}, 2")
    A(f"s_add_u32 s{sWV}, s{sWV}, s3")
    A(f"s_lshl_b32 s{sHOFF}, s{sHEAD}, 23")
    srd(sK, 18, 0x10000000)
    srd(sV, 20, 0x10000000)
    A(f"v_lshrrev_b32 v{vX}, 3, v0")
    A(f"v_and_b32 v{vY}, 7, v0")
    A(f"v_lshlrev_b32 v{vX}, 9, v{vX}")
    A(f"v_lshl_add_u32 v{vKOFF}, v{vY}, 4, v{vX}")
    A(f"v_lshrrev_b32 v{vX}, 4, v0")
    A(f"v_and_b32 v{vY}, 15, v0")
    A(f"v_lshlrev_b32 v{vX}, 10, v{vX}")
    A(f"v_lshl_add_u32 v{vVOFF}, v{vY}, 4, v{vX}")
    A(f"s_lshl_b32 s{sT2}, s{sWV}, 12")
    A(f"s_add_u32 s{sT2}, s{sT2}, s{sHOFF}")
    A(f"s_mul_i32 s{sLDSK}, s3, {LDS_KW}")
    if FIX:
        A(f"s_add_u32 s{sFIX}, s{sT2}, {480*4096}")
        A(f"s_add_u32 s{sT3}, s{sFIX}, {60*4096}")
        loadK(RING, sFIX); loadK(RING+16, sT3); loadV(RING+32, sFIX); loadV(RING+48, sT3)
    for part in range(4):
        static_loads(0, part)
    TS(0, 20)
    A(f"s_mov_b32 s{sCC}, {f32(LOG2E/16)}")
    A(f"s_mul_i32 s{sREG}, s{sHEAD}, {REGION}")
    A(f"v_mov_b32 v{vTICK}, 1")
    A(f"v_mov_b32 v{vS0}, 1")
    masks16(vMSK, vX)
    A(f"v_lshlrev_b32 v{vX}, 2, v0")
    A(f"v_and_b32 v{vX}, 12, v{vX}")
    A(f"v_add_u32 v{vX}, {LDS_CNT}, v{vX}")
    A(f"v_mov_b32 v{vY}, 0")
    A(f"ds_write_b32 v{vX}, v{vY}")
    A("s_waitcnt lgkmcnt(0)")
    A("s_barrier")
    A(f"s_lshl_b32 s{sT0}, s{sHEAD}, 2")
    A(f"buffer_load_dword v{vS1}, off, {sr(sDBG,4)}, s{sT0} sc1")
    for part in range(3):
        static_loads(1, part)
    LAB("L_FLAGCHK")
    A(f"v_readfirstlane_b32 s{sT1}, v{vS1}")
    NOP(2)
    A(f"s_cmp_lg_u32 s{sT1}, 0")
    A("s_cbranch_scc1 L_FLAGOK")
    A("s_sleep 2")
    A("s_sub_u32 s96, s96, 1")
    A("s_cmp_eq_u32 s96, 0")
    A("s_cbranch_scc1 L_END")
    A(f"buffer_load_dword v{vS1}, off, {sr(sDBG,4)}, s{sT0} sc1")
    A("s_waitcnt vmcnt(0)")
    A("s_branch L_FLAGCHK")
    LAB("L_FLAGOK")
    TS(0, 1)
    if not FIX:
        ticket_atomic(vS0)
    ticket_atomic(vTICK)
    A(f"s_mov_b32 s{sLDPH}, 0")
    q_load(sLDPH)
    static_loads(1, 3)
    A(f"s_mov_b32 s{sQTAG}, 0")
    A(f"s_mov_b32 s{sLIM}, {NDYNB[0]}")
    A(f"s_add_u32 s{sTB}, s{sHOFF}, {FIRST[0]*8192}")
    A(f"s_mov_b32 s{sPROC}, 0")
    A(f"s_mov_b32 s{sHV}, 0")
    A(f"s_mov_b32 s{sHELD}, 0")
    A("s_waitcnt vmcnt(16)")
    if not FIX:
        decode(vS0, None)
        loadK(RING, sNOFF); loadK(RING+16, sT3); loadV(RING+32, sNOFF); loadV(RING+48, sT3)
    A(f"s_mov_b32 s{sCUR}, s{sLDPH}")
    if not FIX:
        A("s_waitcnt vmcnt(12)")
    decode(vTICK, vTICK)
    A("s_branch L_SETUP")

    L.append(".p2align 6")
    LAB("L_LOOP")
    A("s_waitcnt vmcnt(12)")
    decode(vTICK, vTICK)
    A(f"s_cmp_lg_u32 s{sCUR}, s{sPROC}")
    A("s_cbranch_scc1 L_SWITCH")
    LAB("L_BODY")
    W = 12 if FIX else 13
    kdots(RING, vS0)
    loadK(RING, sNOFF)
    A(f"s_waitcnt vmcnt({W})")
    kdots(RING+16, vS1)
    loadK(RING+16, sT3)
    softmax_update()
    A(f"s_waitcnt vmcnt({W})")
    vmfma(RING+32, vP0)
    loadV(RING+32, sNOFF)
    A(f"s_waitcnt vmcnt({W})")
    vmfma(RING+48, vP1)
    loadV(RING+48, sT3)
    A(f"s_mov_b32 s{sCUR}, s{sLDPH}")
    A(f"s_cmp_eq_u32 s{sPEND}, 0")
    A("s_cbranch_scc1 L_LOOP")
    A(f"s_mov_b32 s{sPEND}, 1")
    LAB("L_DOSTAT")
    NOP(4)
    A(f"s_bitcmp1_b32 s{sPROC}, 0")
    A("s_cbranch_scc1 L_STAT1")
    statics(0)
    A("s_branch L_STATDONE")
    LAB("L_STAT1")
    statics(1)
    LAB("L_STATDONE")
    A(f"s_cmp_eq_u32 s{sPEND}, 1")
    A(f"s_mov_b32 s{sPEND}, 0")
    A("s_cbranch_scc1 L_LOOP")

    LAB("L_SWITCH")
    A(f"s_cmp_lg_u32 s{sPEND}, 0")
    A("s_cbranch_scc1 L_DOSTAT")
    A(f"s_and_b32 s{sT0}, s{sPROC}, 1")
    A(f"s_mul_i32 s{sT0}, s{sT0}, 4224")
    A(f"s_add_u32 s{sT0}, s{sT0}, {LDS_PART}")
    A(f"s_mul_i32 s{sT1}, s3, 1056")
    A(f"s_add_u32 s{sT1}, s{sT1}, s{sT0}")
    A(f"v_lshrrev_b32 v{vS0}, 4, v0")
    A(f"v_and_b32 v{vS1}, 15, v0")
    A(f"v_lshl_add_u32 v{vS0}, v{vS0}, 3, v{vS1}")
    A(f"v_lshl_add_u32 v{vX}, v{vS0}, 4, s{sT1}")
    A(f"v_add_f32_dpp v{vL}, v{vL}, v{vL} row_ror:8 {DPPM}")
    xrow_reduce("v_add_f32", vL, vY)
    exec_set(0x00ff00ff00ff00ff)
    A(f"ds_write_b128 v{vX}, {vr(vACC,4)}")
    A(f"ds_write_b128 v{vX}, {vr(vACC+4,4)} offset:512")
    A("s_mov_b64 exec, 1")
    A(f"ds_write_b64 v{vX}, {vr(vM,2)} offset:1024")
    A(f"s_lshl_b32 s{sT1}, s{sPROC}, 2")
    A(f"s_add_u32 s{sT1}, s{sT1}, {LDS_CNT}")
    A(f"v_mov_b32 v{vX}, s{sT1}")
    A(f"v_mov_b32 v{vY}, 1")
    A("s_waitcnt lgkmcnt(0)")
    A(f"ds_add_rtn_u32 v{vY}, v{vX}, v{vY}")
    A("s_waitcnt lgkmcnt(0)")
    A(f"v_readfirstlane_b32 s{sT1}, v{vY}")
    exec_all()
    NOP(2)
    A(f"s_cmp_lg_u32 s{sT1}, 3")
    A("s_cbranch_scc1 L_NOPUB")
    A(f"v_mov_b32 v{vX}, s{sT0}")
    A(f"v_lshl_add_u32 v{vY}, v0, 4, s{sT0}")
    for w in range(4):
        A(f"ds_read_b64 {vr(vB0+2*w,2)}, v{vX} offset:{1056*w+1024}")
    for w in range(4):
        A(f"ds_read_b128 {vr(vQ+4*w,4)}, v{vY} offset:{1056*w}")
    A(f"s_mul_i32 s{sT0}, s{sPROC}, 15")
    A(f"s_add_u32 s{sT0}, s{sT0}, s{sC}")
    A(f"s_mul_i32 s{sT0}, s{sT0}, {PSLOT}")
    A(f"s_add_u32 s{sT0}, s{sT0}, s{sREG}")
    A(f"s_add_u32 s{sT0}, s{sT0}, {P_OFF}")
    A(f"v_lshlrev_b32 v{vS0}, 4, v0")
    A("s_waitcnt lgkmcnt(4)")
    A(f"v_max3_f32 v{vM}, v{vB0}, v{vB0+2}, v{vB0+4}")
    A(f"v_max_f32 v{vM}, v{vM}, v{vB0+6}")
    for w in range(4):
        A(f"v_sub_f32 v{vB0+2*w}, v{vB0+2*w}, v{vM}")
    for w in range(4):
        A(f"v_exp_f32 v{vB0+2*w}, v{vB0+2*w}")
    NOP(1)
    A(f"v_mul_f32 v{vL}, v{vB0}, v{vB0+1}")
    for w in range(1, 4):
        A(f"v_fmac_f32 v{vL}, v{vB0+2*w}, v{vB0+2*w+1}")
    A("s_waitcnt lgkmcnt(0)")
    for r in range(4):
        A(f"v_mul_f32 v{vACC+r}, v{vB0}, v{vQ+r}")
    for w in range(1, 4):
        for r in range(4):
            A(f"v_fmac_f32 v{vACC+r}, v{vB0+2*w}, v{vQ+4*w+r}")
    for r in range(4):
        A(f"v_min_u32 v{vACC+r}, -2, v{vACC+r}")
    A(f"v_min_u32 v{vM}, -2, v{vM}")
    A(f"v_min_u32 v{vL}, -2, v{vL}")
    A(f"buffer_store_dwordx4 {vr(vACC,4)}, v{vS0}, {sr(sWS,4)}, s{sT0} offen sc1")
    A("s_mov_b64 exec, 1")
    A(f"buffer_store_dwordx2 {vr(vM,2)}, off, {sr(sWS,4)}, s{sT0} offset:1024 sc1")
    exec_all()
    NOP(2)
    LAB("L_NOPUB")
    if DEBUG_TS:
        A(f"s_lshl_b32 s95, s{sPROC}, 3")
        A("s_add_u32 s95, s95, 12")
        TS(0, "s95")
    A(f"s_add_u32 s{sPROC}, s{sPROC}, 1")
    A(f"s_cmp_ge_u32 s{sPROC}, 4")
    A("s_cbranch_scc1 L_END")
    LAB("L_SETUP")
    if DEBUG_TS:
        A(f"s_lshl_b32 s95, s{sPROC}, 2")
        A("s_add_u32 s95, s95, 64")
        TS(0, "s95")
    A(f"s_cmp_eq_u32 s{sQTAG}, s{sPROC}")
    A("s_cbranch_scc1 L_QCHK")
    LAB("L_QSLOW")
    A(f"s_mov_b32 s{sQTAG}, -1")
    q_load(sPROC)
    A("s_waitcnt vmcnt(0)")
    LAB("L_QCHK")
    A(f"v_max_u32 v{vX}, v{vQN}, v{vQN+1}")
    A(f"v_cmp_eq_u32 vcc, -1, v{vX}")
    A("s_cbranch_vccz L_QOK")
    spin_guard("L_QSLOW")
    LAB("L_QOK")
    A(f"s_lshl_b32 s{sT1}, s3, 9")
    A(f"s_add_u32 s{sT1}, s{sT1}, {LDS_QB}")
    A(f"v_lshl_add_u32 v{vS0}, v0, 3, s{sT1}")
    A(f"v_and_b32 v{vS1}, 7, v0")
    A(f"v_lshl_add_u32 v{vS1}, v{vS1}, 4, s{sT1}")
    A(f"ds_write_b64 v{vS0}, {vr(vQN,2)}")
    A("s_waitcnt lgkmcnt(0)")
    for j in range(4):
        A(f"ds_read_b128 {vr(vQ+4*j,4)}, v{vS1} offset:{128*j}")
    for k in range(8):
        A(f"v_mov_b32 v{vACC+k}, 0")
    A(f"v_mov_b32 v{vL}, 0")
    A(f"v_mov_b32 v{vM}, {f32(-1e30)}")
    A("s_waitcnt lgkmcnt(0)")
    if DEBUG_TS:
        A(f"s_lshl_b32 s95, s{sPROC}, 3")
        A("s_add_u32 s95, s95, 8")
        TS(0, "s95")
    A(f"s_mov_b32 s{sPEND}, 2")
    A(f"s_cmp_lg_u32 s{sCUR}, s{sPROC}")
    A("s_cbranch_scc1 L_SWITCH")
    A("s_branch L_BODY")
    TSREG[0] = 62

sS = 2
sX, sWQ, sWO, sWG, sWU, sWD, sOUT = 40, 44, 56, 60, 64, 68, 80
sKK, sBX, sMYREG = 4, 5, 6
sA0, sA1, sA2, sA3 = 7, 8, 9, 10
sRINGB = 11
wM8, wM16 = 4, 8
wOFF8, wOFFG, wOFFQ, wPI8 = 1, 2, 3, 12
wGOFF, wML, wR2W, wXPK = 13, 14, 15, 16
wRW, wHR, wL16, wZOFF = 17, 18, 19, 20
wL4, wZERO, wC0, wQR = 21, 22, 23, 0
wB = 24
wT = 28
RES_V = 64
LDS_DOWN = 0
LDS_RING = 100352
NRING = 10
LDS_X = LDS_RING + 4*NRING*1024
LDS_RED2 = LDS_X + 3584
LDS_RED = LDS_RED2 + 14336

def wo_tile(rg, cg):
    return ar((rg*7+cg)*4, 4)
def gu_tile(t, m):
    i = t*2 + m
    if i < 8:
        return ar(224 + i*4, 4)
    return vr(RES_V + (i-8)*4, 4)

def check_sentinel(regs, t, label_retry, label_ok):
    regs = list(regs)
    A(f"v_max_u32 v{t}, v{regs[0]}, v{regs[1]}")
    rest = regs[2:]
    while len(rest) >= 2:
        A(f"v_max3_u32 v{t}, v{t}, v{rest[0]}, v{rest[1]}")
        rest = rest[2:]
    if rest:
        A(f"v_max_u32 v{t}, v{t}, v{rest[0]}")
    A(f"v_cmp_eq_u32 vcc, -1, v{t}")
    A(f"s_cbranch_vccz {label_ok}")
    spin_guard(label_retry)
    LAB(label_ok)

def wq_dma(i):
    t, h = i // 2, i % 2
    A(f"s_add_u32 m0, s{sRINGB}, {(i % NRING)*1024}")
    A(f"s_add_u32 s{sA0}, s{sA3}, {t*4*8192 + h*256}")
    A(f"buffer_load_dwordx4 v{wOFFQ}, {sr(sWQ,4)}, s{sA0} offen lds")

def wq_base():
    A(f"s_mul_i32 s{sA3}, s3, {112*8192}")
    A(f"s_lshl_b32 s{sA0}, s{sS}, 9")
    A(f"s_add_u32 s{sA3}, s{sA3}, s{sA0}")

def dual_wave_sum(x, y, t0, t1):
    for ctl in ("quad_perm:[1,0,3,2]", "quad_perm:[2,3,0,1]", "row_half_mirror", "row_mirror"):
        NOP(1)
        A(f"v_add_f32_dpp v{x}, v{x}, v{x} {ctl} {DPPM}")
        A(f"v_add_f32_dpp v{y}, v{y}, v{y} {ctl} {DPPM}")
    for sw in ("v_permlane16_swap_b32", "v_permlane32_swap_b32"):
        A(f"v_mov_b32 v{t0}, v{x}")
        A(f"v_mov_b32 v{t1}, v{y}")
        NOP(1)
        A(f"{sw} v{x}, v{t0}")
        A(f"{sw} v{y}, v{t1}")
        A(f"v_add_f32 v{x}, v{x}, v{t0}")
        A(f"v_add_f32 v{y}, v{y}, v{t1}")

def layernorm(xp0, xp1):
    t = wT
    A(f"v_add_u32 v{t+10}, s{sBX}, v{wL4}")
    A(f"v_add_u32 v{t+11}, s{sBX}, v{wXPK}")
    A(f"s_add_u32 s{sA0}, s{sBX}, {LDS_X}")
    A(f"v_mov_b32 v{t+9}, s{sA0}")
    A(f"ds_read_b32 v{t+9}, v{t+9}")
    for k in range(3):
        A(f"ds_read2st64_b32 {vr(t+2*k,2)}, v{t+10} offset0:{2*k} offset1:{2*k+1}")
    A(f"ds_read_b32 v{t+6}, v{t+10} offset:1536")
    A(f"ds_read_b32 v{xp0}, v{t+11}")
    A(f"ds_read_b32 v{xp1}, v{t+11} offset:256")
    A("s_waitcnt lgkmcnt(2)")
    for k in range(7):
        A(f"v_sub_f32 v{t+k}, v{t+k}, v{t+9}")
    A(f"v_add_f32 v{t+8}, v{t}, v{t+1}")
    A(f"v_mul_f32 v{t+7}, v{t}, v{t}")
    for k in range(1, 7):
        A(f"v_fmac_f32 v{t+7}, v{t+k}, v{t+k}")
        if k >= 2:
            A(f"v_add_f32 v{t+8}, v{t+8}, v{t+k}")
    NOP(1)
    dual_wave_sum(t+8, t+7, t+10, t+11)
    A(f"v_mul_f32 v{t+8}, {f32(1/448)}, v{t+8}")
    A(f"v_mul_f32 v{t+7}, {f32(1/448)}, v{t+7}")
    A(f"v_fma_f32 v{t+7}, -v{t+8}, v{t+8}, v{t+7}")
    A(f"v_add_f32 v{t+8}, v{t+8}, v{t+9}")
    A(f"v_max_f32 v{t+7}, 0, v{t+7}")
    bf16_round(t+8, t+8)
    bf16_round(t+7, t+7)
    A("s_waitcnt lgkmcnt(0)")
    A(f"v_add_f32 v{t+7}, {f32(1e-5)}, v{t+7}")
    for x in (xp0, xp1):
        A(f"v_sub_f32 v{x}, v{x}, v{t+8}")
    bf16_round(t+7, t+7)
    A(f"v_sqrt_f32 v{t+7}, v{t+7}")
    for x in (xp0, xp1):
        bf16_round(x, x)
    bf16_round(t+7, t+7)
    A(f"v_rcp_f32 v{t+7}, v{t+7}")
    NOP(1)
    for x in (xp0, xp1):
        A(f"v_mul_f32 v{x}, v{x}, v{t+7}")
    for x in (xp0, xp1):
        A(f"v_cvt_pk_bf16_f32 v{x}, v{x}, v{x}")
    NOP(1)

def gemv16(XP, tile, acc0, acc1, bbs):
    def build(tt):
        for j in range(4):
            A(f"v_and_b32_dpp v{bbs[tt%2]+j}, v{XP+tt//16}, v{wM16+j} row_newbcast:{tt%16} {DPPM}")
    build(0)
    NOP(1)
    for tt in range(28):
        bb = vr(bbs[tt % 2], 4)
        NOP(1)
        A(f"v_mfma_f32_16x16x32_bf16 {vr(acc0,4)}, {tile(tt,0)}, {bb}, {'0' if tt == 0 else vr(acc0,4)}")
        if tt < 27:
            build(tt + 1)
        A(f"v_mfma_f32_16x16x32_bf16 {vr(acc1,4)}, {tile(tt,1)}, {bb}, {'0' if tt == 0 else vr(acc1,4)}")

def red_write(acc0, acc1):
    NOP(8)
    exec_set(0x00ff00ff00ff00ff)
    for m, acc in ((0, acc0), (1, acc1)):
        for r in range(4):
            A(f"ds_write_b32 v{wRW}, v{acc+r} offset:{m*2048 + r*128}")
    exec_all()
    A("s_waitcnt lgkmcnt(0)")
    A("s_barrier")

def gather_vec(off, tag):
    t = wT
    exec_set((1 << 56) - 1)
    A(f"s_sub_u32 s{sA1}, s{sKK}, 2")
    A(f"s_mul_i32 s{sA1}, s{sA1}, 1792")
    A(f"s_add_u32 s{sA1}, s{sA1}, {off}")
    A(f"v_add_u32 v{t+34}, s{sBX}, v{wPI8}")
    A(f"ds_read_b64 {vr(t+32,2)}, v{t+34} offset:{0}")
    LAB(f"L_G{tag}")
    for s in range(16):
        A(f"s_add_u32 s{sA0}, s{sA1}, {s*REGION}")
        A(f"buffer_load_dwordx2 {vr(t+2*s,2)}, v{wPI8}, {sr(sWS,4)}, s{sA0} offen offset:0 sc1")
    A("s_waitcnt vmcnt(0)")
    check_sentinel(range(t, t+32), t+35, f"L_G{tag}", f"L_G{tag}OK")
    for s in range(1, 16):
        A(f"v_add_f32 v{t}, v{t}, v{t+2*s}")
        A(f"v_add_f32 v{t+1}, v{t+1}, v{t+2*s+1}")
    bf16_round(t, t)
    bf16_round(t+1, t+1)
    A("s_waitcnt lgkmcnt(0)")
    A(f"v_add_f32 v{t}, v{t}, v{t+32}")
    A(f"v_add_f32 v{t+1}, v{t+1}, v{t+33}")
    bf16_round(t, t)
    bf16_round(t+1, t+1)

sHI = 12
def bcast8(dst, tmp, src, u):
    return [f"v_mov_b32_dpp v{dst}, v{src} row_newbcast:{u} {DPPM}",
            f"v_mov_b32_dpp v{tmp}, v{src} row_newbcast:{8+u} {DPPM}",
            f"v_cndmask_b32 v{dst}, v{dst}, v{tmp}, s[{sHI}:{sHI+1}]"]

def q_publish(done):
    t = wT
    A("s_cmp_ge_u32 s3, 2")
    A(f"s_cbranch_scc1 {done}")
    A(f"s_lshl_b32 s{sA0}, s3, 11")
    A(f"s_add_u32 s{sA0}, s{sA0}, {LDS_RED}")
    A(f"v_lshl_add_u32 v{t+8}, v0, 5, s{sA0}")
    A(f"ds_read_b128 {vr(t,4)}, v{t+8}")
    A(f"ds_read_b128 {vr(t+4,4)}, v{t+8} offset:16")
    A(f"s_lshl_b32 s{sA1}, s{sKK}, 9")
    A(f"s_add_u32 s{sA1}, s{sA1}, s{sMYREG}")
    A(f"s_lshl_b32 s{sA0}, s3, 8")
    A(f"s_add_u32 s{sA1}, s{sA1}, s{sA0}")
    A(f"v_lshlrev_b32 v{t+9}, 2, v0")
    A("s_waitcnt lgkmcnt(0)")
    for q in range(2):
        b = t + 4*q
        A(f"v_add_f32 v{b}, v{b}, v{b+1}")
        A(f"v_add_f32 v{b+2}, v{b+2}, v{b+3}")
        A(f"v_add_f32 v{b}, v{b}, v{b+2}")
    A(f"v_cvt_pk_bf16_f32 v{t}, v{t}, v{t+4}")
    A(f"v_min_u32 v{t}, -2, v{t}")
    A(f"buffer_store_dword v{t}, v{t+9}, {sr(sWS,4)}, s{sA1} offen offset:{Q_OFF} sc1")
    LAB(done)

def service():
    LAB("L_SERVICE")
    TS(0, 0, lite=True)
    t = wT
    srd(sX, 16, 1792)
    srd(sWQ, 22, 448*4096*2)
    srd(sWO, 24, 448*4096*2)
    srd(sWG, 28, 448*1792*2)
    srd(sWU, 30, 448*1792*2)
    srd(sWD, 32, 448*1792*2)
    srd(sOUT, 34, 1792)
    A(f"s_mul_i32 s{sMYREG}, s{sS}, {REGION}")
    A(f"s_mov_b32 s{sHI}, 0xff00ff00")
    A(f"s_mov_b32 s{sHI+1}, 0xff00ff00")
    for i in range(4):
        A(f"v_mov_b32 v{t+12+i}, -1")
    A(f"v_lshlrev_b32 v{wL16}, 4, v0")
    A(f"s_mul_i32 s{sA1}, s3, {CLEAR_PER_WAVE*1024}")
    A(f"s_add_u32 s{sA1}, s{sA1}, s{sMYREG}")
    for i in range(CLEAR_PER_WAVE):
        A(f"s_add_u32 s{sA0}, s{sA1}, {i*1024}")
        A(f"buffer_store_dwordx4 {vr(t+12,4)}, v{wL16}, {sr(sWS,4)}, s{sA0} offen sc1")
    G, N, U, E8 = t, t+1, t+2, t+3
    A(f"v_lshrrev_b32 v{G}, 4, v0")
    A(f"v_and_b32 v{N}, 15, v0")
    A(f"v_and_b32 v{U}, 7, v0")
    A(f"v_lshrrev_b32 v{E8}, 3, v0")
    A(f"v_lshlrev_b32 v{t+4}, 4, v{N}")
    A(f"s_movk_i32 s{sA0}, 0x2000")
    A(f"v_mad_u32_u24 v{wOFFQ}, v{G}, s{sA0}, v{t+4}")
    A(f"s_movk_i32 s{sA0}, 3584")
    A(f"v_mad_u32_u24 v{wOFFG}, v{G}, s{sA0}, v{t+4}")
    A(f"v_lshlrev_b32 v{t+4}, 4, v{U}")
    A(f"s_movk_i32 s{sA0}, 896")
    A(f"v_mad_u32_u24 v{wOFF8}, v{E8}, s{sA0}, v{t+4}")
    A(f"s_mul_i32 s{sRINGB}, s3, {NRING*1024}")
    A(f"s_add_u32 s{sRINGB}, s{sRINGB}, {LDS_RING}")
    wq_base()
    for i in range(56):
        if i == 8:
            A("s_waitcnt vmcnt(0)")
            A("s_barrier")
            A(f"v_mov_b32 v{t+17}, 0")
            A("s_cmp_lg_u32 s3, 0")
            A("s_cbranch_scc1 L_SVNOFLAG")
            A(f"s_lshl_b32 s{sA0}, s{sS}, 2")
            A(f"v_mov_b32 v{t+16}, 1")
            A("s_mov_b64 exec, 1")
            A(f"buffer_store_dword v{t+16}, v{t+17}, {sr(sDBG,4)}, s{sA0} offen sc1")
            exec_all()
            LAB("L_SVNOFLAG")
        A(f"s_add_u32 s{sA0}, s{sA3}, {(i//2)*4*8192 + (i%2)*256}")
        A(f"buffer_load_dwordx4 {ar(4*i,4)}, v{wOFFQ}, {sr(sWQ,4)}, s{sA0} offen {WQPOL}")
    A(f"s_mul_i32 s{sA0}, s3, 56")
    A(f"v_add_u32 v{t+4}, s{sA0}, v0")
    A(f"v_lshlrev_b32 v{wPI8}, 3, v{t+4}")
    A(f"v_lshlrev_b32 v{t+4}, 1, v{t+4}")
    A(f"v_and_b32 v{t+5}, 0xffffffe0, v{t+4}")
    A(f"v_and_b32 v{t+6}, 3, v{t+4}")
    A(f"v_lshl_add_u32 v{t+5}, v{t+6}, 3, v{t+5}")
    A(f"v_bfe_u32 v{t+6}, v{t+4}, 2, 3")
    A(f"v_add_u32 v{t+5}, v{t+5}, v{t+6}")
    A(f"v_lshlrev_b32 v{wC0}, 1, v{t+5}")
    exec_set((1 << 56) - 1)
    for b in range(2):
        for i in range(2):
            A(f"buffer_load_ushort v{t+8+2*b+i}, v{wC0}, {sr(sX,4)}, 0 offen offset:{b*896+16*i}")
    exec_all()
    masks8(wM8, t+16)
    masks16(wM16, t+16)
    A(f"v_mov_b32 v{wZERO}, 0")
    A(f"v_lshlrev_b32 v{wL4}, 2, v0")
    A(f"v_add_u32 v{wL4}, {LDS_X}, v{wL4}")
    A(f"v_lshrrev_b32 v{t+4}, 2, v{U}")
    A(f"v_lshlrev_b32 v{t+4}, 5, v{t+4}")
    A(f"v_lshl_add_u32 v{t+4}, v{E8}, 2, v{t+4}")
    A(f"v_and_b32 v{t+5}, 3, v0")
    A(f"v_add_u32 v{t+4}, v{t+4}, v{t+5}")
    A(f"s_lshl_b32 s{sA0}, s3, 6")
    A(f"v_add_u32 v{t+4}, s{sA0}, v{t+4}")
    A(f"v_lshlrev_b32 v{wGOFF}, 2, v{t+4}")
    A(f"v_min_u32 v{t+4}, 14, v{N}")
    A(f"v_mul_u32_u24 v{t+4}, {PSLOT}, v{t+4}")
    A(f"v_add_u32 v{wML}, 1024, v{t+4}")
    A(f"v_lshrrev_b32 v{t+4}, 1, v{G}")
    A(f"s_lshl_b32 s{sA0}, s3, 1")
    A(f"v_add_u32 v{t+4}, s{sA0}, v{t+4}")
    A(f"v_mul_u32_u24 v{t+4}, 1792, v{t+4}")
    A(f"v_and_b32 v{t+5}, 1, v{G}")
    A(f"v_lshlrev_b32 v{t+5}, 7, v{t+5}")
    A(f"v_lshl_add_u32 v{t+5}, v{U}, 4, v{t+5}")
    A(f"v_add_u32 v{t+4}, v{t+4}, v{t+5}")
    A(f"v_add_u32 v{wR2W}, {LDS_RED2}, v{t+4}")
    A(f"s_lshl_b32 s{sA0}, s3, 9")
    A(f"v_add_u32 v{wZOFF}, s{sA0}, v{t+5}")
    A(f"s_mul_i32 s{sA0}, s3, 112")
    A(f"v_lshl_add_u32 v{t+4}, v{N}, 2, v{G}")
    A(f"v_add_u32 v{t+4}, s{sA0}, v{t+4}")
    A(f"v_and_b32 v{t+5}, 0xffffffe0, v{t+4}")
    A(f"v_and_b32 v{t+6}, 7, v{t+4}")
    A(f"v_lshl_add_u32 v{t+5}, v{t+6}, 2, v{t+5}")
    A(f"v_bfe_u32 v{t+6}, v{t+4}, 3, 2")
    A(f"v_add_u32 v{t+5}, v{t+5}, v{t+6}")
    A(f"v_lshlrev_b32 v{t+5}, 2, v{t+5}")
    A(f"v_add_u32 v{wXPK}, {LDS_X}, v{t+5}")
    A(f"v_lshl_add_u32 v{t+4}, v{G}, 5, v{N}")
    A(f"v_lshlrev_b32 v{t+4}, 4, v{t+4}")
    A(f"s_lshl_b32 s{sA0}, s3, 2")
    A(f"s_add_u32 s{sA0}, s{sA0}, {LDS_RED}")
    A(f"v_add_u32 v{wRW}, s{sA0}, v{t+4}")
    A(f"v_lshl_add_u32 v{t+4}, v{U}, 3, v{E8}")
    A(f"v_lshlrev_b32 v{t+4}, 4, v{t+4}")
    A(f"v_add_u32 v{wHR}, {LDS_RED}, v{t+4}")
    if DEBUG_TS:
        TS(0, 1)
        TS(0, 2)
    A("s_waitcnt vmcnt(0)")
    TS(0, 3)
    for i in range(4):
        A(f"v_lshlrev_b32 v{t+8+i}, 16, v{t+8+i}")
    A(f"v_add_u32 v{wPI8}, {LDS_X}, v{wPI8}")
    exec_set((1 << 56) - 1)
    A(f"ds_write_b64 v{wPI8}, {vr(t+8,2)}")
    A(f"ds_write_b64 v{wPI8}, {vr(t+10,2)} offset:1792")
    exec_all()
    A(f"v_subrev_u32 v{wPI8}, {LDS_X}, v{wPI8}")
    A("s_waitcnt lgkmcnt(0)")
    A("s_barrier")
    A(f"s_mov_b32 s{sKK}, 0")
    XP = t + 12
    AG, AU = t+16, t+20
    LAB("L_SVQ0")
    A(f"s_mul_i32 s{sBX}, s{sKK}, 1792")
    if DEBUG_TS:
        A(f"s_lshl_b32 s95, s{sKK}, 5")
        A("s_add_u32 s95, s95, 16")
        TS(0, "s95")
    layernorm(XP, XP+1)
    gemv16(XP, lambda tt, h: ar(8*tt+4*h, 4), AG, AU, (wB, t+24))
    red_write(AG, AU)
    q_publish("L_SVQ0DONE")
    if DEBUG_TS:
        A(f"s_lshl_b32 s95, s{sKK}, 5")
        A("s_add_u32 s95, s95, 20")
        TS(0, "s95")
    A("s_waitcnt lgkmcnt(0)")
    A("s_barrier")
    A(f"s_add_u32 s{sKK}, s{sKK}, 1")
    A(f"s_cmp_lt_u32 s{sKK}, 2")
    A("s_cbranch_scc1 L_SVQ0")
    for i in range(NRING):
        wq_dma(i)
    A(f"s_lshl_b32 s{sA1}, s{sS}, 8")
    A(f"s_lshl_b32 s{sA0}, s3, 6")
    A(f"s_add_u32 s{sA1}, s{sA1}, s{sA0}")
    A(f"s_mul_i32 s{sA1}, s{sA1}, 896")
    for rg in range(8):
        A(f"s_add_u32 s{sA0}, s{sA1}, {rg*8*896}")
        for cg in range(7):
            A(f"buffer_load_dwordx4 {wo_tile(rg,cg)}, v{wOFF8}, {sr(sWO,4)}, s{sA0} offen offset:{cg*128} nt")
    A(f"s_mul_i32 s{sA1}, s3, {112*3584}")
    A(f"s_mul_i32 s{sA0}, s{sS}, 224")
    A(f"s_add_u32 s{sA1}, s{sA1}, s{sA0}")
    for tt in range(28):
        A(f"s_add_u32 s{sA0}, s{sA1}, {tt*4*3584}")
        A(f"buffer_load_dwordx4 {gu_tile(tt,0)}, v{wOFFG}, {sr(sWG,4)}, s{sA0} offen nt")
        A(f"buffer_load_dwordx4 {gu_tile(tt,1)}, v{wOFFG}, {sr(sWU,4)}, s{sA0} offen nt")
    A(f"s_mul_i32 s{sA1}, s{sS}, {112*896}")
    A(f"s_lshl_b32 s{sA0}, s3, 8")
    A(f"s_add_u32 s{sA1}, s{sA1}, s{sA0}")
    A(f"s_lshl_b32 s{sA2}, s3, 11")
    A("s_cmp_eq_u32 s3, 3")
    A("s_cbranch_scc1 L_SVD3")
    for rg in range(14):
        A(f"s_add_u32 m0, s{sA2}, {(rg*7+1)*1024}")
        A(f"s_add_u32 s{sA0}, s{sA1}, {rg*8*896+128}")
        A(f"buffer_load_dwordx4 v{wOFF8}, {sr(sWD,4)}, s{sA0} offen nt lds")
    LAB("L_SVD3")
    for rg in range(14):
        A(f"s_add_u32 m0, s{sA2}, {(rg*7)*1024}")
        A(f"s_add_u32 s{sA0}, s{sA1}, {rg*8*896}")
        A(f"buffer_load_dwordx4 v{wOFF8}, {sr(sWD,4)}, s{sA0} offen nt lds")
    A(f"v_and_b32 v{t+1}, 15, v0")
    A(f"v_lshlrev_b32 v{t+1}, 2, v{t+1}")
    LAB("L_SVFL")
    A(f"buffer_load_dword v{t}, v{t+1}, {sr(sDBG,4)}, 0 offen sc1")
    A("s_waitcnt vmcnt(0)")
    A(f"v_cmp_eq_u32 vcc, 0, v{t}")
    A("s_cbranch_vccz L_SVLOOP")
    spin_guard("L_SVFL")

    LAB("L_SVLOOP")
    A(f"s_and_b32 s{sBX}, s{sKK}, 1")
    A(f"s_mul_i32 s{sBX}, s{sBX}, 1792")
    A(f"s_sub_u32 s{sA1}, s{sKK}, 2")
    A(f"s_mul_i32 s{sA1}, s{sA1}, {15*PSLOT}")
    A(f"s_add_u32 s{sA1}, s{sA1}, s{sMYREG}")
    A(f"s_add_u32 s{sA1}, s{sA1}, {P_OFF}")
    if MLPOLL:
        A(f"s_cmp_eq_u32 s{sKK}, 5")
        A("s_cbranch_scc1 L_WG")
        LAB("L_WG0")
        A(f"buffer_load_dwordx2 {vr(t+16,2)}, v{wML}, {sr(sWS,4)}, s{sA1} offen sc1")
        A("s_waitcnt vmcnt(0)")
        check_sentinel([t+16, t+17], t+18, "L_WG0", "L_WG0OK")
    LAB("L_WG")
    A(f"buffer_load_dwordx2 {vr(t+16,2)}, v{wML}, {sr(sWS,4)}, s{sA1} offen sc1")
    for c in range(15):
        A(f"s_add_u32 s{sA0}, s{sA1}, {c*PSLOT}")
        A(f"buffer_load_dword v{t+c}, v{wGOFF}, {sr(sWS,4)}, s{sA0} offen sc1")
    A("s_waitcnt vmcnt(0)")
    check_sentinel(list(range(t, t+15)) + [t+16, t+17], t+18, "L_WG", "L_WGOK")
    if DEBUG_TS:
        A(f"s_lshl_b32 s95, s{sKK}, 5")
        TS(0, "s95")
    A(f"v_mov_b32 v{t+18}, v{t+16}")
    A(f"v_and_b32 v{t+19}, 15, v0")
    A(f"v_cmp_gt_u32 vcc, 15, v{t+19}")
    row_reduce("v_max_f32", t+18)
    A(f"v_sub_f32 v{t+16}, v{t+16}, v{t+18}")
    A(f"v_exp_f32 v{t+16}, v{t+16}")
    A(f"v_cndmask_b32 v{t+17}, 0, v{t+17}, vcc")
    A(f"v_mov_b32 v{t+18}, 0")
    A(f"v_mov_b32 v{t+19}, 0")
    A(f"v_mov_b32 v{t+20}, 0")
    A(f"v_mul_f32 v{t+17}, v{t+16}, v{t+17}")
    NOP(1)
    ctl4 = ("quad_perm:[1,0,3,2]", "quad_perm:[2,3,0,1]", "row_half_mirror", "row_mirror")
    for c in range(15):
        A(f"v_fmac_f32_dpp v{t+18+c%3}, v{t+16}, v{t+c} row_newbcast:{c} {DPPM}")
        if c % 3 == 1 and c // 3 < 4:
            A(f"v_add_f32_dpp v{t+17}, v{t+17}, v{t+17} {ctl4[c//3]} {DPPM}")
        if c == 12:
            A(f"v_rcp_f32 v{t+17}, v{t+17}")
    A(f"v_add_f32 v{t+18}, v{t+18}, v{t+19}")
    A(f"v_add_f32 v{t+18}, v{t+18}, v{t+20}")
    A(f"v_mul_f32 v{t+18}, v{t+18}, v{t+17}")
    A(f"v_cvt_pk_bf16_f32 v{t+30}, v{t+18}, v{t+18}")
    NOP(2)
    def wbuild(rg):
        bt = t + 28
        bb = (wB, t+32)[rg % 2]
        r = bcast8(bt, t+29, t+30, rg)
        r += [f"v_and_b32 v{bb+j}, v{bt}, v{wM8+j}" for j in range(4)]
        return r
    for x in wbuild(0):
        A(x)
    NOP(2)
    for rg in range(8):
        bb = (wB, t+32)[rg % 2]
        nxt = wbuild(rg + 1) if rg < 7 else []
        for cg in range(7):
            c = "0" if rg == 0 else vr(t+4*cg, 4)
            A(f"v_mfma_f32_16x16x32_bf16 {vr(t+4*cg,4)}, {wo_tile(rg,cg)}, {vr(bb,4)}, {c}")
            if cg < 4:
                for x in nxt[2*cg:2*cg+2]:
                    A(x)
    NOP(8)
    exec_set(0xff00ff0000ff00ff)
    for cg in range(7):
        A(f"ds_write_b128 v{wR2W}, {vr(t+4*cg,4)} offset:{cg*256}")
    exec_all()
    A("s_waitcnt lgkmcnt(0)")
    A("s_barrier")
    exec_set((1 << 56) - 1)
    A(f"v_add_u32 v{t+16}, {LDS_RED2}, v{wPI8}")
    for p in range(8):
        A(f"ds_read_b64 {vr(t+2*p,2)}, v{t+16} offset:{p*1792}")
    A(f"s_sub_u32 s{sA1}, s{sKK}, 2")
    A(f"s_mul_i32 s{sA1}, s{sA1}, 1792")
    A(f"s_add_u32 s{sA1}, s{sA1}, s{sMYREG}")
    A("s_waitcnt lgkmcnt(0)")
    for p in range(1, 8):
        A(f"v_add_f32 v{t}, v{t}, v{t+2*p}")
        A(f"v_add_f32 v{t+1}, v{t+1}, v{t+2*p+1}")
    A(f"v_min_u32 v{t}, -2, v{t}")
    A(f"v_min_u32 v{t+1}, -2, v{t+1}")
    A(f"buffer_store_dwordx2 {vr(t,2)}, v{wPI8}, {sr(sWS,4)}, s{sA1} offen offset:{Y_OFF} sc1")
    exec_all()
    if DEBUG_TS:
        A(f"s_lshl_b32 s95, s{sKK}, 5")
        A("s_add_u32 s95, s95, 4")
        TS(0, "s95")
    A(f"s_add_u32 s{sBX}, s{sBX}, {LDS_X}")
    gather_vec(Y_OFF, "Y")
    A(f"ds_write_b64 v{t+34}, {vr(t,2)}")
    exec_all()
    A(f"s_sub_u32 s{sBX}, s{sBX}, {LDS_X}")
    A("s_waitcnt lgkmcnt(0)")
    A("s_barrier")
    if DEBUG_TS:
        A(f"s_lshl_b32 s95, s{sKK}, 5")
        A("s_add_u32 s95, s95, 8")
        TS(0, "s95")
    XP = t + 12
    PR(0)
    layernorm(XP, XP+1)
    PR(1)
    AG, AU = t+16, t+20
    gemv16(XP, gu_tile, AG, AU, (wB, t+24))
    PR(2)
    red_write(AG, AU)
    PR(3)
    for k in range(2):
        for m in range(2):
            A(f"ds_read_b128 {vr(t+4*(2*k+m),4)}, v{wHR} offset:{m*2048 + k*1024}")
    DT = t + 20
    A(f"s_lshl_b32 s{sA0}, s3, 11")
    A(f"v_add_u32 v{t+16}, s{sA0}, v{wL16}")
    A(f"v_add_u32 v{t+17}, {56*1024}, v{t+16}")
    def dread(i):
        rg, ci = i // 2, i % 2
        if rg < 8:
            A(f"ds_read_b128 {vr(DT+4*(i%4),4)}, v{t+16} offset:{(rg*7+ci)*1024}")
        else:
            A(f"ds_read_b128 {vr(DT+4*(i%4),4)}, v{t+17} offset:{((rg-8)*7+ci)*1024}")
    for i in range(4):
        dread(i)
    A("s_waitcnt lgkmcnt(4)")
    for q in range(4):
        b = t + 4*q
        A(f"v_add_f32 v{b}, v{b}, v{b+1}")
        A(f"v_add_f32 v{b+2}, v{b+2}, v{b+3}")
    for q in range(4):
        b = t + 4*q
        A(f"v_add_f32 v{b}, v{b}, v{b+2}")
    for q in range(4):
        bf16_round(t+4*q, t+4*q)
    for k in range(2):
        A(f"v_mul_f32 v{t+8*k}, {f32(-LOG2E)}, v{t+8*k}")
    for k in range(2):
        A(f"v_exp_f32 v{t+8*k}, v{t+8*k}")
    NOP(1)
    for k in range(2):
        A(f"v_add_f32 v{t+8*k}, 1.0, v{t+8*k}")
    for k in range(2):
        A(f"v_rcp_f32 v{t+8*k}, v{t+8*k}")
    NOP(1)
    for k in range(2):
        bf16_round(t+8*k, t+8*k)
    for k in range(2):
        A(f"v_mul_f32 v{t+8*k}, v{t+8*k}, v{t+8*k+4}")
    HP = (t+1, t+2)
    for k in range(2):
        A(f"v_cvt_pk_bf16_f32 v{HP[k]}, v{t+8*k}, v{t+8*k}")
    NOP(2)
    AD = (t+4, t+8)
    def dbuild(rg):
        bt = t + 3
        bb = (wB, t+12)[rg % 2]
        for x in bcast8(bt, t, HP[rg // 8], rg % 8):
            A(x)
        for j in range(4):
            A(f"v_and_b32 v{bb+j}, v{bt}, v{wM8+j}")
    PR(4)
    dbuild(0)
    NOP(1)
    for rg in range(14):
        bb = (wB, t+12)[rg % 2]
        for ci in range(2):
            i = rg*2 + ci
            rem = min(27 - i, 3)
            A(f"s_waitcnt lgkmcnt({rem})")
            c = "0" if rg == 0 else vr(AD[ci], 4)
            A(f"v_mfma_f32_16x16x32_bf16 {vr(AD[ci],4)}, {vr(DT+4*(i%4),4)}, {vr(bb,4)}, {c}")
            if i + 4 < 28:
                dread(i + 4)
            if ci == 0 and rg < 13:
                dbuild(rg + 1)
    PR(5)
    NOP(8)
    for k in range(8):
        A(f"v_mov_b32_dpp v{t+12+k}, v{t+4+k} row_ror:8 {DPPM}")
    NOP(1)
    for k in range(8):
        A(f"v_permlane32_swap_b32 v{t+12+k}, v{t+20+k}")
    NOP(1)
    for k in range(8):
        A(f"v_add_f32 v{t+4+k}, v{t+4+k}, v{t+20+k}")
    for k in range(8):
        A(f"v_min_u32 v{t+4+k}, -2, v{t+4+k}")
    A(f"s_sub_u32 s{sA1}, s{sKK}, 2")
    A(f"s_mul_i32 s{sA1}, s{sA1}, 1792")
    A(f"s_add_u32 s{sA1}, s{sA1}, s{sMYREG}")
    A(f"s_add_u32 s{sA1}, s{sA1}, {Z_OFF}")
    A("s_cmp_eq_u32 s3, 3")
    A(f"s_cselect_b32 s{sA2}, 0x80000000, s{sA1}")
    exec_set(0x00ff00ff)
    A(f"buffer_store_dwordx4 {vr(t+4,4)}, v{wZOFF}, {sr(sWS,4)}, s{sA1} offen sc1")
    A(f"buffer_store_dwordx4 {vr(t+8,4)}, v{wZOFF}, {sr(sWS,4)}, s{sA2} offen offset:256 sc1")
    exec_all()
    PR(6)
    PRDUMP(7)
    if DEBUG_TS:
        A(f"s_lshl_b32 s95, s{sKK}, 5")
        A("s_add_u32 s95, s95, 12")
        TS(0, "s95")
    A(f"s_cmp_lt_u32 s{sKK}, 4")
    A("s_cbranch_scc1 L_SVZ")
    A(f"s_cmp_lg_u32 s{sS}, 0")
    A("s_cbranch_scc1 L_SVNEXT")
    LAB("L_SVZ")
    NOP(2)
    A(f"s_add_u32 s{sBX}, s{sBX}, {LDS_X}")
    gather_vec(Z_OFF, "Z")
    A(f"s_sub_u32 s{sBX}, s{sBX}, {LDS_X}")
    A(f"s_cmp_lt_u32 s{sKK}, 4")
    A("s_cbranch_scc1 L_SVZ2")
    A(f"s_lshr_b32 s{sA0}, s{sBX}, 1")
    A(f"buffer_store_short_d16_hi v{t}, v{wC0}, {sr(sOUT,4)}, s{sA0} offen")
    A(f"buffer_store_short_d16_hi v{t+1}, v{wC0}, {sr(sOUT,4)}, s{sA0} offen offset:16")
    exec_all()
    if DEBUG_TS:
        A(f"s_lshl_b32 s95, s{sKK}, 5")
        A("s_add_u32 s95, s95, 16")
        TS(0, "s95", lite=True)
    A("s_branch L_SVNEXT")
    LAB("L_SVZ2")
    A(f"ds_write_b64 v{t+34}, {vr(t,2)}")
    exec_all()
    A("s_waitcnt lgkmcnt(0)")
    LAB("L_SVQ")
    A("s_barrier")
    if DEBUG_TS:
        A(f"s_lshl_b32 s95, s{sKK}, 5")
        A("s_add_u32 s95, s95, 16")
        TS(0, "s95")
    layernorm(XP, XP+1)
    wq_base()
    A(f"v_add_u32 v{t+14}, s{sRINGB}, v{wL16}")
    QT = t + 28
    for tt in range(28):
        bb = (wB, t+24)[tt % 2]
        for h in range(2):
            i = tt*2 + h
            outstanding_after = min(55 - i, NRING - 1 - h)
            if h == 0:
                A(f"s_waitcnt vmcnt({max(min(55 - i - 1, NRING - 2), 0)})")
            A(f"ds_read_b128 {vr(QT+4*h,4)}, v{t+14} offset:{(i % NRING)*1024}")
        for j in range(4):
            A(f"v_and_b32_dpp v{bb+j}, v{XP+tt//16}, v{wM16+j} row_newbcast:{tt%16} {DPPM}")
        A("s_waitcnt lgkmcnt(0)")
        for h in range(2):
            i = tt*2 + h
            if i + NRING < 56:
                wq_dma(i + NRING)
        NOP(1)
        for h, acc in ((0, AG), (1, AU)):
            c = "0" if tt == 0 else vr(acc, 4)
            A(f"v_mfma_f32_16x16x32_bf16 {vr(acc,4)}, {vr(QT+4*h,4)}, {vr(bb,4)}, {c}")
        NOP(4)
    for i in range(NRING):
        wq_dma(i)
    red_write(AG, AU)
    q_publish("L_SVQDONE")
    if DEBUG_TS:
        A(f"s_lshl_b32 s95, s{sKK}, 5")
        A("s_add_u32 s95, s95, 20")
        TS(0, "s95")
    LAB("L_SVNEXT")
    A(f"s_add_u32 s{sKK}, s{sKK}, 1")
    A(f"s_cmp_lt_u32 s{sKK}, 6")
    A("s_cbranch_scc1 L_SVLOOP")

def main():
    global DEBUG_TS
    out = f"cdna_kernels/{NAME}.s"
    for a in sys.argv[1:]:
        if a == "--ts":
            DEBUG_TS = True
        elif a.startswith("--mall="):
            globals()["MALLMASK"] = int(a[7:])
        elif a.startswith("--statq="):
            globals()["STATQ"] = int(a[8:])
        elif a.startswith("--codepf="):
            globals()["CODEPF"] = int(a[9:])
        elif a == "--probe":
            globals()["PROBE"] = True
        elif a == "--wqnt":
            globals()["WQPOL"] = "nt"
        elif a.startswith("--nocomp="):
            globals()["NOCOMP"] = int(a[9:])
        elif a == "--mlpoll":
            globals()["MLPOLL"] = True
        elif a == "--tslite":
            DEBUG_TS = True
            globals()["TSLITE"] = True
        elif a.startswith("--xhalf="):
            globals()["XHALF"] = int(a[8:])
        elif a == "--fix":
            pass
        elif a == "--statdef":
            globals()["STATPOL"] = ""
        else:
            out = a
    header()
    stream()
    service()
    footer()
    open(out, "w").write("\n".join(x for x in L if x is not None) + "\n")
    print("wrote", out, len(L), "lines")

main()
```

```python
import struct, sys

NAME = "interleave_layers__mha_block_cached__glu_gated_glu__decode"
DEBUG_TS = False
SPIN_MAX = 400000
STATPOL = "nt"
CODEPF = 3
PROBE = False
WQPOL = ""
NOCOMP = 0
MLPOLL = True
TSLITE = False
XHALF = 0
FIX = "--fix" in sys.argv
DIAG = "--diag" in sys.argv
STATQ = 16
MALLMASK = None

def f32(x):
    return "0x%08x" % struct.unpack("<I", struct.pack("<f", x))[0]

LOG2E = 1.4426950408889634
REGION = 98304
Q_OFF, Y_OFF, Z_OFF, P_OFF = 256, 2304, 9472, 16640
PSLOT = 1152
CLEAR_PER_WAVE = 21
NDYN = 784
NSTAT = 240
TS_OFF = 0x200000

L = []
def A(s):
    L.append("    " + s)
def LAB(s):
    L.append(s + ":")
def NOP(n):
    if n > 0:
        A(f"s_nop {n-1}")
def vr(a, n):
    return f"v[{a}:{a+n-1}]"
def ar(a, n):
    return f"a[{a}:{a+n-1}]"
def sr(a, n):
    return f"s[{a}:{a+n-1}]"
DPPM = "row_mask:0xf bank_mask:0xf"

def srd(dst, ptr, nbytes):
    A(f"s_mov_b32 s{dst}, s{ptr}")
    A(f"s_and_b32 s{dst+1}, s{ptr+1}, 0xffff")
    A(f"s_mov_b32 s{dst+2}, {nbytes}")
    A(f"s_mov_b32 s{dst+3}, 0x20000")

def exec_set(val):
    lo, hi = val & 0xffffffff, val >> 32
    A(f"s_mov_b32 exec_lo, 0x{lo:x}")
    A(f"s_mov_b32 exec_hi, 0x{hi:x}")
def exec_all():
    A("s_mov_b64 exec, -1")

def xrow_reduce(op, x, t):
    A(f"v_mov_b32 v{t}, v{x}")
    NOP(2)
    A(f"v_permlane16_swap_b32 v{x}, v{t}")
    NOP(1)
    A(f"{op} v{x}, v{x}, v{t}")
    A(f"v_mov_b32 v{t}, v{x}")
    NOP(2)
    A(f"v_permlane32_swap_b32 v{x}, v{t}")
    NOP(1)
    A(f"{op} v{x}, v{x}, v{t}")

def row_reduce(op, x):
    for ctl in ("quad_perm:[1,0,3,2]", "quad_perm:[2,3,0,1]", "row_half_mirror", "row_mirror"):
        NOP(2)
        A(f"{op}_dpp v{x}, v{x}, v{x} {ctl} {DPPM}")

def wave_reduce(op, x, t):
    row_reduce(op, x)
    xrow_reduce(op, x, t)

def bf16_round(dst, src):
    A(f"v_cvt_pk_bf16_f32 v{dst}, v{src}, v{src}")
    A(f"v_and_b32 v{dst}, 0xffff0000, v{dst}")

def DG(word):
    if not DIAG:
        return
    n = len(L)
    A("s_or_b32 s98, s2, s3")
    A("s_cmp_lg_u32 s98, 0")
    A(f"s_cbranch_scc1 L_DG{n}")
    A("s_memrealtime s[98:99]")
    A("s_waitcnt lgkmcnt(0)")
    A("s_sub_u32 s98, s98, s94")
    A("v_mov_b32 v62, s98")
    if isinstance(word, int):
        A(f"s_mov_b32 s98, {word*4}")
    else:
        A(f"s_mov_b32 s98, {word}")
    A("s_mov_b64 s[100:101], exec")
    A("s_mov_b64 exec, 1")
    A("buffer_store_dword v62, off, s[52:55], s98")
    A("s_mov_b64 exec, s[100:101]")
    LAB(f"L_DG{n}")

def PR(i):
    if DEBUG_TS and PROBE:
        A(f"s_memtime s[{16+2*i}:{17+2*i}]")
def PRDUMP(n):
    if DEBUG_TS and PROBE:
        A("s_waitcnt lgkmcnt(0)")
        A("s_mov_b64 exec, 1")
        A("v_mov_b32 v63, 0")
        for i in range(n):
            A(f"v_mov_b32 v62, s{16+2*i}")
            A(f"buffer_store_dword v62, v63, s[48:51], s97 offen offset:{224+4*i}")
        exec_all()

TSREG = [62]
def TS(idx_sgpr_or_const, slot, lite=False):
    if not DEBUG_TS or (TSLITE and not lite):
        return
    A("s_memrealtime s[98:99]")
    A("s_waitcnt lgkmcnt(0)")
    A(f"v_mov_b32 v{TSREG[0]}, s98")
    A(f"s_add_u32 s98, s97, {slot*4}" if isinstance(slot, int) else f"s_add_u32 s98, s97, {slot}")
    A("s_mov_b64 s[100:101], exec")
    A("s_mov_b64 exec, 1")
    A(f"buffer_store_dword v{TSREG[0]}, off, s[48:51], s98")
    A("s_mov_b64 exec, s[100:101]")

def header():
    L.append("; Kernarg: 0 A_x, 8 A_k_cache, 16 A_v_cache, 24 A_wq, 32 A_wo, 40 B_x, 48 B_w_gate, 56 B_w_up,")
    L.append("; @launch grid=(256,1,1) block=(256,1,1) lds=163840")
    L.append('.amdgcn_target "amdgcn-amd-amdhsa--gfx950"')
    L.append(".text")
    L.append(f".globl {NAME}_kernel")
    L.append(".p2align 8")
    L.append(f".type {NAME}_kernel,@function")
    LAB(f"{NAME}_kernel")
    A("s_cmp_ge_u32 s2, 256")
    A("s_cbranch_scc1 L_END")
    A("s_load_dwordx16 s[16:31], s[0:1], 0")
    A("s_load_dwordx8 s[32:39], s[0:1], 64")
    if CODEPF:
        A("s_getpc_b64 s[4:5]")
        A("v_lshlrev_b32 v2, 6, v0")
        for i in range(CODEPF):
            A(f"global_load_dword v63, v2, s[4:5]")
            A(f"v_add_u32 v2, 0x4000, v2")
    A("v_lshrrev_b32 v1, 6, v0")
    A("v_and_b32 v0, 63, v0")
    A("v_readfirstlane_b32 s3, v1")
    A(f"s_mov_b32 s96, {SPIN_MAX}")
    A("s_waitcnt lgkmcnt(0)")
    srd(48, 38, 0x40000000 if DEBUG_TS else 16 * REGION)
    srd(52, 36, 256)
    if DEBUG_TS:
        A("s_lshl_b32 s97, s2, 2")
        A("s_add_u32 s97, s97, s3")
        A("s_lshl_b32 s97, s97, 8")
        A(f"s_add_u32 s97, s97, {TS_OFF}")
    A("s_cmp_lt_u32 s2, 16")
    A("s_cbranch_scc1 L_SERVICE")

def footer():
    LAB("L_END")
    A("s_endpgm")
    L.append(f".fill (({NAME}_kernel + {CODEPF*16384+256} - .) / 4), 4, 0xbf800000")
    L.append('.section .rodata,"a"')
    L.append(".p2align 6")
    L.append(f".amdhsa_kernel {NAME}_kernel")
    L.append("  .amdhsa_next_free_vgpr 512")
    L.append("  .amdhsa_next_free_sgpr 102")
    L.append("  .amdhsa_accum_offset 256")
    L.append("  .amdhsa_group_segment_fixed_size 0")
    L.append("  .amdhsa_kernarg_size 96")
    L.append("  .amdhsa_user_sgpr_count 2")
    L.append("  .amdhsa_user_sgpr_kernarg_segment_ptr 1")
    L.append("  .amdhsa_system_sgpr_workgroup_id_x 1")
    L.append("  .amdhsa_float_denorm_mode_32 3")
    L.append(".end_amdhsa_kernel")

def spin_guard(label_retry):
    A("s_sleep 2")
    A("s_sub_u32 s96, s96, 1")
    A("s_cmp_eq_u32 s96, 0")
    A("s_cbranch_scc1 L_END")
    A(f"s_branch {label_retry}")

def masks16(m, t):
    A(f"v_and_b32 v{t}, 15, v0")
    A(f"v_and_b32 v{t+1}, 1, v0")
    A(f"v_lshlrev_b32 v{t+1}, 4, v{t+1}")
    A(f"v_mov_b32 v{m}, 0xffff")
    A(f"v_lshlrev_b32 v{t+1}, v{t+1}, v{m}")
    A(f"v_lshrrev_b32 v{t}, 1, v{t}")
    for j in range(4):
        A(f"v_cmp_eq_u32 vcc, {j}, v{t}")
        NOP(2)
        A(f"v_cndmask_b32 v{m+j}, 0, v{t+1}, vcc")

def masks8(m, t):
    A(f"v_and_b32 v{t}, 7, v0")
    A(f"v_and_b32 v{t+1}, 1, v0")
    A(f"v_lshlrev_b32 v{t+1}, 4, v{t+1}")
    A(f"v_mov_b32 v{m}, 0xffff")
    A(f"v_lshlrev_b32 v{t+1}, v{t+1}, v{m}")
    A(f"v_lshrrev_b32 v{t}, 1, v{t}")
    for j in range(4):
        A(f"v_cmp_eq_u32 vcc, {j}, v{t}")
        NOP(2)
        A(f"v_cndmask_b32 v{m+j}, 0, v{t+1}, vcc")

vKOFF, vVOFF, vTICK = 1, 2, 3
vMSK = 4
vM, vL = 8, 9
vQN = 10
vS0, vS1, vSa, vSb = 12, 13, 14, 15
vX, vY, vF, vT = vSa, vSb, vSb, vSb
vP0, vP1 = vS0, vS1
vB0, vB1 = 16, 20
vACC = 24
vQ = 32
VX = 48
RING = 64
KST = 128
sK, sV, sWS, sDBG = 40, 44, 48, 52
sHEAD, sC, sWV, sHOFF = 4, 5, 6, 7
sLDPH, sLIM, sTB, sNOFF, sCUR, sPROC, sQTAG, sT0 = 8, 9, 10, 11, 12, 13, 14, 15
sCC, sREG, sT1, sT2, sT3, sPEND, sLDSK, sHELD, sHV, sFIX = 72, 73, 74, 75, 76, 77, 78, 79, 80, 81
LDS_KW = 9 * 4096
LDS_SCR = 4 * LDS_KW
LDS_PART = LDS_SCR
LDS_CNT = LDS_SCR + 8448
LDS_QB = LDS_SCR + 8704
FIRST = [300 if FIX else 240, 270]
NDYNB = [1024 - FIRST[0], 1024 - FIRST[1]]

def loadK(dst, soff, pol="nt"):
    for j in range(4):
        A(f"buffer_load_dwordx4 {vr(dst+4*j,4)}, v{vKOFF}, {sr(sK,4)}, s{soff} offen offset:{128*j} {pol}")
def loadV(dst, soff, agpr=False, pol="nt"):
    for j in range(4):
        d = ar(dst+4*j, 4) if agpr else vr(dst+4*j, 4)
        A(f"buffer_load_dwordx4 {d}, v{vVOFF}, {sr(sV,4)}, s{soff} offen offset:{256*j} {pol}")

def kdots(R, S):
    for i in range(8):
        for (acc, k) in ((vSa, i), (vSb, 8 + i)):
            c = "0" if i == 0 else f"v{acc}"
            A(f"v_dot2_f32_bf16 v{acc}, v{R+k}, v{vQ+k}, {c}")
    NOP(3)
    A(f"v_add_f32 v{S}, v{vSa}, v{vSb}")

def kdots_lds(ldsoff, S):
    tmp = (vB0, vB1)
    A(f"ds_read_b128 {vr(tmp[0],4)}, v{vS1} offset:{ldsoff}")
    A(f"ds_read_b128 {vr(tmp[1],4)}, v{vS1} offset:{ldsoff+1024}")
    for j in range(4):
        A(f"s_waitcnt lgkmcnt({1 if j < 3 else 0})")
        acc = vSa if j % 2 == 0 else vSb
        for i in range(4):
            c = "0" if (j < 2 and i == 0) else f"v{acc}"
            A(f"v_dot2_f32_bf16 v{acc}, v{tmp[j%2]+i}, v{vQ+4*j+i}, {c}")
        if j < 2:
            A(f"ds_read_b128 {vr(tmp[j%2],4)}, v{vS1} offset:{ldsoff+1024*(j+2)}")
    NOP(3)
    A(f"v_add_f32 v{S}, v{vSa}, v{vSb}")

def softmax_update():
    for ctl in ("quad_perm:[1,0,3,2]", "quad_perm:[2,3,0,1]", "row_half_mirror"):
        NOP(1)
        A(f"v_add_f32_dpp v{vS0}, v{vS0}, v{vS0} {ctl} {DPPM}")
        A(f"v_add_f32_dpp v{vS1}, v{vS1}, v{vS1} {ctl} {DPPM}")
        NOP(1)
    A(f"v_cvt_pk_bf16_f32 v{vT}, v{vS0}, v{vS1}")
    A(f"v_lshlrev_b32 v{vS0}, 16, v{vT}")
    A(f"v_and_b32 v{vS1}, 0xffff0000, v{vT}")
    A(f"v_max_f32 v{vX}, v{vS0}, v{vS1}")
    NOP(2)
    A(f"v_max_f32_dpp v{vX}, v{vX}, v{vX} row_ror:8 {DPPM}")
    xrow_reduce("v_max_f32", vX, vY)
    A(f"v_mul_f32 v{vX}, s{sCC}, v{vX}")
    A(f"v_ceil_f32 v{vX}, v{vX}")
    A(f"v_max_f32 v{vX}, v{vX}, v{vM}")
    A(f"v_sub_f32 v{vF}, v{vM}, v{vX}")
    A(f"v_fma_f32 v{vS0}, v{vS0}, s{sCC}, -v{vX}")
    A(f"v_fma_f32 v{vS1}, v{vS1}, s{sCC}, -v{vX}")
    A(f"v_exp_f32 v{vF}, v{vF}")
    A(f"v_exp_f32 v{vS0}, v{vS0}")
    A(f"v_exp_f32 v{vS1}, v{vS1}")
    A(f"v_mov_b32 v{vM}, v{vX}")
    A(f"v_fma_f32 v{vL}, v{vL}, v{vF}, v{vS0}")
    A(f"v_cvt_pk_bf16_f32 v{vP0}, v{vS0}, v{vS0}")
    A(f"v_add_f32 v{vL}, v{vL}, v{vS1}")
    A(f"v_cvt_pk_bf16_f32 v{vP1}, v{vS1}, v{vS1}")
    for k in range(8):
        A(f"v_mul_f32 v{vACC+k}, v{vACC+k}, v{vF}")

def vmfma(R, P, agpr=False):
    rr = (lambda k: ar(R+4*k, 4)) if agpr else (lambda k: vr(R+4*k, 4))
    for j in range(4):
        A(f"v_and_b32 v{vB0+j}, v{P}, v{vMSK+j}")
    for j in range(4):
        A(f"v_and_b32_dpp v{vB1+j}, v{P}, v{vMSK+j} row_ror:8 {DPPM}")
    a0, a1 = vr(vACC, 4), vr(vACC+4, 4)
    A(f"v_mfma_f32_16x16x32_bf16 {a0}, {rr(0)}, {vr(vB0,4)}, {a0}")
    A(f"v_mfma_f32_16x16x32_bf16 {a1}, {rr(1)}, {vr(vB0,4)}, {a1}")
    A(f"v_mfma_f32_16x16x32_bf16 {a0}, {rr(2)}, {vr(vB1,4)}, {a0}")
    A(f"v_mfma_f32_16x16x32_bf16 {a1}, {rr(3)}, {vr(vB1,4)}, {a1}")

def ticket_atomic(dst):
    A("s_mov_b64 exec, 1")
    A(f"buffer_atomic_add v{dst}, off, {sr(sWS,4)}, s{sREG} sc0 sc1")
    exec_all()

def q_load(ph):
    A(f"s_lshl_b32 s{sT1}, s{ph}, 9")
    A(f"s_add_u32 s{sT1}, s{sT1}, s{sREG}")
    A(f"v_lshlrev_b32 v{vSa}, 3, v0")
    A(f"buffer_load_dwordx2 {vr(vQN,2)}, v{vSa}, {sr(sWS,4)}, s{sT1} offen offset:{Q_OFF} sc1")

dec_n = [0]
def decode(src, nxt):
    n = dec_n[0]; dec_n[0] += 1
    if FIX:
        A(f"s_mov_b32 s{sT0}, s{sHELD}")
        A(f"s_cmp_lg_u32 s{sHV}, 0")
        A(f"s_mov_b32 s{sHV}, 0")
        A(f"s_cbranch_scc1 L_DEC{n}")
    A(f"v_readfirstlane_b32 s{sT0}, v{src}")
    A(f"v_mov_b32 v{src}, 1")
    A(f"s_add_u32 s{sT0}, s{sT0}, 1")
    LAB(f"L_DEC{n}")
    A(f"s_cmp_lt_u32 s{sT0}, s{sLIM}")
    A(f"s_cbranch_scc1 L_DOK{n}")
    A(f"s_add_u32 s{sLDPH}, s{sLDPH}, 1")
    A(f"s_bitcmp1_b32 s{sLDPH}, 0")
    A(f"s_cselect_b32 s{sT1}, {FIRST[1] + 0x4000}, {FIRST[0]}" if FIRST[0] <= 64 else f"s_cselect_b32 s{sT1}, {FIRST[1] + 0x4000 - FIRST[0]}, 0")
    A(f"s_cselect_b32 s{sT3}, {NDYNB[1] - NDYNB[0]}, 0")
    if FIRST[0] > 64:
        A(f"s_add_u32 s{sT1}, s{sT1}, {FIRST[0]}")
    A(f"s_sub_u32 s{sT1}, s{sT1}, s{sLIM}")
    A(f"s_lshl_b32 s{sT1}, s{sT1}, 13")
    A(f"s_add_u32 s{sTB}, s{sT1}, s{sHOFF}")
    A(f"s_add_u32 s{sLIM}, s{sLIM}, s{sT3}")
    A(f"s_add_u32 s{sLIM}, s{sLIM}, {NDYNB[0]}")
    A(f"s_cmp_lt_u32 s{sLDPH}, 4")
    A(f"s_cbranch_scc0 L_DFIN{n}")
    q_load(sLDPH)
    A(f"s_mov_b32 s{sQTAG}, s{sLDPH}")
    if FIX:
        A(f"s_cmp_lg_u32 s{sLDPH}, 2")
        A(f"s_cbranch_scc1 L_DEC{n}")
        A(f"s_mov_b32 s{sHELD}, s{sT0}")
        A(f"s_mov_b32 s{sHV}, 1")
        A(f"s_mov_b32 s{sNOFF}, s{sFIX}")
        A(f"s_add_u32 s{sT3}, s{sFIX}, {60*4096}")
        A(f"s_branch L_DEND{n}")
    else:
        A(f"s_branch L_DEC{n}")
    LAB(f"L_DFIN{n}")
    A(f"s_mov_b32 s{sLIM}, -1")
    LAB(f"L_DOK{n}")
    A(f"s_lshl_b32 s{sNOFF}, s{sT0}, 13")
    A(f"s_add_u32 s{sNOFF}, s{sNOFF}, s{sTB}")
    A(f"s_cmp_ge_u32 s{sLDPH}, 4")
    A(f"s_cselect_b32 s{sNOFF}, 0x80000000, s{sNOFF}")
    A(f"s_add_u32 s{sT3}, s{sNOFF}, 4096")
    if nxt is not None:
        ticket_atomic(nxt)
    LAB(f"L_DEND{n}")

def static_loads(b, part):
    def soff(u):
        A(f"s_add_u32 s{sT1}, s{sT2}, {b*0x08000000 + u*60*4096}")
        A(f"s_waitcnt vmcnt({STATQ-4})")
    if part == 0:
        for u in range(4):
            soff(u); loadK(KST + (b*4+u)*16, sT1)
    elif part == 1:
        for u in range(4 + b):
            soff(4+u)
            for j in range(4):
                A(f"s_add_u32 m0, s{sLDSK}, {(b*4+u)*4096 + 896*j}")
                NOP(1)
                A(f"buffer_load_dwordx4 v{vKOFF}, {sr(sK,4)}, s{sT1} offen offset:{128*j} nt lds")
    else:
        for u in range(4*(part-2), 4*(part-2)+4):
            soff(u); loadV((b*8+u)*16, sT1, agpr=True)
        if part == 3 and b == 1:
            soff(8); loadV(VX, sT1)

def statics(b):
    for blk in range(4):
        if blk >= 2:
            A(f"v_lshl_add_u32 v{vS1}, v0, 4, s{sLDSK}")
        for i, S in ((0, vS0), (1, vS1)):
            u = blk*2 + i
            if u < 4:
                kdots(KST + (b*4+u)*16, S)
            else:
                kdots_lds((b*4+u-4)*4096, S)
        softmax_update()
        vmfma((b*8+blk*2)*16, vP0, agpr=True)
        vmfma((b*8+blk*2+1)*16, vP1, agpr=True)
        NOP(4)
    if b == 1:
        A(f"v_lshl_add_u32 v{vS1}, v0, 4, s{sLDSK}")
        kdots_lds(8*4096, vS0)
        A(f"v_mov_b32 v{vS1}, {f32(-1e30)}")
        softmax_update()
        vmfma(VX, vP0)
        NOP(4)

def stream():
    TSREG[0] = vB1 + 2
    TS(0, 0)
    A(f"s_sub_u32 s{sT0}, s2, 16")
    A(f"s_mul_hi_u32 s{sHEAD}, s{sT0}, 0x11111112")
    A(f"s_mul_i32 s{sT1}, s{sHEAD}, 15")
    A(f"s_sub_u32 s{sC}, s{sT0}, s{sT1}")
    A(f"s_lshl_b32 s{sWV}, s{sC}, 2")
    A(f"s_add_u32 s{sWV}, s{sWV}, s3")
    A(f"s_lshl_b32 s{sHOFF}, s{sHEAD}, 23")
    srd(sK, 18, 0x10000000)
    srd(sV, 20, 0x10000000)
    A(f"v_lshrrev_b32 v{vX}, 3, v0")
    A(f"v_and_b32 v{vY}, 7, v0")
    A(f"v_lshlrev_b32 v{vX}, 9, v{vX}")
    A(f"v_lshl_add_u32 v{vKOFF}, v{vY}, 4, v{vX}")
    A(f"v_lshrrev_b32 v{vX}, 4, v0")
    A(f"v_and_b32 v{vY}, 15, v0")
    A(f"v_lshlrev_b32 v{vX}, 10, v{vX}")
    A(f"v_lshl_add_u32 v{vVOFF}, v{vY}, 4, v{vX}")
    A(f"s_lshl_b32 s{sT2}, s{sWV}, 12")
    A(f"s_add_u32 s{sT2}, s{sT2}, s{sHOFF}")
    A(f"s_mul_i32 s{sLDSK}, s3, {LDS_KW}")
    if FIX:
        A(f"s_add_u32 s{sFIX}, s{sT2}, {480*4096}")
        A(f"s_add_u32 s{sT3}, s{sFIX}, {60*4096}")
        loadK(RING, sFIX); loadK(RING+16, sT3); loadV(RING+32, sFIX); loadV(RING+48, sT3)
    for part in range(4):
        static_loads(0, part)
    TS(0, 20)
    A(f"s_mov_b32 s{sCC}, {f32(LOG2E/16)}")
    A(f"s_mul_i32 s{sREG}, s{sHEAD}, {REGION}")
    A(f"v_mov_b32 v{vTICK}, 1")
    A(f"v_mov_b32 v{vS0}, 1")
    masks16(vMSK, vX)
    A(f"v_lshlrev_b32 v{vX}, 2, v0")
    A(f"v_and_b32 v{vX}, 12, v{vX}")
    A(f"v_add_u32 v{vX}, {LDS_CNT}, v{vX}")
    A(f"v_mov_b32 v{vY}, 0")
    A(f"ds_write_b32 v{vX}, v{vY}")
    A("s_waitcnt lgkmcnt(0)")
    A("s_barrier")
    A(f"s_lshl_b32 s{sT0}, s{sHEAD}, 2")
    A(f"buffer_load_dword v{vS1}, off, {sr(sDBG,4)}, s{sT0} offset:128 sc1")
    for part in range(3):
        static_loads(1, part)
    LAB("L_FLAGCHK")
    A(f"v_readfirstlane_b32 s{sT1}, v{vS1}")
    NOP(2)
    A(f"s_cmp_lg_u32 s{sT1}, 0")
    A("s_cbranch_scc1 L_FLAGOK")
    A("s_sleep 2")
    A("s_sub_u32 s96, s96, 1")
    A("s_cmp_eq_u32 s96, 0")
    A("s_cbranch_scc1 L_END")
    A(f"buffer_load_dword v{vS1}, off, {sr(sDBG,4)}, s{sT0} offset:128 sc1")
    A("s_waitcnt vmcnt(0)")
    A("s_branch L_FLAGCHK")
    LAB("L_FLAGOK")
    TS(0, 1)
    if not FIX:
        ticket_atomic(vS0)
    ticket_atomic(vTICK)
    A(f"s_mov_b32 s{sLDPH}, 0")
    q_load(sLDPH)
    static_loads(1, 3)
    A(f"s_mov_b32 s{sQTAG}, 0")
    A(f"s_mov_b32 s{sLIM}, {NDYNB[0]}")
    A(f"s_add_u32 s{sTB}, s{sHOFF}, {FIRST[0]*8192}")
    A(f"s_mov_b32 s{sPROC}, 0")
    A(f"s_mov_b32 s{sHV}, 0")
    A(f"s_mov_b32 s{sHELD}, 0")
    A("s_waitcnt vmcnt(16)")
    if not FIX:
        decode(vS0, None)
        loadK(RING, sNOFF); loadK(RING+16, sT3); loadV(RING+32, sNOFF); loadV(RING+48, sT3)
    A(f"s_mov_b32 s{sCUR}, s{sLDPH}")
    if not FIX:
        A("s_waitcnt vmcnt(12)")
    decode(vTICK, vTICK)
    A("s_branch L_SETUP")

    L.append(".p2align 6")
    LAB("L_LOOP")
    A("s_waitcnt vmcnt(12)")
    decode(vTICK, vTICK)
    A(f"s_cmp_lg_u32 s{sCUR}, s{sPROC}")
    A("s_cbranch_scc1 L_SWITCH")
    LAB("L_BODY")
    W = 12 if FIX else 13
    kdots(RING, vS0)
    loadK(RING, sNOFF)
    A(f"s_waitcnt vmcnt({W})")
    kdots(RING+16, vS1)
    loadK(RING+16, sT3)
    softmax_update()
    A(f"s_waitcnt vmcnt({W})")
    vmfma(RING+32, vP0)
    loadV(RING+32, sNOFF)
    A(f"s_waitcnt vmcnt({W})")
    vmfma(RING+48, vP1)
    loadV(RING+48, sT3)
    A(f"s_mov_b32 s{sCUR}, s{sLDPH}")
    A(f"s_cmp_eq_u32 s{sPEND}, 0")
    A("s_cbranch_scc1 L_LOOP")
    A(f"s_mov_b32 s{sPEND}, 1")
    LAB("L_DOSTAT")
    NOP(4)
    A(f"s_bitcmp1_b32 s{sPROC}, 0")
    A("s_cbranch_scc1 L_STAT1")
    statics(0)
    A("s_branch L_STATDONE")
    LAB("L_STAT1")
    statics(1)
    LAB("L_STATDONE")
    A(f"s_cmp_eq_u32 s{sPEND}, 1")
    A(f"s_mov_b32 s{sPEND}, 0")
    A("s_cbranch_scc1 L_LOOP")

    LAB("L_SWITCH")
    A(f"s_cmp_lg_u32 s{sPEND}, 0")
    A("s_cbranch_scc1 L_DOSTAT")
    A(f"s_and_b32 s{sT0}, s{sPROC}, 1")
    A(f"s_mul_i32 s{sT0}, s{sT0}, 4224")
    A(f"s_add_u32 s{sT0}, s{sT0}, {LDS_PART}")
    A(f"s_mul_i32 s{sT1}, s3, 1056")
    A(f"s_add_u32 s{sT1}, s{sT1}, s{sT0}")
    A(f"v_lshrrev_b32 v{vS0}, 4, v0")
    A(f"v_and_b32 v{vS1}, 15, v0")
    A(f"v_lshl_add_u32 v{vS0}, v{vS0}, 3, v{vS1}")
    A(f"v_lshl_add_u32 v{vX}, v{vS0}, 4, s{sT1}")
    A(f"v_add_f32_dpp v{vL}, v{vL}, v{vL} row_ror:8 {DPPM}")
    xrow_reduce("v_add_f32", vL, vY)
    exec_set(0x00ff00ff00ff00ff)
    A(f"ds_write_b128 v{vX}, {vr(vACC,4)}")
    A(f"ds_write_b128 v{vX}, {vr(vACC+4,4)} offset:512")
    A("s_mov_b64 exec, 1")
    A(f"ds_write_b64 v{vX}, {vr(vM,2)} offset:1024")
    A(f"s_lshl_b32 s{sT1}, s{sPROC}, 2")
    A(f"s_add_u32 s{sT1}, s{sT1}, {LDS_CNT}")
    A(f"v_mov_b32 v{vX}, s{sT1}")
    A(f"v_mov_b32 v{vY}, 1")
    A("s_waitcnt lgkmcnt(0)")
    A(f"ds_add_rtn_u32 v{vY}, v{vX}, v{vY}")
    A("s_waitcnt lgkmcnt(0)")
    A(f"v_readfirstlane_b32 s{sT1}, v{vY}")
    exec_all()
    NOP(2)
    A(f"s_cmp_lg_u32 s{sT1}, 3")
    A("s_cbranch_scc1 L_NOPUB")
    A(f"v_mov_b32 v{vX}, s{sT0}")
    A(f"v_lshl_add_u32 v{vY}, v0, 4, s{sT0}")
    for w in range(4):
        A(f"ds_read_b64 {vr(vB0+2*w,2)}, v{vX} offset:{1056*w+1024}")
    for w in range(4):
        A(f"ds_read_b128 {vr(vQ+4*w,4)}, v{vY} offset:{1056*w}")
    A(f"s_mul_i32 s{sT0}, s{sPROC}, 15")
    A(f"s_add_u32 s{sT0}, s{sT0}, s{sC}")
    A(f"s_mul_i32 s{sT0}, s{sT0}, {PSLOT}")
    A(f"s_add_u32 s{sT0}, s{sT0}, s{sREG}")
    A(f"s_add_u32 s{sT0}, s{sT0}, {P_OFF}")
    A(f"v_lshlrev_b32 v{vS0}, 4, v0")
    A("s_waitcnt lgkmcnt(4)")
    A(f"v_max3_f32 v{vM}, v{vB0}, v{vB0+2}, v{vB0+4}")
    A(f"v_max_f32 v{vM}, v{vM}, v{vB0+6}")
    for w in range(4):
        A(f"v_sub_f32 v{vB0+2*w}, v{vB0+2*w}, v{vM}")
    for w in range(4):
        A(f"v_exp_f32 v{vB0+2*w}, v{vB0+2*w}")
    NOP(1)
    A(f"v_mul_f32 v{vL}, v{vB0}, v{vB0+1}")
    for w in range(1, 4):
        A(f"v_fmac_f32 v{vL}, v{vB0+2*w}, v{vB0+2*w+1}")
    A("s_waitcnt lgkmcnt(0)")
    for r in range(4):
        A(f"v_mul_f32 v{vACC+r}, v{vB0}, v{vQ+r}")
    for w in range(1, 4):
        for r in range(4):
            A(f"v_fmac_f32 v{vACC+r}, v{vB0+2*w}, v{vQ+4*w+r}")
    for r in range(4):
        A(f"v_min_u32 v{vACC+r}, -2, v{vACC+r}")
    A(f"v_min_u32 v{vM}, -2, v{vM}")
    A(f"v_min_u32 v{vL}, -2, v{vL}")
    A(f"buffer_store_dwordx4 {vr(vACC,4)}, v{vS0}, {sr(sWS,4)}, s{sT0} offen sc1")
    A("s_mov_b64 exec, 1")
    A(f"buffer_store_dwordx2 {vr(vM,2)}, off, {sr(sWS,4)}, s{sT0} offset:1024 sc1")
    exec_all()
    NOP(2)
    LAB("L_NOPUB")
    if DEBUG_TS:
        A(f"s_lshl_b32 s95, s{sPROC}, 3")
        A("s_add_u32 s95, s95, 12")
        TS(0, "s95")
    A(f"s_add_u32 s{sPROC}, s{sPROC}, 1")
    A(f"s_cmp_ge_u32 s{sPROC}, 4")
    A("s_cbranch_scc1 L_END")
    LAB("L_SETUP")
    if DEBUG_TS:
        A(f"s_lshl_b32 s95, s{sPROC}, 2")
        A("s_add_u32 s95, s95, 64")
        TS(0, "s95")
    A(f"s_cmp_eq_u32 s{sQTAG}, s{sPROC}")
    A("s_cbranch_scc1 L_QCHK")
    LAB("L_QSLOW")
    A(f"s_mov_b32 s{sQTAG}, -1")
    q_load(sPROC)
    A("s_waitcnt vmcnt(0)")
    LAB("L_QCHK")
    A(f"v_max_u32 v{vX}, v{vQN}, v{vQN+1}")
    A(f"v_cmp_eq_u32 vcc, -1, v{vX}")
    A("s_cbranch_vccz L_QOK")
    spin_guard("L_QSLOW")
    LAB("L_QOK")
    A(f"s_lshl_b32 s{sT1}, s3, 9")
    A(f"s_add_u32 s{sT1}, s{sT1}, {LDS_QB}")
    A(f"v_lshl_add_u32 v{vS0}, v0, 3, s{sT1}")
    A(f"v_and_b32 v{vS1}, 7, v0")
    A(f"v_lshl_add_u32 v{vS1}, v{vS1}, 4, s{sT1}")
    A(f"ds_write_b64 v{vS0}, {vr(vQN,2)}")
    A("s_waitcnt lgkmcnt(0)")
    for j in range(4):
        A(f"ds_read_b128 {vr(vQ+4*j,4)}, v{vS1} offset:{128*j}")
    for k in range(8):
        A(f"v_mov_b32 v{vACC+k}, 0")
    A(f"v_mov_b32 v{vL}, 0")
    A(f"v_mov_b32 v{vM}, {f32(-1e30)}")
    A("s_waitcnt lgkmcnt(0)")
    if DEBUG_TS:
        A(f"s_lshl_b32 s95, s{sPROC}, 3")
        A("s_add_u32 s95, s95, 8")
        TS(0, "s95")
    A(f"s_mov_b32 s{sPEND}, 2")
    A(f"s_cmp_lg_u32 s{sCUR}, s{sPROC}")
    A("s_cbranch_scc1 L_SWITCH")
    A("s_branch L_BODY")
    TSREG[0] = 62

sS = 2
sX, sWQ, sWO, sWG, sWU, sWD, sOUT = 40, 44, 56, 60, 64, 68, 80
sKK, sBX, sMYREG = 4, 5, 6
sA0, sA1, sA2, sA3 = 7, 8, 9, 10
sRINGB = 11
wM8, wM16 = 4, 8
wOFF8, wOFFG, wOFFQ, wPI8 = 1, 2, 3, 12
wGOFF, wML, wR2W, wXPK = 13, 14, 15, 16
wRW, wHR, wL16, wZOFF = 17, 18, 19, 20
wL4, wZERO, wC0, wQR = 21, 22, 23, 0
wB = 24
wT = 28
RES_V = 64
LDS_DOWN = 0
LDS_RING = 100352
NRING = 10
LDS_X = LDS_RING + 4*NRING*1024
LDS_RED2 = LDS_X + 3584
LDS_RED = LDS_RED2 + 14336

def wo_tile(rg, cg):
    return ar((rg*7+cg)*4, 4)
def gu_tile(t, m):
    i = t*2 + m
    if i < 8:
        return ar(224 + i*4, 4)
    return vr(RES_V + (i-8)*4, 4)

def check_sentinel(regs, t, label_retry, label_ok):
    regs = list(regs)
    A(f"v_max_u32 v{t}, v{regs[0]}, v{regs[1]}")
    rest = regs[2:]
    while len(rest) >= 2:
        A(f"v_max3_u32 v{t}, v{t}, v{rest[0]}, v{rest[1]}")
        rest = rest[2:]
    if rest:
        A(f"v_max_u32 v{t}, v{t}, v{rest[0]}")
    A(f"v_cmp_eq_u32 vcc, -1, v{t}")
    A(f"s_cbranch_vccz {label_ok}")
    spin_guard(label_retry)
    LAB(label_ok)

def wq_dma(i):
    t, h = i // 2, i % 2
    A(f"s_add_u32 m0, s{sRINGB}, {(i % NRING)*1024}")
    A(f"s_add_u32 s{sA0}, s{sA3}, {t*4*8192 + h*256}")
    A(f"buffer_load_dwordx4 v{wOFFQ}, {sr(sWQ,4)}, s{sA0} offen lds")

def wq_base():
    A(f"s_mul_i32 s{sA3}, s3, {112*8192}")
    A(f"s_lshl_b32 s{sA0}, s{sS}, 9")
    A(f"s_add_u32 s{sA3}, s{sA3}, s{sA0}")

def dual_wave_sum(x, y, t0, t1):
    for ctl in ("quad_perm:[1,0,3,2]", "quad_perm:[2,3,0,1]", "row_half_mirror", "row_mirror"):
        NOP(1)
        A(f"v_add_f32_dpp v{x}, v{x}, v{x} {ctl} {DPPM}")
        A(f"v_add_f32_dpp v{y}, v{y}, v{y} {ctl} {DPPM}")
    for sw in ("v_permlane16_swap_b32", "v_permlane32_swap_b32"):
        A(f"v_mov_b32 v{t0}, v{x}")
        A(f"v_mov_b32 v{t1}, v{y}")
        NOP(1)
        A(f"{sw} v{x}, v{t0}")
        A(f"{sw} v{y}, v{t1}")
        A(f"v_add_f32 v{x}, v{x}, v{t0}")
        A(f"v_add_f32 v{y}, v{y}, v{t1}")

def layernorm(xp0, xp1):
    t = wT
    A(f"v_add_u32 v{t+10}, s{sBX}, v{wL4}")
    A(f"v_add_u32 v{t+11}, s{sBX}, v{wXPK}")
    A(f"s_add_u32 s{sA0}, s{sBX}, {LDS_X}")
    A(f"v_mov_b32 v{t+9}, s{sA0}")
    A(f"ds_read_b32 v{t+9}, v{t+9}")
    for k in range(3):
        A(f"ds_read2st64_b32 {vr(t+2*k,2)}, v{t+10} offset0:{2*k} offset1:{2*k+1}")
    A(f"ds_read_b32 v{t+6}, v{t+10} offset:1536")
    A(f"ds_read_b32 v{xp0}, v{t+11}")
    A(f"ds_read_b32 v{xp1}, v{t+11} offset:256")
    A("s_waitcnt lgkmcnt(2)")
    for k in range(7):
        A(f"v_sub_f32 v{t+k}, v{t+k}, v{t+9}")
    A(f"v_add_f32 v{t+8}, v{t}, v{t+1}")
    A(f"v_mul_f32 v{t+7}, v{t}, v{t}")
    for k in range(1, 7):
        A(f"v_fmac_f32 v{t+7}, v{t+k}, v{t+k}")
        if k >= 2:
            A(f"v_add_f32 v{t+8}, v{t+8}, v{t+k}")
    NOP(1)
    dual_wave_sum(t+8, t+7, t+10, t+11)
    A(f"v_mul_f32 v{t+8}, {f32(1/448)}, v{t+8}")
    A(f"v_mul_f32 v{t+7}, {f32(1/448)}, v{t+7}")
    A(f"v_fma_f32 v{t+7}, -v{t+8}, v{t+8}, v{t+7}")
    A(f"v_add_f32 v{t+8}, v{t+8}, v{t+9}")
    A(f"v_max_f32 v{t+7}, 0, v{t+7}")
    bf16_round(t+8, t+8)
    bf16_round(t+7, t+7)
    A("s_waitcnt lgkmcnt(0)")
    A(f"v_add_f32 v{t+7}, {f32(1e-5)}, v{t+7}")
    for x in (xp0, xp1):
        A(f"v_sub_f32 v{x}, v{x}, v{t+8}")
    bf16_round(t+7, t+7)
    A(f"v_sqrt_f32 v{t+7}, v{t+7}")
    for x in (xp0, xp1):
        bf16_round(x, x)
    bf16_round(t+7, t+7)
    A(f"v_rcp_f32 v{t+7}, v{t+7}")
    NOP(1)
    for x in (xp0, xp1):
        A(f"v_mul_f32 v{x}, v{x}, v{t+7}")
    for x in (xp0, xp1):
        A(f"v_cvt_pk_bf16_f32 v{x}, v{x}, v{x}")
    NOP(1)

def gemv16(XP, tile, acc0, acc1, bbs):
    def build(tt):
        for j in range(4):
            A(f"v_and_b32_dpp v{bbs[tt%2]+j}, v{XP+tt//16}, v{wM16+j} row_newbcast:{tt%16} {DPPM}")
    build(0)
    NOP(1)
    for tt in range(28):
        bb = vr(bbs[tt % 2], 4)
        NOP(1)
        A(f"v_mfma_f32_16x16x32_bf16 {vr(acc0,4)}, {tile(tt,0)}, {bb}, {'0' if tt == 0 else vr(acc0,4)}")
        if tt < 27:
            build(tt + 1)
        A(f"v_mfma_f32_16x16x32_bf16 {vr(acc1,4)}, {tile(tt,1)}, {bb}, {'0' if tt == 0 else vr(acc1,4)}")

def red_write(acc0, acc1):
    NOP(8)
    exec_set(0x00ff00ff00ff00ff)
    for m, acc in ((0, acc0), (1, acc1)):
        for r in range(4):
            A(f"ds_write_b32 v{wRW}, v{acc+r} offset:{m*2048 + r*128}")
    exec_all()
    A("s_waitcnt lgkmcnt(0)")
    A("s_barrier")

def gather_vec(off, tag):
    t = wT
    exec_set((1 << 56) - 1)
    A(f"s_sub_u32 s{sA1}, s{sKK}, 2")
    A(f"s_mul_i32 s{sA1}, s{sA1}, 1792")
    A(f"s_add_u32 s{sA1}, s{sA1}, {off}")
    A(f"v_add_u32 v{t+34}, s{sBX}, v{wPI8}")
    A(f"ds_read_b64 {vr(t+32,2)}, v{t+34} offset:{0}")
    LAB(f"L_G{tag}")
    for s in range(16):
        A(f"s_add_u32 s{sA0}, s{sA1}, {s*REGION}")
        A(f"buffer_load_dwordx2 {vr(t+2*s,2)}, v{wPI8}, {sr(sWS,4)}, s{sA0} offen offset:0 sc1")
    A("s_waitcnt vmcnt(0)")
    check_sentinel(range(t, t+32), t+35, f"L_G{tag}", f"L_G{tag}OK")
    for s in range(1, 16):
        A(f"v_add_f32 v{t}, v{t}, v{t+2*s}")
        A(f"v_add_f32 v{t+1}, v{t+1}, v{t+2*s+1}")
    bf16_round(t, t)
    bf16_round(t+1, t+1)
    A("s_waitcnt lgkmcnt(0)")
    A(f"v_add_f32 v{t}, v{t}, v{t+32}")
    A(f"v_add_f32 v{t+1}, v{t+1}, v{t+33}")
    bf16_round(t, t)
    bf16_round(t+1, t+1)

sHI = 12
def bcast8(dst, tmp, src, u):
    return [f"v_mov_b32_dpp v{dst}, v{src} row_newbcast:{u} {DPPM}",
            f"v_mov_b32_dpp v{tmp}, v{src} row_newbcast:{8+u} {DPPM}",
            f"v_cndmask_b32 v{dst}, v{dst}, v{tmp}, s[{sHI}:{sHI+1}]"]

def q_publish(done):
    t = wT
    A("s_cmp_ge_u32 s3, 2")
    A(f"s_cbranch_scc1 {done}")
    A(f"s_lshl_b32 s{sA0}, s3, 11")
    A(f"s_add_u32 s{sA0}, s{sA0}, {LDS_RED}")
    A(f"v_lshl_add_u32 v{t+8}, v0, 5, s{sA0}")
    A(f"ds_read_b128 {vr(t,4)}, v{t+8}")
    A(f"ds_read_b128 {vr(t+4,4)}, v{t+8} offset:16")
    A(f"s_lshl_b32 s{sA1}, s{sKK}, 9")
    A(f"s_add_u32 s{sA1}, s{sA1}, s{sMYREG}")
    A(f"s_lshl_b32 s{sA0}, s3, 8")
    A(f"s_add_u32 s{sA1}, s{sA1}, s{sA0}")
    A(f"v_lshlrev_b32 v{t+9}, 2, v0")
    A("s_waitcnt lgkmcnt(0)")
    for q in range(2):
        b = t + 4*q
        A(f"v_add_f32 v{b}, v{b}, v{b+1}")
        A(f"v_add_f32 v{b+2}, v{b+2}, v{b+3}")
        A(f"v_add_f32 v{b}, v{b}, v{b+2}")
    A(f"v_cvt_pk_bf16_f32 v{t}, v{t}, v{t+4}")
    A(f"v_min_u32 v{t}, -2, v{t}")
    A(f"buffer_store_dword v{t}, v{t+9}, {sr(sWS,4)}, s{sA1} offen offset:{Q_OFF} sc1")
    LAB(done)

def service():
    LAB("L_SERVICE")
    if DIAG:
        A("s_memrealtime s[94:95]")
        A("s_waitcnt lgkmcnt(0)")
    TS(0, 0, lite=True)
    t = wT
    srd(sX, 16, 1792)
    srd(sWQ, 22, 448*4096*2)
    srd(sWO, 24, 448*4096*2)
    srd(sWG, 28, 448*1792*2)
    srd(sWU, 30, 448*1792*2)
    srd(sWD, 32, 448*1792*2)
    srd(sOUT, 34, 1792)
    A(f"s_mul_i32 s{sMYREG}, s{sS}, {REGION}")
    A(f"s_mov_b32 s{sHI}, 0xff00ff00")
    A(f"s_mov_b32 s{sHI+1}, 0xff00ff00")
    for i in range(4):
        A(f"v_mov_b32 v{t+12+i}, -1")
    A(f"v_lshlrev_b32 v{wL16}, 4, v0")
    A(f"s_mul_i32 s{sA1}, s3, {CLEAR_PER_WAVE*1024}")
    A(f"s_add_u32 s{sA1}, s{sA1}, s{sMYREG}")
    for i in range(CLEAR_PER_WAVE):
        A(f"s_add_u32 s{sA0}, s{sA1}, {i*1024}")
        A(f"buffer_store_dwordx4 {vr(t+12,4)}, v{wL16}, {sr(sWS,4)}, s{sA0} offen sc1")
    G, N, U, E8 = t, t+1, t+2, t+3
    A(f"v_lshrrev_b32 v{G}, 4, v0")
    A(f"v_and_b32 v{N}, 15, v0")
    A(f"v_and_b32 v{U}, 7, v0")
    A(f"v_lshrrev_b32 v{E8}, 3, v0")
    A(f"v_lshlrev_b32 v{t+4}, 4, v{N}")
    A(f"s_movk_i32 s{sA0}, 0x2000")
    A(f"v_mad_u32_u24 v{wOFFQ}, v{G}, s{sA0}, v{t+4}")
    A(f"s_movk_i32 s{sA0}, 3584")
    A(f"v_mad_u32_u24 v{wOFFG}, v{G}, s{sA0}, v{t+4}")
    A(f"v_lshlrev_b32 v{t+4}, 4, v{U}")
    A(f"s_movk_i32 s{sA0}, 896")
    A(f"v_mad_u32_u24 v{wOFF8}, v{E8}, s{sA0}, v{t+4}")
    A(f"s_mul_i32 s{sRINGB}, s3, {NRING*1024}")
    A(f"s_add_u32 s{sRINGB}, s{sRINGB}, {LDS_RING}")
    wq_base()
    for i in range(56):
        if i == 8:
            A("s_waitcnt vmcnt(0)")
            A("s_barrier")
            A(f"v_mov_b32 v{t+17}, 0")
            A("s_cmp_lg_u32 s3, 0")
            A("s_cbranch_scc1 L_SVNOFLAG")
            A(f"s_lshl_b32 s{sA0}, s{sS}, 2")
            A(f"v_mov_b32 v{t+16}, 1")
            A("s_mov_b64 exec, 1")
            A(f"buffer_store_dword v{t+16}, v{t+17}, {sr(sDBG,4)}, s{sA0} offen offset:128 sc1")
            exec_all()
            LAB("L_SVNOFLAG")
        A(f"s_add_u32 s{sA0}, s{sA3}, {(i//2)*4*8192 + (i%2)*256}")
        A(f"buffer_load_dwordx4 {ar(4*i,4)}, v{wOFFQ}, {sr(sWQ,4)}, s{sA0} offen {WQPOL}")
    A(f"s_mul_i32 s{sA0}, s3, 56")
    A(f"v_add_u32 v{t+4}, s{sA0}, v0")
    A(f"v_lshlrev_b32 v{wPI8}, 3, v{t+4}")
    A(f"v_lshlrev_b32 v{t+4}, 1, v{t+4}")
    A(f"v_and_b32 v{t+5}, 0xffffffe0, v{t+4}")
    A(f"v_and_b32 v{t+6}, 3, v{t+4}")
    A(f"v_lshl_add_u32 v{t+5}, v{t+6}, 3, v{t+5}")
    A(f"v_bfe_u32 v{t+6}, v{t+4}, 2, 3")
    A(f"v_add_u32 v{t+5}, v{t+5}, v{t+6}")
    A(f"v_lshlrev_b32 v{wC0}, 1, v{t+5}")
    exec_set((1 << 56) - 1)
    for b in range(2):
        for i in range(2):
            A(f"buffer_load_ushort v{t+8+2*b+i}, v{wC0}, {sr(sX,4)}, 0 offen offset:{b*896+16*i}")
    exec_all()
    masks8(wM8, t+16)
    masks16(wM16, t+16)
    A(f"v_mov_b32 v{wZERO}, 0")
    A(f"v_lshlrev_b32 v{wL4}, 2, v0")
    A(f"v_add_u32 v{wL4}, {LDS_X}, v{wL4}")
    A(f"v_lshrrev_b32 v{t+4}, 2, v{U}")
    A(f"v_lshlrev_b32 v{t+4}, 5, v{t+4}")
    A(f"v_lshl_add_u32 v{t+4}, v{E8}, 2, v{t+4}")
    A(f"v_and_b32 v{t+5}, 3, v0")
    A(f"v_add_u32 v{t+4}, v{t+4}, v{t+5}")
    A(f"s_lshl_b32 s{sA0}, s3, 6")
    A(f"v_add_u32 v{t+4}, s{sA0}, v{t+4}")
    A(f"v_lshlrev_b32 v{wGOFF}, 2, v{t+4}")
    A(f"v_min_u32 v{t+4}, 14, v{N}")
    A(f"v_mul_u32_u24 v{t+4}, {PSLOT}, v{t+4}")
    A(f"v_add_u32 v{wML}, 1024, v{t+4}")
    A(f"v_lshrrev_b32 v{t+4}, 1, v{G}")
    A(f"s_lshl_b32 s{sA0}, s3, 1")
    A(f"v_add_u32 v{t+4}, s{sA0}, v{t+4}")
    A(f"v_mul_u32_u24 v{t+4}, 1792, v{t+4}")
    A(f"v_and_b32 v{t+5}, 1, v{G}")
    A(f"v_lshlrev_b32 v{t+5}, 7, v{t+5}")
    A(f"v_lshl_add_u32 v{t+5}, v{U}, 4, v{t+5}")
    A(f"v_add_u32 v{t+4}, v{t+4}, v{t+5}")
    A(f"v_add_u32 v{wR2W}, {LDS_RED2}, v{t+4}")
    A(f"s_lshl_b32 s{sA0}, s3, 9")
    A(f"v_add_u32 v{wZOFF}, s{sA0}, v{t+5}")
    A(f"s_mul_i32 s{sA0}, s3, 112")
    A(f"v_lshl_add_u32 v{t+4}, v{N}, 2, v{G}")
    A(f"v_add_u32 v{t+4}, s{sA0}, v{t+4}")
    A(f"v_and_b32 v{t+5}, 0xffffffe0, v{t+4}")
    A(f"v_and_b32 v{t+6}, 7, v{t+4}")
    A(f"v_lshl_add_u32 v{t+5}, v{t+6}, 2, v{t+5}")
    A(f"v_bfe_u32 v{t+6}, v{t+4}, 3, 2")
    A(f"v_add_u32 v{t+5}, v{t+5}, v{t+6}")
    A(f"v_lshlrev_b32 v{t+5}, 2, v{t+5}")
    A(f"v_add_u32 v{wXPK}, {LDS_X}, v{t+5}")
    A(f"v_lshl_add_u32 v{t+4}, v{G}, 5, v{N}")
    A(f"v_lshlrev_b32 v{t+4}, 4, v{t+4}")
    A(f"s_lshl_b32 s{sA0}, s3, 2")
    A(f"s_add_u32 s{sA0}, s{sA0}, {LDS_RED}")
    A(f"v_add_u32 v{wRW}, s{sA0}, v{t+4}")
    A(f"v_lshl_add_u32 v{t+4}, v{U}, 3, v{E8}")
    A(f"v_lshlrev_b32 v{t+4}, 4, v{t+4}")
    A(f"v_add_u32 v{wHR}, {LDS_RED}, v{t+4}")
    if DEBUG_TS:
        TS(0, 1)
        TS(0, 2)
    A("s_waitcnt vmcnt(0)")
    TS(0, 3)
    for i in range(4):
        A(f"v_lshlrev_b32 v{t+8+i}, 16, v{t+8+i}")
    A(f"v_add_u32 v{wPI8}, {LDS_X}, v{wPI8}")
    exec_set((1 << 56) - 1)
    A(f"ds_write_b64 v{wPI8}, {vr(t+8,2)}")
    A(f"ds_write_b64 v{wPI8}, {vr(t+10,2)} offset:1792")
    exec_all()
    A(f"v_subrev_u32 v{wPI8}, {LDS_X}, v{wPI8}")
    A("s_waitcnt lgkmcnt(0)")
    A("s_barrier")
    A(f"s_mov_b32 s{sKK}, 0")
    XP = t + 12
    AG, AU = t+16, t+20
    LAB("L_SVQ0")
    A(f"s_mul_i32 s{sBX}, s{sKK}, 1792")
    if DEBUG_TS:
        A(f"s_lshl_b32 s95, s{sKK}, 5")
        A("s_add_u32 s95, s95, 16")
        TS(0, "s95")
    layernorm(XP, XP+1)
    gemv16(XP, lambda tt, h: ar(8*tt+4*h, 4), AG, AU, (wB, t+24))
    red_write(AG, AU)
    q_publish("L_SVQ0DONE")
    DG(0)
    if DEBUG_TS:
        A(f"s_lshl_b32 s95, s{sKK}, 5")
        A("s_add_u32 s95, s95, 20")
        TS(0, "s95")
    A("s_waitcnt lgkmcnt(0)")
    A("s_barrier")
    A(f"s_add_u32 s{sKK}, s{sKK}, 1")
    A(f"s_cmp_lt_u32 s{sKK}, 2")
    A("s_cbranch_scc1 L_SVQ0")
    for i in range(NRING):
        wq_dma(i)
    A(f"s_lshl_b32 s{sA1}, s{sS}, 8")
    A(f"s_lshl_b32 s{sA0}, s3, 6")
    A(f"s_add_u32 s{sA1}, s{sA1}, s{sA0}")
    A(f"s_mul_i32 s{sA1}, s{sA1}, 896")
    for rg in range(8):
        A(f"s_add_u32 s{sA0}, s{sA1}, {rg*8*896}")
        for cg in range(7):
            A(f"buffer_load_dwordx4 {wo_tile(rg,cg)}, v{wOFF8}, {sr(sWO,4)}, s{sA0} offen offset:{cg*128} nt")
    A(f"s_mul_i32 s{sA1}, s3, {112*3584}")
    A(f"s_mul_i32 s{sA0}, s{sS}, 224")
    A(f"s_add_u32 s{sA1}, s{sA1}, s{sA0}")
    for tt in range(28):
        A(f"s_add_u32 s{sA0}, s{sA1}, {tt*4*3584}")
        A(f"buffer_load_dwordx4 {gu_tile(tt,0)}, v{wOFFG}, {sr(sWG,4)}, s{sA0} offen nt")
        A(f"buffer_load_dwordx4 {gu_tile(tt,1)}, v{wOFFG}, {sr(sWU,4)}, s{sA0} offen nt")
    A(f"s_mul_i32 s{sA1}, s{sS}, {112*896}")
    A(f"s_lshl_b32 s{sA0}, s3, 8")
    A(f"s_add_u32 s{sA1}, s{sA1}, s{sA0}")
    A(f"s_lshl_b32 s{sA2}, s3, 11")
    A("s_cmp_eq_u32 s3, 3")
    A("s_cbranch_scc1 L_SVD3")
    for rg in range(14):
        A(f"s_add_u32 m0, s{sA2}, {(rg*7+1)*1024}")
        A(f"s_add_u32 s{sA0}, s{sA1}, {rg*8*896+128}")
        A(f"buffer_load_dwordx4 v{wOFF8}, {sr(sWD,4)}, s{sA0} offen nt lds")
    LAB("L_SVD3")
    for rg in range(14):
        A(f"s_add_u32 m0, s{sA2}, {(rg*7)*1024}")
        A(f"s_add_u32 s{sA0}, s{sA1}, {rg*8*896}")
        A(f"buffer_load_dwordx4 v{wOFF8}, {sr(sWD,4)}, s{sA0} offen nt lds")
    A(f"v_and_b32 v{t+1}, 15, v0")
    A(f"v_lshlrev_b32 v{t+1}, 2, v{t+1}")
    LAB("L_SVFL")
    A(f"buffer_load_dword v{t}, v{t+1}, {sr(sDBG,4)}, 0 offen offset:128 sc1")
    A("s_waitcnt vmcnt(0)")
    A(f"v_cmp_eq_u32 vcc, 0, v{t}")
    A("s_cbranch_vccz L_SVLOOP")
    spin_guard("L_SVFL")

    LAB("L_SVLOOP")
    A(f"s_and_b32 s{sBX}, s{sKK}, 1")
    A(f"s_mul_i32 s{sBX}, s{sBX}, 1792")
    A(f"s_sub_u32 s{sA1}, s{sKK}, 2")
    A(f"s_mul_i32 s{sA1}, s{sA1}, {15*PSLOT}")
    A(f"s_add_u32 s{sA1}, s{sA1}, s{sMYREG}")
    A(f"s_add_u32 s{sA1}, s{sA1}, {P_OFF}")
    if MLPOLL:
        A(f"s_cmp_eq_u32 s{sKK}, 5")
        A("s_cbranch_scc1 L_WG")
        LAB("L_WG0")
        A(f"buffer_load_dwordx2 {vr(t+16,2)}, v{wML}, {sr(sWS,4)}, s{sA1} offen sc1")
        A("s_waitcnt vmcnt(0)")
        check_sentinel([t+16, t+17], t+18, "L_WG0", "L_WG0OK")
    LAB("L_WG")
    A(f"buffer_load_dwordx2 {vr(t+16,2)}, v{wML}, {sr(sWS,4)}, s{sA1} offen sc1")
    for c in range(15):
        A(f"s_add_u32 s{sA0}, s{sA1}, {c*PSLOT}")
        A(f"buffer_load_dword v{t+c}, v{wGOFF}, {sr(sWS,4)}, s{sA0} offen sc1")
    A("s_waitcnt vmcnt(0)")
    check_sentinel(list(range(t, t+15)) + [t+16, t+17], t+18, "L_WG", "L_WGOK")
    if DIAG:
        A(f"s_lshl_b32 s95, s{sKK}, 2")
        DG("s95")
    if DEBUG_TS:
        A(f"s_lshl_b32 s95, s{sKK}, 5")
        TS(0, "s95")
    A(f"v_mov_b32 v{t+18}, v{t+16}")
    A(f"v_and_b32 v{t+19}, 15, v0")
    A(f"v_cmp_gt_u32 vcc, 15, v{t+19}")
    row_reduce("v_max_f32", t+18)
    A(f"v_sub_f32 v{t+16}, v{t+16}, v{t+18}")
    A(f"v_exp_f32 v{t+16}, v{t+16}")
    A(f"v_cndmask_b32 v{t+17}, 0, v{t+17}, vcc")
    A(f"v_mov_b32 v{t+18}, 0")
    A(f"v_mov_b32 v{t+19}, 0")
    A(f"v_mov_b32 v{t+20}, 0")
    A(f"v_mul_f32 v{t+17}, v{t+16}, v{t+17}")
    NOP(1)
    ctl4 = ("quad_perm:[1,0,3,2]", "quad_perm:[2,3,0,1]", "row_half_mirror", "row_mirror")
    for c in range(15):
        A(f"v_fmac_f32_dpp v{t+18+c%3}, v{t+16}, v{t+c} row_newbcast:{c} {DPPM}")
        if c % 3 == 1 and c // 3 < 4:
            A(f"v_add_f32_dpp v{t+17}, v{t+17}, v{t+17} {ctl4[c//3]} {DPPM}")
        if c == 12:
            A(f"v_rcp_f32 v{t+17}, v{t+17}")
    A(f"v_add_f32 v{t+18}, v{t+18}, v{t+19}")
    A(f"v_add_f32 v{t+18}, v{t+18}, v{t+20}")
    A(f"v_mul_f32 v{t+18}, v{t+18}, v{t+17}")
    A(f"v_cvt_pk_bf16_f32 v{t+30}, v{t+18}, v{t+18}")
    NOP(2)
    def wbuild(rg):
        bt = t + 28
        bb = (wB, t+32)[rg % 2]
        r = bcast8(bt, t+29, t+30, rg)
        r += [f"v_and_b32 v{bb+j}, v{bt}, v{wM8+j}" for j in range(4)]
        return r
    for x in wbuild(0):
        A(x)
    NOP(2)
    for rg in range(8):
        bb = (wB, t+32)[rg % 2]
        nxt = wbuild(rg + 1) if rg < 7 else []
        for cg in range(7):
            c = "0" if rg == 0 else vr(t+4*cg, 4)
            A(f"v_mfma_f32_16x16x32_bf16 {vr(t+4*cg,4)}, {wo_tile(rg,cg)}, {vr(bb,4)}, {c}")
            if cg < 4:
                for x in nxt[2*cg:2*cg+2]:
                    A(x)
    NOP(8)
    exec_set(0xff00ff0000ff00ff)
    for cg in range(7):
        A(f"ds_write_b128 v{wR2W}, {vr(t+4*cg,4)} offset:{cg*256}")
    exec_all()
    A("s_waitcnt lgkmcnt(0)")
    A("s_barrier")
    exec_set((1 << 56) - 1)
    A(f"v_add_u32 v{t+16}, {LDS_RED2}, v{wPI8}")
    for p in range(8):
        A(f"ds_read_b64 {vr(t+2*p,2)}, v{t+16} offset:{p*1792}")
    A(f"s_sub_u32 s{sA1}, s{sKK}, 2")
    A(f"s_mul_i32 s{sA1}, s{sA1}, 1792")
    A(f"s_add_u32 s{sA1}, s{sA1}, s{sMYREG}")
    A("s_waitcnt lgkmcnt(0)")
    for p in range(1, 8):
        A(f"v_add_f32 v{t}, v{t}, v{t+2*p}")
        A(f"v_add_f32 v{t+1}, v{t+1}, v{t+2*p+1}")
    A(f"v_min_u32 v{t}, -2, v{t}")
    A(f"v_min_u32 v{t+1}, -2, v{t+1}")
    A(f"buffer_store_dwordx2 {vr(t,2)}, v{wPI8}, {sr(sWS,4)}, s{sA1} offen offset:{Y_OFF} sc1")
    exec_all()
    if DEBUG_TS:
        A(f"s_lshl_b32 s95, s{sKK}, 5")
        A("s_add_u32 s95, s95, 4")
        TS(0, "s95")
    A(f"s_add_u32 s{sBX}, s{sBX}, {LDS_X}")
    gather_vec(Y_OFF, "Y")
    A(f"ds_write_b64 v{t+34}, {vr(t,2)}")
    exec_all()
    A(f"s_sub_u32 s{sBX}, s{sBX}, {LDS_X}")
    A("s_waitcnt lgkmcnt(0)")
    A("s_barrier")
    if DEBUG_TS:
        A(f"s_lshl_b32 s95, s{sKK}, 5")
        A("s_add_u32 s95, s95, 8")
        TS(0, "s95")
    XP = t + 12
    PR(0)
    layernorm(XP, XP+1)
    PR(1)
    AG, AU = t+16, t+20
    gemv16(XP, gu_tile, AG, AU, (wB, t+24))
    PR(2)
    red_write(AG, AU)
    PR(3)
    for k in range(2):
        for m in range(2):
            A(f"ds_read_b128 {vr(t+4*(2*k+m),4)}, v{wHR} offset:{m*2048 + k*1024}")
    DT = t + 20
    A(f"s_lshl_b32 s{sA0}, s3, 11")
    A(f"v_add_u32 v{t+16}, s{sA0}, v{wL16}")
    A(f"v_add_u32 v{t+17}, {56*1024}, v{t+16}")
    def dread(i):
        rg, ci = i // 2, i % 2
        if rg < 8:
            A(f"ds_read_b128 {vr(DT+4*(i%4),4)}, v{t+16} offset:{(rg*7+ci)*1024}")
        else:
            A(f"ds_read_b128 {vr(DT+4*(i%4),4)}, v{t+17} offset:{((rg-8)*7+ci)*1024}")
    for i in range(4):
        dread(i)
    A("s_waitcnt lgkmcnt(4)")
    for q in range(4):
        b = t + 4*q
        A(f"v_add_f32 v{b}, v{b}, v{b+1}")
        A(f"v_add_f32 v{b+2}, v{b+2}, v{b+3}")
    for q in range(4):
        b = t + 4*q
        A(f"v_add_f32 v{b}, v{b}, v{b+2}")
    for q in range(4):
        bf16_round(t+4*q, t+4*q)
    for k in range(2):
        A(f"v_mul_f32 v{t+8*k}, {f32(-LOG2E)}, v{t+8*k}")
    for k in range(2):
        A(f"v_exp_f32 v{t+8*k}, v{t+8*k}")
    NOP(1)
    for k in range(2):
        A(f"v_add_f32 v{t+8*k}, 1.0, v{t+8*k}")
    for k in range(2):
        A(f"v_rcp_f32 v{t+8*k}, v{t+8*k}")
    NOP(1)
    for k in range(2):
        bf16_round(t+8*k, t+8*k)
    for k in range(2):
        A(f"v_mul_f32 v{t+8*k}, v{t+8*k}, v{t+8*k+4}")
    HP = (t+1, t+2)
    for k in range(2):
        A(f"v_cvt_pk_bf16_f32 v{HP[k]}, v{t+8*k}, v{t+8*k}")
    NOP(2)
    AD = (t+4, t+8)
    def dbuild(rg):
        bt = t + 3
        bb = (wB, t+12)[rg % 2]
        for x in bcast8(bt, t, HP[rg // 8], rg % 8):
            A(x)
        for j in range(4):
            A(f"v_and_b32 v{bb+j}, v{bt}, v{wM8+j}")
    PR(4)
    dbuild(0)
    NOP(1)
    for rg in range(14):
        bb = (wB, t+12)[rg % 2]
        for ci in range(2):
            i = rg*2 + ci
            rem = min(27 - i, 3)
            A(f"s_waitcnt lgkmcnt({rem})")
            c = "0" if rg == 0 else vr(AD[ci], 4)
            A(f"v_mfma_f32_16x16x32_bf16 {vr(AD[ci],4)}, {vr(DT+4*(i%4),4)}, {vr(bb,4)}, {c}")
            if i + 4 < 28:
                dread(i + 4)
            if ci == 0 and rg < 13:
                dbuild(rg + 1)
    PR(5)
    NOP(8)
    for k in range(8):
        A(f"v_mov_b32_dpp v{t+12+k}, v{t+4+k} row_ror:8 {DPPM}")
    NOP(1)
    for k in range(8):
        A(f"v_permlane32_swap_b32 v{t+12+k}, v{t+20+k}")
    NOP(1)
    for k in range(8):
        A(f"v_add_f32 v{t+4+k}, v{t+4+k}, v{t+20+k}")
    for k in range(8):
        A(f"v_min_u32 v{t+4+k}, -2, v{t+4+k}")
    A(f"s_sub_u32 s{sA1}, s{sKK}, 2")
    A(f"s_mul_i32 s{sA1}, s{sA1}, 1792")
    A(f"s_add_u32 s{sA1}, s{sA1}, s{sMYREG}")
    A(f"s_add_u32 s{sA1}, s{sA1}, {Z_OFF}")
    A("s_cmp_eq_u32 s3, 3")
    A(f"s_cselect_b32 s{sA2}, 0x80000000, s{sA1}")
    exec_set(0x00ff00ff)
    A(f"buffer_store_dwordx4 {vr(t+4,4)}, v{wZOFF}, {sr(sWS,4)}, s{sA1} offen sc1")
    A(f"buffer_store_dwordx4 {vr(t+8,4)}, v{wZOFF}, {sr(sWS,4)}, s{sA2} offen offset:256 sc1")
    exec_all()
    PR(6)
    PRDUMP(7)
    if DEBUG_TS:
        A(f"s_lshl_b32 s95, s{sKK}, 5")
        A("s_add_u32 s95, s95, 12")
        TS(0, "s95")
    A(f"s_cmp_lt_u32 s{sKK}, 4")
    A("s_cbranch_scc1 L_SVZ")
    A(f"s_cmp_lg_u32 s{sS}, 0")
    A("s_cbranch_scc1 L_SVNEXT")
    LAB("L_SVZ")
    NOP(2)
    A(f"s_add_u32 s{sBX}, s{sBX}, {LDS_X}")
    gather_vec(Z_OFF, "Z")
    A(f"s_sub_u32 s{sBX}, s{sBX}, {LDS_X}")
    A(f"s_cmp_lt_u32 s{sKK}, 4")
    A("s_cbranch_scc1 L_SVZ2")
    A(f"s_lshr_b32 s{sA0}, s{sBX}, 1")
    A(f"buffer_store_short_d16_hi v{t}, v{wC0}, {sr(sOUT,4)}, s{sA0} offen")
    A(f"buffer_store_short_d16_hi v{t+1}, v{wC0}, {sr(sOUT,4)}, s{sA0} offen offset:16")
    exec_all()
    if DIAG:
        A(f"s_lshl_b32 s95, s{sKK}, 2")
        A("s_add_u32 s95, s95, 16")
        DG("s95")
    if DEBUG_TS:
        A(f"s_lshl_b32 s95, s{sKK}, 5")
        A("s_add_u32 s95, s95, 16")
        TS(0, "s95", lite=True)
    A("s_branch L_SVNEXT")
    LAB("L_SVZ2")
    A(f"ds_write_b64 v{t+34}, {vr(t,2)}")
    exec_all()
    A("s_waitcnt lgkmcnt(0)")
    LAB("L_SVQ")
    A("s_barrier")
    if DEBUG_TS:
        A(f"s_lshl_b32 s95, s{sKK}, 5")
        A("s_add_u32 s95, s95, 16")
        TS(0, "s95")
    layernorm(XP, XP+1)
    wq_base()
    A(f"v_add_u32 v{t+14}, s{sRINGB}, v{wL16}")
    QT = t + 28
    for tt in range(28):
        bb = (wB, t+24)[tt % 2]
        for h in range(2):
            i = tt*2 + h
            outstanding_after = min(55 - i, NRING - 1 - h)
            if h == 0:
                A(f"s_waitcnt vmcnt({max(min(55 - i - 1, NRING - 2), 0)})")
            A(f"ds_read_b128 {vr(QT+4*h,4)}, v{t+14} offset:{(i % NRING)*1024}")
        for j in range(4):
            A(f"v_and_b32_dpp v{bb+j}, v{XP+tt//16}, v{wM16+j} row_newbcast:{tt%16} {DPPM}")
        A("s_waitcnt lgkmcnt(0)")
        for h in range(2):
            i = tt*2 + h
            if i + NRING < 56:
                wq_dma(i + NRING)
        NOP(1)
        for h, acc in ((0, AG), (1, AU)):
            c = "0" if tt == 0 else vr(acc, 4)
            A(f"v_mfma_f32_16x16x32_bf16 {vr(acc,4)}, {vr(QT+4*h,4)}, {vr(bb,4)}, {c}")
        NOP(4)
    for i in range(NRING):
        wq_dma(i)
    red_write(AG, AU)
    q_publish("L_SVQDONE")
    if DIAG:
        A(f"s_lshl_b32 s95, s{sKK}, 2")
        A("s_add_u32 s95, s95, 16")
        DG("s95")
    if DEBUG_TS:
        A(f"s_lshl_b32 s95, s{sKK}, 5")
        A("s_add_u32 s95, s95, 20")
        TS(0, "s95")
    LAB("L_SVNEXT")
    A(f"s_add_u32 s{sKK}, s{sKK}, 1")
    A(f"s_cmp_lt_u32 s{sKK}, 6")
    A("s_cbranch_scc1 L_SVLOOP")

def main():
    global DEBUG_TS
    out = f"cdna_kernels/{NAME}.s"
    for a in sys.argv[1:]:
        if a == "--ts":
            DEBUG_TS = True
        elif a.startswith("--mall="):
            globals()["MALLMASK"] = int(a[7:])
        elif a.startswith("--statq="):
            globals()["STATQ"] = int(a[8:])
        elif a.startswith("--codepf="):
            globals()["CODEPF"] = int(a[9:])
        elif a == "--probe":
            globals()["PROBE"] = True
        elif a == "--wqnt":
            globals()["WQPOL"] = "nt"
        elif a.startswith("--nocomp="):
            globals()["NOCOMP"] = int(a[9:])
        elif a == "--mlpoll":
            globals()["MLPOLL"] = True
        elif a == "--tslite":
            DEBUG_TS = True
            globals()["TSLITE"] = True
        elif a.startswith("--xhalf="):
            globals()["XHALF"] = int(a[8:])
        elif a in ("--fix", "--diag"):
            pass
        elif a == "--statdef":
            globals()["STATPOL"] = ""
        else:
            out = a
    header()
    stream()
    service()
    footer()
    open(out, "w").write("\n".join(x for x in L if x is not None) + "\n")
    print("wrote", out, len(L), "lines")

main()
```

```python
import struct, sys

NAME = "interleave_layers__mha_block_cached__glu_gated_glu__decode"
DEBUG_TS = False
SPIN_MAX = 400000
STATPOL = "nt"
CODEPF = 3
PROBE = False
WQPOL = ""
NOCOMP = 0
MLPOLL = True
TSLITE = False
XHALF = 0
FIX = "--fix" in sys.argv
DIAG = "--diag" in sys.argv
RELQ = 44
MLTHR = 6
DEPTHCUT = 0
WQSPLIT = 20
QREG = "--qreg" in sys.argv
STATQ = 16
MALLMASK = None

def f32(x):
    return "0x%08x" % struct.unpack("<I", struct.pack("<f", x))[0]

LOG2E = 1.4426950408889634
REGION = 98304
Q_OFF, Y_OFF, Z_OFF, P_OFF = 256, 2304, 9472, 16640
PSLOT = 1152
CLEAR_PER_WAVE = 21
NDYN = 784
NSTAT = 240
TS_OFF = 0x200000

L = []
def A(s):
    L.append("    " + s)
def LAB(s):
    L.append(s + ":")
def NOP(n):
    if n > 0:
        A(f"s_nop {n-1}")
def vr(a, n):
    return f"v[{a}:{a+n-1}]"
def ar(a, n):
    return f"a[{a}:{a+n-1}]"
def sr(a, n):
    return f"s[{a}:{a+n-1}]"
DPPM = "row_mask:0xf bank_mask:0xf"

def srd(dst, ptr, nbytes):
    A(f"s_mov_b32 s{dst}, s{ptr}")
    A(f"s_and_b32 s{dst+1}, s{ptr+1}, 0xffff")
    A(f"s_mov_b32 s{dst+2}, {nbytes}")
    A(f"s_mov_b32 s{dst+3}, 0x20000")

def exec_set(val):
    lo, hi = val & 0xffffffff, val >> 32
    A(f"s_mov_b32 exec_lo, 0x{lo:x}")
    A(f"s_mov_b32 exec_hi, 0x{hi:x}")
def exec_all():
    A("s_mov_b64 exec, -1")

def xrow_reduce(op, x, t):
    A(f"v_mov_b32 v{t}, v{x}")
    NOP(2)
    A(f"v_permlane16_swap_b32 v{x}, v{t}")
    NOP(1)
    A(f"{op} v{x}, v{x}, v{t}")
    A(f"v_mov_b32 v{t}, v{x}")
    NOP(2)
    A(f"v_permlane32_swap_b32 v{x}, v{t}")
    NOP(1)
    A(f"{op} v{x}, v{x}, v{t}")

def row_reduce(op, x):
    for ctl in ("quad_perm:[1,0,3,2]", "quad_perm:[2,3,0,1]", "row_half_mirror", "row_mirror"):
        NOP(2)
        A(f"{op}_dpp v{x}, v{x}, v{x} {ctl} {DPPM}")

def wave_reduce(op, x, t):
    row_reduce(op, x)
    xrow_reduce(op, x, t)

def bf16_round(dst, src):
    A(f"v_cvt_pk_bf16_f32 v{dst}, v{src}, v{src}")
    A(f"v_and_b32 v{dst}, 0xffff0000, v{dst}")

def DG(word):
    if not DIAG:
        return
    n = len(L)
    A("s_or_b32 s98, s2, s3")
    A("s_cmp_lg_u32 s98, 0")
    A(f"s_cbranch_scc1 L_DG{n}")
    A("s_memrealtime s[98:99]")
    A("s_waitcnt lgkmcnt(0)")
    A("s_sub_u32 s98, s98, s94")
    A("v_mov_b32 v62, s98")
    if isinstance(word, int):
        A(f"s_mov_b32 s98, {word*4}")
    else:
        A(f"s_mov_b32 s98, {word}")
    A("s_mov_b64 s[100:101], exec")
    A("s_mov_b64 exec, 1")
    A("buffer_store_dword v62, off, s[52:55], s98")
    A("s_mov_b64 exec, s[100:101]")
    LAB(f"L_DG{n}")

def PR(i):
    if DEBUG_TS and PROBE:
        A(f"s_memtime s[{16+2*i}:{17+2*i}]")
def PRDUMP(n):
    if DEBUG_TS and PROBE:
        A("s_waitcnt lgkmcnt(0)")
        A("s_mov_b64 exec, 1")
        A("v_mov_b32 v63, 0")
        for i in range(n):
            A(f"v_mov_b32 v62, s{16+2*i}")
            A(f"buffer_store_dword v62, v63, s[48:51], s97 offen offset:{224+4*i}")
        exec_all()

TSREG = [62]
def TS(idx_sgpr_or_const, slot, lite=False):
    if not DEBUG_TS or (TSLITE and not lite):
        return
    A("s_memrealtime s[98:99]")
    A("s_waitcnt lgkmcnt(0)")
    A(f"v_mov_b32 v{TSREG[0]}, s98")
    A(f"s_add_u32 s98, s97, {slot*4}" if isinstance(slot, int) else f"s_add_u32 s98, s97, {slot}")
    A("s_mov_b64 s[100:101], exec")
    A("s_mov_b64 exec, 1")
    A(f"buffer_store_dword v{TSREG[0]}, off, s[48:51], s98")
    A("s_mov_b64 exec, s[100:101]")

def header():
    L.append("; Kernarg: 0 A_x, 8 A_k_cache, 16 A_v_cache, 24 A_wq, 32 A_wo, 40 B_x, 48 B_w_gate, 56 B_w_up,")
    L.append("; @launch grid=(256,1,1) block=(256,1,1) lds=163840")
    L.append('.amdgcn_target "amdgcn-amd-amdhsa--gfx950"')
    L.append(".text")
    L.append(f".globl {NAME}_kernel")
    L.append(".p2align 8")
    L.append(f".type {NAME}_kernel,@function")
    LAB(f"{NAME}_kernel")
    A("s_cmp_ge_u32 s2, 256")
    A("s_cbranch_scc1 L_END")
    A("s_load_dwordx16 s[16:31], s[0:1], 0")
    A("s_load_dwordx8 s[32:39], s[0:1], 64")
    if CODEPF:
        A("s_getpc_b64 s[4:5]")
        A("v_lshlrev_b32 v2, 6, v0")
        for i in range(CODEPF):
            A(f"global_load_dword v63, v2, s[4:5]")
            A(f"v_add_u32 v2, 0x4000, v2")
    A("v_lshrrev_b32 v1, 6, v0")
    A("v_and_b32 v0, 63, v0")
    A("v_readfirstlane_b32 s3, v1")
    A(f"s_mov_b32 s96, {SPIN_MAX}")
    A("s_waitcnt lgkmcnt(0)")
    srd(48, 38, 0x40000000 if DEBUG_TS else 16 * REGION)
    srd(52, 36, 256)
    if DEBUG_TS:
        A("s_lshl_b32 s97, s2, 2")
        A("s_add_u32 s97, s97, s3")
        A("s_lshl_b32 s97, s97, 8")
        A(f"s_add_u32 s97, s97, {TS_OFF}")
    A("s_cmp_lt_u32 s2, 16")
    A("s_cbranch_scc1 L_SERVICE")

def footer():
    LAB("L_END")
    A("s_endpgm")
    L.append(f".fill (({NAME}_kernel + {CODEPF*16384+256} - .) / 4), 4, 0xbf800000")
    L.append('.section .rodata,"a"')
    L.append(".p2align 6")
    L.append(f".amdhsa_kernel {NAME}_kernel")
    L.append("  .amdhsa_next_free_vgpr 512")
    L.append("  .amdhsa_next_free_sgpr 102")
    L.append("  .amdhsa_accum_offset 256")
    L.append("  .amdhsa_group_segment_fixed_size 0")
    L.append("  .amdhsa_kernarg_size 96")
    L.append("  .amdhsa_user_sgpr_count 2")
    L.append("  .amdhsa_user_sgpr_kernarg_segment_ptr 1")
    L.append("  .amdhsa_system_sgpr_workgroup_id_x 1")
    L.append("  .amdhsa_float_denorm_mode_32 3")
    L.append(".end_amdhsa_kernel")

def spin_guard(label_retry):
    A("s_sleep 2")
    A("s_sub_u32 s96, s96, 1")
    A("s_cmp_eq_u32 s96, 0")
    A("s_cbranch_scc1 L_END")
    A(f"s_branch {label_retry}")

def masks16(m, t):
    A(f"v_and_b32 v{t}, 15, v0")
    A(f"v_and_b32 v{t+1}, 1, v0")
    A(f"v_lshlrev_b32 v{t+1}, 4, v{t+1}")
    A(f"v_mov_b32 v{m}, 0xffff")
    A(f"v_lshlrev_b32 v{t+1}, v{t+1}, v{m}")
    A(f"v_lshrrev_b32 v{t}, 1, v{t}")
    for j in range(4):
        A(f"v_cmp_eq_u32 vcc, {j}, v{t}")
        NOP(2)
        A(f"v_cndmask_b32 v{m+j}, 0, v{t+1}, vcc")

def masks8(m, t):
    A(f"v_and_b32 v{t}, 7, v0")
    A(f"v_and_b32 v{t+1}, 1, v0")
    A(f"v_lshlrev_b32 v{t+1}, 4, v{t+1}")
    A(f"v_mov_b32 v{m}, 0xffff")
    A(f"v_lshlrev_b32 v{t+1}, v{t+1}, v{m}")
    A(f"v_lshrrev_b32 v{t}, 1, v{t}")
    for j in range(4):
        A(f"v_cmp_eq_u32 vcc, {j}, v{t}")
        NOP(2)
        A(f"v_cndmask_b32 v{m+j}, 0, v{t+1}, vcc")

vKOFF, vVOFF, vTICK = 1, 2, 3
vMSK = 4
vM, vL = 8, 9
vQN = 10
vS0, vS1, vSa, vSb = 12, 13, 14, 15
vX, vY, vF, vT = vSa, vSb, vSb, vSb
vP0, vP1 = vS0, vS1
vB0, vB1 = 16, 20
vACC = 24
vQ = 32
VX = 48
RING = 64
KST = 128
sK, sV, sWS, sDBG = 40, 44, 48, 52
sHEAD, sC, sWV, sHOFF = 4, 5, 6, 7
sLDPH, sLIM, sTB, sNOFF, sCUR, sPROC, sQTAG, sT0 = 8, 9, 10, 11, 12, 13, 14, 15
sCC, sREG, sT1, sT2, sT3, sPEND, sLDSK = 72, 73, 74, 75, 76, 77, 78
LDS_KW = 9 * 4096
LDS_SCR = 4 * LDS_KW
LDS_PART = LDS_SCR
LDS_CNT = LDS_SCR + 8448
LDS_QB = LDS_SCR + 8704
FIRST = 510
NDYN = 1024 - FIRST
sRET, sRET2, sRELOAD = 79, 80, 81
sPROC_S = str(sPROC)

def loadK(dst, soff, pol="nt"):
    for j in range(4):
        A(f"buffer_load_dwordx4 {vr(dst+4*j,4)}, v{vKOFF}, {sr(sK,4)}, s{soff} offen offset:{128*j} {pol}")
def loadV(dst, soff, agpr=False, pol="nt"):
    for j in range(4):
        d = ar(dst+4*j, 4) if agpr else vr(dst+4*j, 4)
        A(f"buffer_load_dwordx4 {d}, v{vVOFF}, {sr(sV,4)}, s{soff} offen offset:{256*j} {pol}")

def kdots(R, S):
    for i in range(8):
        for (acc, k) in ((vSa, i), (vSb, 8 + i)):
            c = "0" if i == 0 else f"v{acc}"
            A(f"v_dot2_f32_bf16 v{acc}, v{R+k}, v{vQ+k}, {c}")
    NOP(3)
    A(f"v_add_f32 v{S}, v{vSa}, v{vSb}")

def kdots_lds(ldsoff, S):
    tmp = (vB0, vB1)
    A(f"ds_read_b128 {vr(tmp[0],4)}, v{vS1} offset:{ldsoff}")
    A(f"ds_read_b128 {vr(tmp[1],4)}, v{vS1} offset:{ldsoff+1024}")
    for j in range(4):
        A(f"s_waitcnt lgkmcnt({1 if j < 3 else 0})")
        acc = vSa if j % 2 == 0 else vSb
        for i in range(4):
            c = "0" if (j < 2 and i == 0) else f"v{acc}"
            A(f"v_dot2_f32_bf16 v{acc}, v{tmp[j%2]+i}, v{vQ+4*j+i}, {c}")
        if j < 2:
            A(f"ds_read_b128 {vr(tmp[j%2],4)}, v{vS1} offset:{ldsoff+1024*(j+2)}")
    NOP(3)
    A(f"v_add_f32 v{S}, v{vSa}, v{vSb}")

def softmax_update():
    for ctl in ("quad_perm:[1,0,3,2]", "quad_perm:[2,3,0,1]", "row_half_mirror"):
        NOP(1)
        A(f"v_add_f32_dpp v{vS0}, v{vS0}, v{vS0} {ctl} {DPPM}")
        A(f"v_add_f32_dpp v{vS1}, v{vS1}, v{vS1} {ctl} {DPPM}")
        NOP(1)
    A(f"v_cvt_pk_bf16_f32 v{vT}, v{vS0}, v{vS1}")
    A(f"v_lshlrev_b32 v{vS0}, 16, v{vT}")
    A(f"v_and_b32 v{vS1}, 0xffff0000, v{vT}")
    A(f"v_max_f32 v{vX}, v{vS0}, v{vS1}")
    NOP(2)
    A(f"v_max_f32_dpp v{vX}, v{vX}, v{vX} row_ror:8 {DPPM}")
    xrow_reduce("v_max_f32", vX, vY)
    A(f"v_mul_f32 v{vX}, s{sCC}, v{vX}")
    A(f"v_ceil_f32 v{vX}, v{vX}")
    A(f"v_max_f32 v{vX}, v{vX}, v{vM}")
    A(f"v_sub_f32 v{vF}, v{vM}, v{vX}")
    A(f"v_fma_f32 v{vS0}, v{vS0}, s{sCC}, -v{vX}")
    A(f"v_fma_f32 v{vS1}, v{vS1}, s{sCC}, -v{vX}")
    A(f"v_exp_f32 v{vF}, v{vF}")
    A(f"v_exp_f32 v{vS0}, v{vS0}")
    A(f"v_exp_f32 v{vS1}, v{vS1}")
    A(f"v_mov_b32 v{vM}, v{vX}")
    A(f"v_fma_f32 v{vL}, v{vL}, v{vF}, v{vS0}")
    A(f"v_cvt_pk_bf16_f32 v{vP0}, v{vS0}, v{vS0}")
    A(f"v_add_f32 v{vL}, v{vL}, v{vS1}")
    A(f"v_cvt_pk_bf16_f32 v{vP1}, v{vS1}, v{vS1}")
    for k in range(8):
        A(f"v_mul_f32 v{vACC+k}, v{vACC+k}, v{vF}")

def vmfma(R, P, agpr=False):
    rr = (lambda k: ar(R+4*k, 4)) if agpr else (lambda k: vr(R+4*k, 4))
    for j in range(4):
        A(f"v_and_b32 v{vB0+j}, v{P}, v{vMSK+j}")
    for j in range(4):
        A(f"v_and_b32_dpp v{vB1+j}, v{P}, v{vMSK+j} row_ror:8 {DPPM}")
    a0, a1 = vr(vACC, 4), vr(vACC+4, 4)
    A(f"v_mfma_f32_16x16x32_bf16 {a0}, {rr(0)}, {vr(vB0,4)}, {a0}")
    A(f"v_mfma_f32_16x16x32_bf16 {a1}, {rr(1)}, {vr(vB0,4)}, {a1}")
    A(f"v_mfma_f32_16x16x32_bf16 {a0}, {rr(2)}, {vr(vB1,4)}, {a0}")
    A(f"v_mfma_f32_16x16x32_bf16 {a1}, {rr(3)}, {vr(vB1,4)}, {a1}")

def ticket_atomic(dst):
    A("s_mov_b64 exec, 1")
    A(f"buffer_atomic_add v{dst}, off, {sr(sWS,4)}, s{sREG} sc0 sc1")
    exec_all()

def q_load(ph):
    A(f"s_lshl_b32 s{sT1}, s{ph}, 9")
    A(f"s_add_u32 s{sT1}, s{sT1}, s{sREG}")
    A(f"v_lshlrev_b32 v{vSa}, 3, v0")
    A(f"buffer_load_dwordx2 {vr(vQN,2)}, v{vSa}, {sr(sWS,4)}, s{sT1} offen offset:{Q_OFF} sc1")

dec_n = [0]
def decode(src, nxt):
    n = dec_n[0]; dec_n[0] += 1
    A(f"v_readfirstlane_b32 s{sT0}, v{src}")
    A(f"v_mov_b32 v{src}, 1")
    A(f"s_add_u32 s{sT0}, s{sT0}, 1")
    LAB(f"L_DEC{n}")
    A(f"s_cmp_lt_u32 s{sT0}, s{sLIM}")
    A(f"s_cbranch_scc1 L_DOK{n}")
    A(f"s_add_u32 s{sLDPH}, s{sLDPH}, 1")
    A(f"s_add_u32 s{sLIM}, s{sLIM}, {NDYN}")
    A(f"s_bitcmp1_b32 s{sLDPH}, 0")
    A(f"s_cselect_b32 s{sT1}, 0x10000000, 0")
    A(f"s_add_u32 s{sTB}, s{sTB}, s{sT1}")
    A(f"s_sub_u32 s{sTB}, s{sTB}, {0x08000000 + NDYN*8192}")
    A(f"s_cmp_lt_u32 s{sLDPH}, 4")
    A(f"s_cbranch_scc0 L_DFIN{n}")
    q_load(sLDPH)
    A(f"s_mov_b32 s{sQTAG}, s{sLDPH}")
    A(f"s_branch L_DEC{n}")
    LAB(f"L_DFIN{n}")
    A(f"s_mov_b32 s{sLIM}, -1")
    LAB(f"L_DOK{n}")
    A(f"s_lshl_b32 s{sNOFF}, s{sT0}, 13")
    A(f"s_add_u32 s{sNOFF}, s{sNOFF}, s{sTB}")
    A(f"s_cmp_ge_u32 s{sLDPH}, 4")
    A(f"s_cselect_b32 s{sNOFF}, 0x80000000, s{sNOFF}")
    A(f"s_add_u32 s{sT3}, s{sNOFF}, 4096")
    if nxt is not None:
        ticket_atomic(nxt)

def stat_loadK(u, q=None):
    A(f"s_add_u32 s{sT1}, s{sT2}, {u*60*4096}")
    if (q or STATQ) < 64:
        A(f"s_waitcnt vmcnt({(q or STATQ)-4})")
    if u < 8:
        loadK(KST + 16*u, sT1)
    else:
        for j in range(4):
            A(f"s_add_u32 m0, s{sLDSK}, {(u-8)*4096 + 896*j}")
            NOP(1)
            A(f"buffer_load_dwordx4 v{vKOFF}, {sr(sK,4)}, s{sT1} offen offset:{128*j} nt lds")
def stat_loadV(u, q=None):
    A(f"s_add_u32 s{sT1}, s{sT2}, {u*60*4096}")
    if (q or STATQ) < 64:
        A(f"s_waitcnt vmcnt({(q or STATQ)-4})")
    if u < 16:
        loadV(16*u, sT1, agpr=True)
    else:
        loadV(VX, sT1)
def stat_load_block(blk, q=None):
    us = [u for u in (2*blk, 2*blk+1) if u < 17]
    for u in us: stat_loadK(u, q)
    for u in us: stat_loadV(u, q)

def statics():
    for blk in range(9):
        younger = max(7 - blk, 0)*16 + (8 if blk < 8 else 0) + 16
        if younger < 63:
            A(f"s_cmp_lg_u32 s{sRELOAD}, 0")
            A(f"s_cbranch_scc1 L_NOWT{blk}")
            A(f"s_waitcnt vmcnt({younger})")
            LAB(f"L_NOWT{blk}")
        if blk >= 4:
            A(f"v_lshl_add_u32 v{vS1}, v0, 4, s{sLDSK}")
        for i, S in ((0, vS0), (1, vS1)):
            u = blk*2 + i
            if u < 8:
                kdots(KST + 16*u, S)
            elif u < 17:
                kdots_lds((u-8)*4096, S)
            else:
                A(f"v_mov_b32 v{vS1}, {f32(-1e30)}")
        softmax_update()
        if blk < 8:
            vmfma(blk*32, vP0, agpr=True)
            vmfma(blk*32+16, vP1, agpr=True)
        else:
            vmfma(VX, vP0)
        A(f"s_cmp_eq_u32 s{sRELOAD}, 0")
        A(f"s_cbranch_scc1 L_NORL{blk}")
        if blk == 2:
            A("s_waitcnt vmcnt(32)")
        stat_load_block(blk, RELQ)
        LAB(f"L_NORL{blk}")
        NOP(3)

def scr_addr(b):
    if isinstance(b, int):
        A(f"s_mov_b32 s{sT0}, {LDS_PART + 4224*b}")
    else:
        A(f"s_and_b32 s{sT0}, s{b}, 1")
        A(f"s_mul_i32 s{sT0}, s{sT0}, 4224")
        A(f"s_add_u32 s{sT0}, s{sT0}, {LDS_PART}")
    A(f"s_mul_i32 s{sT1}, s3, 1056")
    A(f"s_add_u32 s{sT1}, s{sT1}, s{sT0}")
    A(f"v_lshrrev_b32 v{vS0}, 4, v0")
    A(f"v_and_b32 v{vS1}, 15, v0")
    A(f"v_lshl_add_u32 v{vS0}, v{vS0}, 3, v{vS1}")
    A(f"v_lshl_add_u32 v{vX}, v{vS0}, 4, s{sT1}")

def spill(b):
    scr_addr(b)
    NOP(2)
    A(f"v_add_f32_dpp v{vL}, v{vL}, v{vL} row_ror:8 {DPPM}")
    xrow_reduce("v_add_f32", vL, vY)
    exec_set(0x00ff00ff00ff00ff)
    A(f"ds_write_b128 v{vX}, {vr(vACC,4)}")
    A(f"ds_write_b128 v{vX}, {vr(vACC+4,4)} offset:512")
    A("s_mov_b64 exec, 1")
    A(f"ds_write_b64 v{vX}, {vr(vM,2)} offset:1024")
    exec_all()

def q_read(b):
    A(f"s_lshl_b32 s{sT1}, s3, 10")
    if isinstance(b, int):
        A(f"s_add_u32 s{sT1}, s{sT1}, {LDS_QB + 512*b}")
    else:
        A(f"s_and_b32 s{sT0}, s{b}, 1")
        A(f"s_lshl_b32 s{sT0}, s{sT0}, 9")
        A(f"s_add_u32 s{sT1}, s{sT1}, s{sT0}")
        A(f"s_add_u32 s{sT1}, s{sT1}, {LDS_QB}")
        A(f"v_lshl_add_u32 v{vS0}, v0, 3, s{sT1}")
        A(f"ds_write_b64 v{vS0}, {vr(vQN,2)}")
    A(f"v_and_b32 v{vS1}, 7, v0")
    A(f"v_lshl_add_u32 v{vS1}, v{vS1}, 4, s{sT1}")
    A("s_waitcnt lgkmcnt(0)")
    for j in range(4):
        A(f"ds_read_b128 {vr(vQ+4*j,4)}, v{vS1} offset:{128*j}")

def restore(b):
    q_read(b)
    scr_addr(b)
    A(f"v_mov_b32 v{vY}, s{sT1}")
    for k in range(8):
        A(f"v_mov_b32 v{vACC+k}, 0")
    A(f"ds_read_b64 {vr(vM,2)}, v{vY} offset:1024")
    exec_set(0x00ff00ff00ff00ff)
    A(f"ds_read_b128 {vr(vACC,4)}, v{vX}")
    A(f"ds_read_b128 {vr(vACC+4,4)}, v{vX} offset:512")
    exec_all()
    A("s_waitcnt lgkmcnt(0)")
    A(f"v_mul_f32 v{vL}, 0.125, v{vL}" if False else f"v_mul_f32 v{vL}, {f32(0.125)}, v{vL}")

fin_n = [0]
def finalize(ph):
    n = fin_n[0]; fin_n[0] += 1
    spill(ph & 1 if isinstance(ph, int) else ph)
    if isinstance(ph, int):
        A(f"s_mov_b32 s{sT1}, {LDS_CNT + 4*ph}")
    else:
        A(f"s_lshl_b32 s{sT1}, s{ph}, 2")
        A(f"s_add_u32 s{sT1}, s{sT1}, {LDS_CNT}")
    A("s_mov_b64 exec, 1")
    A(f"v_mov_b32 v{vX}, s{sT1}")
    A(f"v_mov_b32 v{vY}, 1")
    A("s_waitcnt lgkmcnt(0)")
    A(f"ds_add_rtn_u32 v{vY}, v{vX}, v{vY}")
    A("s_waitcnt lgkmcnt(0)")
    A(f"v_readfirstlane_b32 s{sT1}, v{vY}")
    exec_all()
    NOP(2)
    A(f"s_cmp_lg_u32 s{sT1}, 3")
    A(f"s_cbranch_scc1 L_NOPUB{n}")
    A(f"v_mov_b32 v{vX}, s{sT0}")
    A(f"v_lshl_add_u32 v{vY}, v0, 4, s{sT0}")
    for w in range(4):
        A(f"ds_read_b64 {vr(vB0+2*w,2)}, v{vX} offset:{1056*w+1024}")
    for w in range(4):
        A(f"ds_read_b128 {vr(vQ+4*w,4)}, v{vY} offset:{1056*w}")
    if isinstance(ph, int):
        A(f"s_add_u32 s{sT0}, s{sC}, {15*ph}")
    else:
        A(f"s_mul_i32 s{sT0}, s{ph}, 15")
        A(f"s_add_u32 s{sT0}, s{sT0}, s{sC}")
    A(f"s_mul_i32 s{sT0}, s{sT0}, {PSLOT}")
    A(f"s_add_u32 s{sT0}, s{sT0}, s{sREG}")
    A(f"s_add_u32 s{sT0}, s{sT0}, {P_OFF}")
    A(f"v_lshlrev_b32 v{vS0}, 4, v0")
    A("s_waitcnt lgkmcnt(4)")
    A(f"v_max3_f32 v{vM}, v{vB0}, v{vB0+2}, v{vB0+4}")
    A(f"v_max_f32 v{vM}, v{vM}, v{vB0+6}")
    for w in range(4):
        A(f"v_sub_f32 v{vB0+2*w}, v{vB0+2*w}, v{vM}")
    for w in range(4):
        A(f"v_exp_f32 v{vB0+2*w}, v{vB0+2*w}")
    NOP(1)
    A(f"v_mul_f32 v{vL}, v{vB0}, v{vB0+1}")
    for w in range(1, 4):
        A(f"v_fmac_f32 v{vL}, v{vB0+2*w}, v{vB0+2*w+1}")
    A("s_waitcnt lgkmcnt(0)")
    for r in range(4):
        A(f"v_mul_f32 v{vACC+r}, v{vB0}, v{vQ+r}")
    for w in range(1, 4):
        for r in range(4):
            A(f"v_fmac_f32 v{vACC+r}, v{vB0+2*w}, v{vQ+4*w+r}")
    for r in range(4):
        A(f"v_min_u32 v{vACC+r}, -2, v{vACC+r}")
    A(f"v_min_u32 v{vM}, -2, v{vM}")
    A(f"v_min_u32 v{vL}, -2, v{vL}")
    A(f"buffer_store_dwordx4 {vr(vACC,4)}, v{vS0}, {sr(sWS,4)}, s{sT0} offen sc1")
    A("s_mov_b64 exec, 1")
    A(f"buffer_store_dwordx2 {vr(vM,2)}, off, {sr(sWS,4)}, s{sT0} offset:1024 sc1")
    exec_all()
    NOP(2)
    LAB(f"L_NOPUB{n}")
    if DEBUG_TS:
        if isinstance(ph, int):
            TS(0, 3 + 2*ph)
        else:
            A(f"s_lshl_b32 s95, s{ph}, 3")
            A("s_add_u32 s95, s95, 12")
            TS(0, "s95")

def stream():
    TSREG[0] = vB1 + 2
    TS(0, 0)
    A(f"s_sub_u32 s{sT0}, s2, 16")
    A(f"s_mul_hi_u32 s{sHEAD}, s{sT0}, 0x11111112")
    A(f"s_mul_i32 s{sT1}, s{sHEAD}, 15")
    A(f"s_sub_u32 s{sC}, s{sT0}, s{sT1}")
    A(f"s_lshl_b32 s{sWV}, s{sC}, 2")
    A(f"s_add_u32 s{sWV}, s{sWV}, s3")
    A(f"s_lshl_b32 s{sHOFF}, s{sHEAD}, 23")
    srd(sK, 18, 0x10000000)
    srd(sV, 20, 0x10000000)
    A(f"v_lshrrev_b32 v{vX}, 3, v0")
    A(f"v_and_b32 v{vY}, 7, v0")
    A(f"v_lshlrev_b32 v{vX}, 9, v{vX}")
    A(f"v_lshl_add_u32 v{vKOFF}, v{vY}, 4, v{vX}")
    A(f"v_lshrrev_b32 v{vX}, 4, v0")
    A(f"v_and_b32 v{vY}, 15, v0")
    A(f"v_lshlrev_b32 v{vX}, 10, v{vX}")
    A(f"v_lshl_add_u32 v{vVOFF}, v{vY}, 4, v{vX}")
    A(f"s_lshl_b32 s{sT2}, s{sWV}, 12")
    A(f"s_add_u32 s{sT2}, s{sT2}, s{sHOFF}")
    A(f"s_mul_i32 s{sLDSK}, s3, {LDS_KW}")
    for blk in range(4):
        stat_load_block(blk)
    TS(0, 20)
    A(f"s_mov_b32 s{sCC}, {f32(LOG2E/16)}")
    A(f"s_mul_i32 s{sREG}, s{sHEAD}, {REGION}")
    A(f"v_mov_b32 v{vTICK}, 1")
    A(f"v_mov_b32 v{vS0}, 1")
    masks16(vMSK, vX)
    A(f"v_lshlrev_b32 v{vX}, 2, v0")
    A(f"v_and_b32 v{vX}, 12, v{vX}")
    A(f"v_add_u32 v{vX}, {LDS_CNT}, v{vX}")
    A(f"v_mov_b32 v{vY}, 0")
    A(f"ds_write_b32 v{vX}, v{vY}")
    A("s_waitcnt lgkmcnt(0)")
    A("s_barrier")
    A(f"s_lshl_b32 s{sT0}, s{sHEAD}, 2")
    A(f"buffer_load_dword v{vS1}, off, {sr(sDBG,4)}, s{sT0} offset:128 sc1")
    for blk in range(4, 8):
        stat_load_block(blk)
    LAB("L_FLAGCHK")
    A(f"v_readfirstlane_b32 s{sT1}, v{vS1}")
    NOP(2)
    A(f"s_cmp_lg_u32 s{sT1}, 0")
    A("s_cbranch_scc1 L_FLAGOK")
    A("s_sleep 2")
    A("s_sub_u32 s96, s96, 1")
    A("s_cmp_eq_u32 s96, 0")
    A("s_cbranch_scc1 L_END")
    A(f"buffer_load_dword v{vS1}, off, {sr(sDBG,4)}, s{sT0} offset:128 sc1")
    A("s_waitcnt vmcnt(0)")
    A("s_branch L_FLAGCHK")
    LAB("L_FLAGOK")
    TS(0, 1)
    ticket_atomic(vS0)
    ticket_atomic(vTICK)
    A(f"s_mov_b32 s{sLDPH}, 0")
    q_load(sLDPH)
    stat_load_block(8)
    A(f"s_add_u32 s{sT2}, s{sT2}, 0x08000000")
    A(f"s_mov_b32 s{sQTAG}, 0")
    A(f"s_mov_b32 s{sLIM}, {NDYN}")
    A(f"s_add_u32 s{sTB}, s{sHOFF}, {FIRST*8192}")
    A(f"s_mov_b32 s{sPROC}, 0")
    A(f"s_mov_b32 s{sRELOAD}, 0")
    A("s_waitcnt vmcnt(8)")
    decode(vS0, None)
    loadK(RING, sNOFF); loadK(RING+16, sT3); loadV(RING+32, sNOFF); loadV(RING+48, sT3)
    A(f"s_mov_b32 s{sCUR}, s{sLDPH}")
    A("s_waitcnt vmcnt(12)")
    decode(vTICK, vTICK)
    A("s_branch L_SETUP")

    L.append(".p2align 6")
    LAB("L_LOOP")
    A(f"s_waitcnt vmcnt({12-DEPTHCUT})")
    decode(vTICK, vTICK)
    A(f"s_cmp_lg_u32 s{sCUR}, s{sPROC}")
    A("s_cbranch_scc1 L_SWITCH")
    def body(wait):
        kdots(RING, vS0)
        loadK(RING, sNOFF)
        if wait: A(f"s_waitcnt vmcnt({13-DEPTHCUT})")
        kdots(RING+16, vS1)
        loadK(RING+16, sT3)
        softmax_update()
        if wait: A(f"s_waitcnt vmcnt({13-DEPTHCUT})")
        vmfma(RING+32, vP0)
        loadV(RING+32, sNOFF)
        if wait: A(f"s_waitcnt vmcnt({13-DEPTHCUT})")
        vmfma(RING+48, vP1)
        loadV(RING+48, sT3)
        A(f"s_mov_b32 s{sCUR}, s{sLDPH}")
    LAB("L_BODY")
    body(True)
    A(f"s_cmp_eq_u32 s{sPEND}, 0")
    A("s_cbranch_scc1 L_LOOP")
    A(f"s_mov_b32 s{sRET2}, 0")
    LAB("L_PEND")
    A(f"s_mov_b32 s{sRET}, 0")
    A(f"s_cmp_eq_u32 s{sPEND}, 1")
    A("s_cbranch_scc1 L_DOSTAT")
    spill(0)
    restore(1)
    A(f"s_mov_b32 s{sRET}, 1")
    LAB("L_DOSTAT")
    NOP(4)
    statics()
    A(f"s_cmp_eq_u32 s{sRET}, 2")
    A("s_cbranch_scc1 L_AFTER2")
    A(f"s_cmp_eq_u32 s{sRET}, 0")
    A("s_cbranch_scc1 L_PENDDONE")
    finalize(1)
    restore(0)
    LAB("L_PENDDONE")
    A(f"s_mov_b32 s{sPEND}, 0")
    A(f"s_cmp_eq_u32 s{sRET2}, 0")
    A("s_cbranch_scc1 L_LOOP")

    LAB("L_SWITCH")
    A(f"s_cmp_eq_u32 s{sPEND}, 0")
    A("s_cbranch_scc1 L_SW1")
    A(f"s_mov_b32 s{sRET2}, 1")
    A("s_waitcnt vmcnt(0)")
    A("s_branch L_PEND")
    LAB("L_SW1")
    A(f"s_cmp_lg_u32 s{sPROC}, 1")
    A("s_cbranch_scc1 L_SW2")
    spill(1)
    TS(0, 24)
    A("s_branch L_SW3")
    LAB("L_SW2")
    finalize(sPROC_S)
    LAB("L_SW3")
    A(f"s_add_u32 s{sPROC}, s{sPROC}, 1")
    A(f"s_cmp_ge_u32 s{sPROC}, 4")
    A("s_cbranch_scc1 L_END")
    LAB("L_SETUP")
    if DEBUG_TS:
        A(f"s_lshl_b32 s95, s{sPROC}, 2")
        A("s_add_u32 s95, s95, 64")
        TS(0, "s95")
    A(f"s_cmp_eq_u32 s{sQTAG}, s{sPROC}")
    A("s_cbranch_scc1 L_QCHK")
    LAB("L_QSLOW")
    A(f"s_mov_b32 s{sQTAG}, -1")
    q_load(sPROC)
    A("s_waitcnt vmcnt(0)")
    LAB("L_QCHK")
    A(f"v_max_u32 v{vX}, v{vQN}, v{vQN+1}")
    A(f"v_cmp_eq_u32 vcc, -1, v{vX}")
    A("s_cbranch_vccz L_QOK")
    spin_guard("L_QSLOW")
    LAB("L_QOK")
    q_read(sPROC_S)
    for k in range(8):
        A(f"v_mov_b32 v{vACC+k}, 0")
    A(f"v_mov_b32 v{vL}, 0")
    A(f"v_mov_b32 v{vM}, {f32(-1e30)}")
    A("s_waitcnt lgkmcnt(0)")
    if DEBUG_TS:
        A(f"s_lshl_b32 s95, s{sPROC}, 3")
        A("s_add_u32 s95, s95, 8")
        TS(0, "s95")
    A(f"s_cmp_lg_u32 s{sPROC}, 1")
    A(f"s_cselect_b32 s{sPEND}, 1, 0")
    A(f"s_cmp_lg_u32 s{sPROC}, 2")
    A("s_cbranch_scc1 L_SW4")
    A(f"s_mov_b32 s{sRELOAD}, 1")
    A(f"s_mov_b32 s{sRET}, 2")
    A("s_branch L_DOSTAT")
    LAB("L_AFTER2")
    A(f"s_mov_b32 s{sRELOAD}, 0")
    A(f"s_mov_b32 s{sPEND}, 2")
    TS(0, 25)
    A(f"s_cmp_lg_u32 s{sCUR}, s{sPROC}")
    A("s_cbranch_scc1 L_SWITCH")
    body(False)
    A(f"s_mov_b32 s{sRET2}, 0")
    A("s_branch L_PEND")
    LAB("L_SW4")
    A(f"s_cmp_lg_u32 s{sCUR}, s{sPROC}")
    A("s_cbranch_scc1 L_SWITCH")
    A("s_branch L_BODY")
    TSREG[0] = 62

sS = 2
sX, sWQ, sWO, sWG, sWU, sWD, sOUT = 40, 44, 56, 60, 64, 68, 80
sKK, sBX, sMYREG = 4, 5, 6
sA0, sA1, sA2, sA3 = 7, 8, 9, 10
sRINGB = 11
wM8, wM16 = 4, 8
wOFF8, wOFFG, wOFFQ, wPI8 = 1, 2, 3, 12
wGOFF, wML, wR2W, wXPK = 13, 14, 15, 16
wRW, wHR, wL16, wZOFF = 17, 18, 19, 20
wL4, wZERO, wC0, wQR = 21, 22, 23, 0
wB = 24
wT = 28
RES_V = 64
LDS_DOWN = 0
LDS_RING = 100352
NRING = 10
LDS_X = LDS_RING + 4*NRING*1024
LDS_RED2 = LDS_X + 3584
LDS_RED = LDS_RED2 + 14336

def wo_tile(rg, cg):
    return ar((rg*7+cg)*4, 4)
def gu_tile(t, m):
    i = t*2 + m
    if i < 8:
        return ar(224 + i*4, 4)
    return vr(RES_V + (i-8)*4, 4)

def check_sentinel(regs, t, label_retry, label_ok):
    regs = list(regs)
    A(f"v_max_u32 v{t}, v{regs[0]}, v{regs[1]}")
    rest = regs[2:]
    while len(rest) >= 2:
        A(f"v_max3_u32 v{t}, v{t}, v{rest[0]}, v{rest[1]}")
        rest = rest[2:]
    if rest:
        A(f"v_max_u32 v{t}, v{t}, v{rest[0]}")
    A(f"v_cmp_eq_u32 vcc, -1, v{t}")
    A(f"s_cbranch_vccz {label_ok}")
    spin_guard(label_retry)
    LAB(label_ok)

def wq_dma(i):
    t, h = i // 2, i % 2
    A(f"s_add_u32 m0, s{sRINGB}, {((i - 46) if QREG else (i % NRING))*1024}")
    A(f"s_add_u32 s{sA0}, s{sA3}, {t*4*8192 + h*256}")
    A(f"buffer_load_dwordx4 v{wOFFQ}, {sr(sWQ,4)}, s{sA0} offen lds")

def wq_regs(lo, hi, tag):
    A(f"s_cmp_ge_u32 s{sKK}, 4")
    A(f"s_cbranch_scc1 L_NOWQ{tag}")
    wq_base()
    for i in range(lo, hi):
        A(f"s_add_u32 s{sA0}, s{sA3}, {(i//2)*4*8192 + (i%2)*256}")
        A(f"buffer_load_dwordx4 {ar(4*i,4)}, v{wOFFQ}, {sr(sWQ,4)}, s{sA0} offen")
    LAB(f"L_NOWQ{tag}")

def wo_loads(n):
    A(f"s_lshl_b32 s{sA1}, s{sS}, 8")
    A(f"s_lshl_b32 s{sA0}, s3, 6")
    A(f"s_add_u32 s{sA1}, s{sA1}, s{sA0}")
    A(f"s_mul_i32 s{sA1}, s{sA1}, 896")
    for j in range(n):
        rg, cg = j // 7, j % 7
        if cg == 0:
            A(f"s_add_u32 s{sA0}, s{sA1}, {rg*8*896}")
        A(f"buffer_load_dwordx4 {wo_tile(rg,cg)}, v{wOFF8}, {sr(sWO,4)}, s{sA0} offen offset:{cg*128} {'' if QREG else 'nt'}")

def wq_base():
    A(f"s_mul_i32 s{sA3}, s3, {112*8192}")
    A(f"s_lshl_b32 s{sA0}, s{sS}, 9")
    A(f"s_add_u32 s{sA3}, s{sA3}, s{sA0}")

def dual_wave_sum(x, y, t0, t1):
    for ctl in ("quad_perm:[1,0,3,2]", "quad_perm:[2,3,0,1]", "row_half_mirror", "row_mirror"):
        NOP(1)
        A(f"v_add_f32_dpp v{x}, v{x}, v{x} {ctl} {DPPM}")
        A(f"v_add_f32_dpp v{y}, v{y}, v{y} {ctl} {DPPM}")
    for sw in ("v_permlane16_swap_b32", "v_permlane32_swap_b32"):
        A(f"v_mov_b32 v{t0}, v{x}")
        A(f"v_mov_b32 v{t1}, v{y}")
        NOP(1)
        A(f"{sw} v{x}, v{t0}")
        A(f"{sw} v{y}, v{t1}")
        A(f"v_add_f32 v{x}, v{x}, v{t0}")
        A(f"v_add_f32 v{y}, v{y}, v{t1}")

def layernorm(xp0, xp1):
    t = wT
    A(f"v_add_u32 v{t+10}, s{sBX}, v{wL4}")
    A(f"v_add_u32 v{t+11}, s{sBX}, v{wXPK}")
    A(f"s_add_u32 s{sA0}, s{sBX}, {LDS_X}")
    A(f"v_mov_b32 v{t+9}, s{sA0}")
    A(f"ds_read_b32 v{t+9}, v{t+9}")
    for k in range(3):
        A(f"ds_read2st64_b32 {vr(t+2*k,2)}, v{t+10} offset0:{2*k} offset1:{2*k+1}")
    A(f"ds_read_b32 v{t+6}, v{t+10} offset:1536")
    A(f"ds_read_b32 v{xp0}, v{t+11}")
    A(f"ds_read_b32 v{xp1}, v{t+11} offset:256")
    A("s_waitcnt lgkmcnt(2)")
    for k in range(7):
        A(f"v_sub_f32 v{t+k}, v{t+k}, v{t+9}")
    A(f"v_add_f32 v{t+8}, v{t}, v{t+1}")
    A(f"v_mul_f32 v{t+7}, v{t}, v{t}")
    for k in range(1, 7):
        A(f"v_fmac_f32 v{t+7}, v{t+k}, v{t+k}")
        if k >= 2:
            A(f"v_add_f32 v{t+8}, v{t+8}, v{t+k}")
    NOP(1)
    dual_wave_sum(t+8, t+7, t+10, t+11)
    A(f"v_mul_f32 v{t+8}, {f32(1/448)}, v{t+8}")
    A(f"v_mul_f32 v{t+7}, {f32(1/448)}, v{t+7}")
    A(f"v_fma_f32 v{t+7}, -v{t+8}, v{t+8}, v{t+7}")
    A(f"v_add_f32 v{t+8}, v{t+8}, v{t+9}")
    A(f"v_max_f32 v{t+7}, 0, v{t+7}")
    bf16_round(t+8, t+8)
    bf16_round(t+7, t+7)
    A("s_waitcnt lgkmcnt(0)")
    A(f"v_add_f32 v{t+7}, {f32(1e-5)}, v{t+7}")
    for x in (xp0, xp1):
        A(f"v_sub_f32 v{x}, v{x}, v{t+8}")
    bf16_round(t+7, t+7)
    A(f"v_sqrt_f32 v{t+7}, v{t+7}")
    for x in (xp0, xp1):
        bf16_round(x, x)
    bf16_round(t+7, t+7)
    A(f"v_rcp_f32 v{t+7}, v{t+7}")
    NOP(1)
    for x in (xp0, xp1):
        A(f"v_mul_f32 v{x}, v{x}, v{t+7}")
    for x in (xp0, xp1):
        A(f"v_cvt_pk_bf16_f32 v{x}, v{x}, v{x}")
    NOP(1)

def gemv16(XP, tile, acc0, acc1, bbs, order=None, hooks=None):
    order = order or list(range(28))
    hooks = hooks or {}
    def build(n):
        tt = order[n]
        for j in range(4):
            A(f"v_and_b32_dpp v{bbs[n%2]+j}, v{XP+tt//16}, v{wM16+j} row_newbcast:{tt%16} {DPPM}")
    build(0)
    NOP(1)
    for n in range(28):
        tt = order[n]
        bb = vr(bbs[n % 2], 4)
        if n in hooks:
            hooks[n]()
        NOP(1)
        A(f"v_mfma_f32_16x16x32_bf16 {vr(acc0,4)}, {tile(tt,0)}, {bb}, {'0' if n == 0 else vr(acc0,4)}")
        if n < 27:
            build(n + 1)
        A(f"v_mfma_f32_16x16x32_bf16 {vr(acc1,4)}, {tile(tt,1)}, {bb}, {'0' if n == 0 else vr(acc1,4)}")

def red_write(acc0, acc1):
    NOP(8)
    exec_set(0x00ff00ff00ff00ff)
    for m, acc in ((0, acc0), (1, acc1)):
        for r in range(4):
            A(f"ds_write_b32 v{wRW}, v{acc+r} offset:{m*2048 + r*128}")
    exec_all()
    A("s_waitcnt lgkmcnt(0)")
    A("s_barrier")

def gather_vec(off, tag):
    t = wT
    exec_set((1 << 56) - 1)
    A(f"s_sub_u32 s{sA1}, s{sKK}, 2")
    A(f"s_mul_i32 s{sA1}, s{sA1}, 1792")
    A(f"s_add_u32 s{sA1}, s{sA1}, {off}")
    A(f"v_add_u32 v{t+34}, s{sBX}, v{wPI8}")
    A(f"ds_read_b64 {vr(t+32,2)}, v{t+34} offset:{0}")
    LAB(f"L_G{tag}")
    for s in range(16):
        A(f"s_add_u32 s{sA0}, s{sA1}, {s*REGION}")
        A(f"buffer_load_dwordx2 {vr(t+2*s,2)}, v{wPI8}, {sr(sWS,4)}, s{sA0} offen offset:0 sc1")
    A("s_waitcnt vmcnt(0)")
    check_sentinel(range(t, t+32), t+35, f"L_G{tag}", f"L_G{tag}OK")
    for s in range(1, 16):
        A(f"v_add_f32 v{t}, v{t}, v{t+2*s}")
        A(f"v_add_f32 v{t+1}, v{t+1}, v{t+2*s+1}")
    bf16_round(t, t)
    bf16_round(t+1, t+1)
    A("s_waitcnt lgkmcnt(0)")
    A(f"v_add_f32 v{t}, v{t}, v{t+32}")
    A(f"v_add_f32 v{t+1}, v{t+1}, v{t+33}")
    bf16_round(t, t)
    bf16_round(t+1, t+1)

sHI = 12
def bcast8(dst, tmp, src, u):
    return [f"v_mov_b32_dpp v{dst}, v{src} row_newbcast:{u} {DPPM}",
            f"v_mov_b32_dpp v{tmp}, v{src} row_newbcast:{8+u} {DPPM}",
            f"v_cndmask_b32 v{dst}, v{dst}, v{tmp}, s[{sHI}:{sHI+1}]"]

def q_publish(done):
    t = wT
    A("s_cmp_ge_u32 s3, 2")
    A(f"s_cbranch_scc1 {done}")
    A(f"s_lshl_b32 s{sA0}, s3, 11")
    A(f"s_add_u32 s{sA0}, s{sA0}, {LDS_RED}")
    A(f"v_lshl_add_u32 v{t+8}, v0, 5, s{sA0}")
    A(f"ds_read_b128 {vr(t,4)}, v{t+8}")
    A(f"ds_read_b128 {vr(t+4,4)}, v{t+8} offset:16")
    A(f"s_lshl_b32 s{sA1}, s{sKK}, 9")
    A(f"s_add_u32 s{sA1}, s{sA1}, s{sMYREG}")
    A(f"s_lshl_b32 s{sA0}, s3, 8")
    A(f"s_add_u32 s{sA1}, s{sA1}, s{sA0}")
    A(f"v_lshlrev_b32 v{t+9}, 2, v0")
    A("s_waitcnt lgkmcnt(0)")
    for q in range(2):
        b = t + 4*q
        A(f"v_add_f32 v{b}, v{b}, v{b+1}")
        A(f"v_add_f32 v{b+2}, v{b+2}, v{b+3}")
        A(f"v_add_f32 v{b}, v{b}, v{b+2}")
    A(f"v_cvt_pk_bf16_f32 v{t}, v{t}, v{t+4}")
    A(f"v_min_u32 v{t}, -2, v{t}")
    A(f"buffer_store_dword v{t}, v{t+9}, {sr(sWS,4)}, s{sA1} offen offset:{Q_OFF} sc1")
    LAB(done)

def service():
    LAB("L_SERVICE")
    if DIAG:
        A("s_memrealtime s[94:95]")
        A("s_waitcnt lgkmcnt(0)")
    TS(0, 0, lite=True)
    t = wT
    srd(sX, 16, 1792)
    srd(sWQ, 22, 448*4096*2)
    srd(sWO, 24, 448*4096*2)
    srd(sWG, 28, 448*1792*2)
    srd(sWU, 30, 448*1792*2)
    srd(sWD, 32, 448*1792*2)
    srd(sOUT, 34, 1792)
    A(f"s_mul_i32 s{sMYREG}, s{sS}, {REGION}")
    A(f"s_mov_b32 s{sHI}, 0xff00ff00")
    A(f"s_mov_b32 s{sHI+1}, 0xff00ff00")
    for i in range(4):
        A(f"v_mov_b32 v{t+12+i}, -1")
    A(f"v_lshlrev_b32 v{wL16}, 4, v0")
    A(f"s_mul_i32 s{sA1}, s3, {CLEAR_PER_WAVE*1024}")
    A(f"s_add_u32 s{sA1}, s{sA1}, s{sMYREG}")
    for i in range(CLEAR_PER_WAVE):
        A(f"s_add_u32 s{sA0}, s{sA1}, {i*1024}")
        A(f"buffer_store_dwordx4 {vr(t+12,4)}, v{wL16}, {sr(sWS,4)}, s{sA0} offen sc1")
    G, N, U, E8 = t, t+1, t+2, t+3
    A(f"v_lshrrev_b32 v{G}, 4, v0")
    A(f"v_and_b32 v{N}, 15, v0")
    A(f"v_and_b32 v{U}, 7, v0")
    A(f"v_lshrrev_b32 v{E8}, 3, v0")
    A(f"v_lshlrev_b32 v{t+4}, 4, v{N}")
    A(f"s_movk_i32 s{sA0}, 0x2000")
    A(f"v_mad_u32_u24 v{wOFFQ}, v{G}, s{sA0}, v{t+4}")
    A(f"s_movk_i32 s{sA0}, 3584")
    A(f"v_mad_u32_u24 v{wOFFG}, v{G}, s{sA0}, v{t+4}")
    A(f"v_lshlrev_b32 v{t+4}, 4, v{U}")
    A(f"s_movk_i32 s{sA0}, 896")
    A(f"v_mad_u32_u24 v{wOFF8}, v{E8}, s{sA0}, v{t+4}")
    A(f"s_mul_i32 s{sRINGB}, s3, {NRING*1024}")
    A(f"s_add_u32 s{sRINGB}, s{sRINGB}, {LDS_RING}")
    wq_base()
    for i in range(56):
        if i == 8:
            A("s_waitcnt vmcnt(0)")
            A("s_barrier")
            A(f"v_mov_b32 v{t+17}, 0")
            A("s_cmp_lg_u32 s3, 0")
            A("s_cbranch_scc1 L_SVNOFLAG")
            A(f"s_lshl_b32 s{sA0}, s{sS}, 2")
            A(f"v_mov_b32 v{t+16}, 1")
            A("s_mov_b64 exec, 1")
            A(f"buffer_store_dword v{t+16}, v{t+17}, {sr(sDBG,4)}, s{sA0} offen offset:128 sc1")
            exec_all()
            LAB("L_SVNOFLAG")
        A(f"s_add_u32 s{sA0}, s{sA3}, {(i//2)*4*8192 + (i%2)*256}")
        A(f"buffer_load_dwordx4 {ar(4*i,4)}, v{wOFFQ}, {sr(sWQ,4)}, s{sA0} offen {WQPOL}")
    A(f"s_mul_i32 s{sA0}, s3, 56")
    A(f"v_add_u32 v{t+4}, s{sA0}, v0")
    A(f"v_lshlrev_b32 v{wPI8}, 3, v{t+4}")
    A(f"v_lshlrev_b32 v{t+4}, 1, v{t+4}")
    A(f"v_and_b32 v{t+5}, 0xffffffe0, v{t+4}")
    A(f"v_and_b32 v{t+6}, 3, v{t+4}")
    A(f"v_lshl_add_u32 v{t+5}, v{t+6}, 3, v{t+5}")
    A(f"v_bfe_u32 v{t+6}, v{t+4}, 2, 3")
    A(f"v_add_u32 v{t+5}, v{t+5}, v{t+6}")
    A(f"v_lshlrev_b32 v{wC0}, 1, v{t+5}")
    exec_set((1 << 56) - 1)
    for b in range(2):
        for i in range(2):
            A(f"buffer_load_ushort v{t+8+2*b+i}, v{wC0}, {sr(sX,4)}, 0 offen offset:{b*896+16*i}")
    exec_all()
    masks8(wM8, t+16)
    masks16(wM16, t+16)
    A(f"v_mov_b32 v{wZERO}, 0")
    A(f"v_lshlrev_b32 v{wL4}, 2, v0")
    A(f"v_add_u32 v{wL4}, {LDS_X}, v{wL4}")
    A(f"v_lshrrev_b32 v{t+4}, 2, v{U}")
    A(f"v_lshlrev_b32 v{t+4}, 5, v{t+4}")
    A(f"v_lshl_add_u32 v{t+4}, v{E8}, 2, v{t+4}")
    A(f"v_and_b32 v{t+5}, 3, v0")
    A(f"v_add_u32 v{t+4}, v{t+4}, v{t+5}")
    A(f"s_lshl_b32 s{sA0}, s3, 6")
    A(f"v_add_u32 v{t+4}, s{sA0}, v{t+4}")
    A(f"v_lshlrev_b32 v{wGOFF}, 2, v{t+4}")
    A(f"v_min_u32 v{t+4}, 14, v{N}")
    A(f"v_mul_u32_u24 v{t+4}, {PSLOT}, v{t+4}")
    A(f"v_add_u32 v{wML}, 1024, v{t+4}")
    A(f"v_lshrrev_b32 v{t+4}, 1, v{G}")
    A(f"s_lshl_b32 s{sA0}, s3, 1")
    A(f"v_add_u32 v{t+4}, s{sA0}, v{t+4}")
    A(f"v_mul_u32_u24 v{t+4}, 1792, v{t+4}")
    A(f"v_and_b32 v{t+5}, 1, v{G}")
    A(f"v_lshlrev_b32 v{t+5}, 7, v{t+5}")
    A(f"v_lshl_add_u32 v{t+5}, v{U}, 4, v{t+5}")
    A(f"v_add_u32 v{t+4}, v{t+4}, v{t+5}")
    A(f"v_add_u32 v{wR2W}, {LDS_RED2}, v{t+4}")
    A(f"s_lshl_b32 s{sA0}, s3, 9")
    A(f"v_add_u32 v{wZOFF}, s{sA0}, v{t+5}")
    A(f"s_mul_i32 s{sA0}, s3, 112")
    A(f"v_lshl_add_u32 v{t+4}, v{N}, 2, v{G}")
    A(f"v_add_u32 v{t+4}, s{sA0}, v{t+4}")
    A(f"v_and_b32 v{t+5}, 0xffffffe0, v{t+4}")
    A(f"v_and_b32 v{t+6}, 7, v{t+4}")
    A(f"v_lshl_add_u32 v{t+5}, v{t+6}, 2, v{t+5}")
    A(f"v_bfe_u32 v{t+6}, v{t+4}, 3, 2")
    A(f"v_add_u32 v{t+5}, v{t+5}, v{t+6}")
    A(f"v_lshlrev_b32 v{t+5}, 2, v{t+5}")
    A(f"v_add_u32 v{wXPK}, {LDS_X}, v{t+5}")
    A(f"v_lshl_add_u32 v{t+4}, v{G}, 5, v{N}")
    A(f"v_lshlrev_b32 v{t+4}, 4, v{t+4}")
    A(f"s_lshl_b32 s{sA0}, s3, 2")
    A(f"s_add_u32 s{sA0}, s{sA0}, {LDS_RED}")
    A(f"v_add_u32 v{wRW}, s{sA0}, v{t+4}")
    A(f"v_lshl_add_u32 v{t+4}, v{U}, 3, v{E8}")
    A(f"v_lshlrev_b32 v{t+4}, 4, v{t+4}")
    A(f"v_add_u32 v{wHR}, {LDS_RED}, v{t+4}")
    if DEBUG_TS:
        TS(0, 1)
        TS(0, 2)
    A("s_waitcnt vmcnt(0)")
    TS(0, 3)
    for i in range(4):
        A(f"v_lshlrev_b32 v{t+8+i}, 16, v{t+8+i}")
    A(f"v_add_u32 v{wPI8}, {LDS_X}, v{wPI8}")
    exec_set((1 << 56) - 1)
    A(f"ds_write_b64 v{wPI8}, {vr(t+8,2)}")
    A(f"ds_write_b64 v{wPI8}, {vr(t+10,2)} offset:1792")
    exec_all()
    A(f"v_subrev_u32 v{wPI8}, {LDS_X}, v{wPI8}")
    A("s_waitcnt lgkmcnt(0)")
    A("s_barrier")
    A(f"s_mov_b32 s{sKK}, 0")
    XP = t + 12
    AG, AU = t+16, t+20
    LAB("L_SVQ0")
    A(f"s_mul_i32 s{sBX}, s{sKK}, 1792")
    if DEBUG_TS:
        A(f"s_lshl_b32 s95, s{sKK}, 5")
        A("s_add_u32 s95, s95, 16")
        TS(0, "s95")
    layernorm(XP, XP+1)
    gemv16(XP, lambda tt, h: ar(8*tt+4*h, 4), AG, AU, (wB, t+24))
    red_write(AG, AU)
    q_publish("L_SVQ0DONE")
    DG(0)
    if DEBUG_TS:
        A(f"s_lshl_b32 s95, s{sKK}, 5")
        A("s_add_u32 s95, s95, 20")
        TS(0, "s95")
    A("s_waitcnt lgkmcnt(0)")
    A("s_barrier")
    A(f"s_add_u32 s{sKK}, s{sKK}, 1")
    A(f"s_cmp_lt_u32 s{sKK}, 2")
    A("s_cbranch_scc1 L_SVQ0")
    for i in (range(46, 56) if QREG else range(NRING)):
        wq_dma(i)
    wo_loads(56)
    A(f"s_mul_i32 s{sA1}, s3, {112*3584}")
    A(f"s_mul_i32 s{sA0}, s{sS}, 224")
    A(f"s_add_u32 s{sA1}, s{sA1}, s{sA0}")
    for tt in range(28):
        A(f"s_add_u32 s{sA0}, s{sA1}, {tt*4*3584}")
        A(f"buffer_load_dwordx4 {gu_tile(tt,0)}, v{wOFFG}, {sr(sWG,4)}, s{sA0} offen nt")
        A(f"buffer_load_dwordx4 {gu_tile(tt,1)}, v{wOFFG}, {sr(sWU,4)}, s{sA0} offen nt")
    A(f"s_mul_i32 s{sA1}, s{sS}, {112*896}")
    A(f"s_lshl_b32 s{sA0}, s3, 8")
    A(f"s_add_u32 s{sA1}, s{sA1}, s{sA0}")
    A(f"s_lshl_b32 s{sA2}, s3, 11")
    A("s_cmp_eq_u32 s3, 3")
    A("s_cbranch_scc1 L_SVD3")
    for rg in range(14):
        A(f"s_add_u32 m0, s{sA2}, {(rg*7+1)*1024}")
        A(f"s_add_u32 s{sA0}, s{sA1}, {rg*8*896+128}")
        A(f"buffer_load_dwordx4 v{wOFF8}, {sr(sWD,4)}, s{sA0} offen nt lds")
    LAB("L_SVD3")
    for rg in range(14):
        A(f"s_add_u32 m0, s{sA2}, {(rg*7)*1024}")
        A(f"s_add_u32 s{sA0}, s{sA1}, {rg*8*896}")
        A(f"buffer_load_dwordx4 v{wOFF8}, {sr(sWD,4)}, s{sA0} offen nt lds")
    A(f"v_and_b32 v{t+1}, 15, v0")
    A(f"v_lshlrev_b32 v{t+1}, 2, v{t+1}")
    LAB("L_SVFL")
    A(f"buffer_load_dword v{t}, v{t+1}, {sr(sDBG,4)}, 0 offen offset:128 sc1")
    A("s_waitcnt vmcnt(0)")
    A(f"v_cmp_eq_u32 vcc, 0, v{t}")
    A("s_cbranch_vccz L_SVLOOP")
    spin_guard("L_SVFL")

    LAB("L_SVLOOP")
    A(f"s_and_b32 s{sBX}, s{sKK}, 1")
    A(f"s_mul_i32 s{sBX}, s{sBX}, 1792")
    A(f"s_sub_u32 s{sA1}, s{sKK}, 2")
    A(f"s_mul_i32 s{sA1}, s{sA1}, {15*PSLOT}")
    A(f"s_add_u32 s{sA1}, s{sA1}, s{sMYREG}")
    A(f"s_add_u32 s{sA1}, s{sA1}, {P_OFF}")
    if MLPOLL:
        LAB("L_WG0")
        A(f"buffer_load_dwordx2 {vr(t+16,2)}, v{wML}, {sr(sWS,4)}, s{sA1} offen sc1")
        A("s_waitcnt vmcnt(0)")
        A(f"v_cmp_ne_u32 vcc, -1, v{t+16}")
        A(f"s_and_b32 s{sA0}, vcc_lo, 0x7fff")
        A(f"s_bcnt1_i32_b32 s{sA0}, s{sA0}")
        A(f"s_cmp_ge_u32 s{sA0}, {MLTHR}")
        A("s_cbranch_scc1 L_WG")
        spin_guard("L_WG0")
    LAB("L_WG")
    A(f"buffer_load_dwordx2 {vr(t+16,2)}, v{wML}, {sr(sWS,4)}, s{sA1} offen sc1")
    for c in range(15):
        A(f"s_add_u32 s{sA0}, s{sA1}, {c*PSLOT}")
        A(f"buffer_load_dword v{t+c}, v{wGOFF}, {sr(sWS,4)}, s{sA0} offen sc1")
    A("s_waitcnt vmcnt(0)")
    check_sentinel(list(range(t, t+15)) + [t+16, t+17], t+18, "L_WG", "L_WGOK")
    if DIAG:
        A(f"s_lshl_b32 s95, s{sKK}, 2")
        DG("s95")
    if DEBUG_TS:
        A(f"s_lshl_b32 s95, s{sKK}, 5")
        TS(0, "s95")
    A(f"v_mov_b32 v{t+18}, v{t+16}")
    A(f"v_and_b32 v{t+19}, 15, v0")
    A(f"v_cmp_gt_u32 vcc, 15, v{t+19}")
    row_reduce("v_max_f32", t+18)
    A(f"v_sub_f32 v{t+16}, v{t+16}, v{t+18}")
    A(f"v_exp_f32 v{t+16}, v{t+16}")
    A(f"v_cndmask_b32 v{t+17}, 0, v{t+17}, vcc")
    A(f"v_mov_b32 v{t+18}, 0")
    A(f"v_mov_b32 v{t+19}, 0")
    A(f"v_mov_b32 v{t+20}, 0")
    A(f"v_mul_f32 v{t+17}, v{t+16}, v{t+17}")
    NOP(1)
    ctl4 = ("quad_perm:[1,0,3,2]", "quad_perm:[2,3,0,1]", "row_half_mirror", "row_mirror")
    for c in range(15):
        A(f"v_fmac_f32_dpp v{t+18+c%3}, v{t+16}, v{t+c} row_newbcast:{c} {DPPM}")
        if c % 3 == 1 and c // 3 < 4:
            A(f"v_add_f32_dpp v{t+17}, v{t+17}, v{t+17} {ctl4[c//3]} {DPPM}")
        if c == 12:
            A(f"v_rcp_f32 v{t+17}, v{t+17}")
    A(f"v_add_f32 v{t+18}, v{t+18}, v{t+19}")
    A(f"v_add_f32 v{t+18}, v{t+18}, v{t+20}")
    A(f"v_mul_f32 v{t+18}, v{t+18}, v{t+17}")
    A(f"v_cvt_pk_bf16_f32 v{t+30}, v{t+18}, v{t+18}")
    NOP(2)
    def wbuild(rg):
        bt = t + 28
        bb = (wB, t+32)[rg % 2]
        r = bcast8(bt, t+29, t+30, rg)
        r += [f"v_and_b32 v{bb+j}, v{bt}, v{wM8+j}" for j in range(4)]
        return r
    for x in wbuild(0):
        A(x)
    NOP(2)
    for rg in range(8):
        bb = (wB, t+32)[rg % 2]
        nxt = wbuild(rg + 1) if rg < 7 else []
        for cg in range(7):
            c = "0" if rg == 0 else vr(t+4*cg, 4)
            A(f"v_mfma_f32_16x16x32_bf16 {vr(t+4*cg,4)}, {wo_tile(rg,cg)}, {vr(bb,4)}, {c}")
            if cg < 4:
                for x in nxt[2*cg:2*cg+2]:
                    A(x)
    NOP(8)
    exec_set(0xff00ff0000ff00ff)
    for cg in range(7):
        A(f"ds_write_b128 v{wR2W}, {vr(t+4*cg,4)} offset:{cg*256}")
    exec_all()
    A("s_waitcnt lgkmcnt(0)")
    A("s_barrier")
    exec_set((1 << 56) - 1)
    A(f"v_add_u32 v{t+16}, {LDS_RED2}, v{wPI8}")
    for p in range(8):
        A(f"ds_read_b64 {vr(t+2*p,2)}, v{t+16} offset:{p*1792}")
    A(f"s_sub_u32 s{sA1}, s{sKK}, 2")
    A(f"s_mul_i32 s{sA1}, s{sA1}, 1792")
    A(f"s_add_u32 s{sA1}, s{sA1}, s{sMYREG}")
    A("s_waitcnt lgkmcnt(0)")
    for p in range(1, 8):
        A(f"v_add_f32 v{t}, v{t}, v{t+2*p}")
        A(f"v_add_f32 v{t+1}, v{t+1}, v{t+2*p+1}")
    A(f"v_min_u32 v{t}, -2, v{t}")
    A(f"v_min_u32 v{t+1}, -2, v{t+1}")
    A(f"buffer_store_dwordx2 {vr(t,2)}, v{wPI8}, {sr(sWS,4)}, s{sA1} offen offset:{Y_OFF} sc1")
    exec_all()
    if QREG: wq_regs(0, WQSPLIT, "a")
    if DEBUG_TS:
        A(f"s_lshl_b32 s95, s{sKK}, 5")
        A("s_add_u32 s95, s95, 4")
        TS(0, "s95")
    A(f"s_add_u32 s{sBX}, s{sBX}, {LDS_X}")
    gather_vec(Y_OFF, "Y")
    A(f"ds_write_b64 v{t+34}, {vr(t,2)}")
    exec_all()
    if QREG: wq_regs(WQSPLIT, 46, "b")
    A(f"s_sub_u32 s{sBX}, s{sBX}, {LDS_X}")
    A("s_waitcnt lgkmcnt(0)")
    A("s_barrier")
    if DEBUG_TS:
        A(f"s_lshl_b32 s95, s{sKK}, 5")
        A("s_add_u32 s95, s95, 8")
        TS(0, "s95")
    XP = t + 12
    PR(0)
    layernorm(XP, XP+1)
    PR(1)
    AG, AU = t+16, t+20
    gemv16(XP, gu_tile, AG, AU, (wB, t+24))
    PR(2)
    red_write(AG, AU)
    PR(3)
    for k in range(2):
        for m in range(2):
            A(f"ds_read_b128 {vr(t+4*(2*k+m),4)}, v{wHR} offset:{m*2048 + k*1024}")
    DT = t + 20
    A(f"s_lshl_b32 s{sA0}, s3, 11")
    A(f"v_add_u32 v{t+16}, s{sA0}, v{wL16}")
    A(f"v_add_u32 v{t+17}, {56*1024}, v{t+16}")
    def dread(i):
        rg, ci = i // 2, i % 2
        if rg < 8:
            A(f"ds_read_b128 {vr(DT+4*(i%4),4)}, v{t+16} offset:{(rg*7+ci)*1024}")
        else:
            A(f"ds_read_b128 {vr(DT+4*(i%4),4)}, v{t+17} offset:{((rg-8)*7+ci)*1024}")
    for i in range(4):
        dread(i)
    A("s_waitcnt lgkmcnt(4)")
    for q in range(4):
        b = t + 4*q
        A(f"v_add_f32 v{b}, v{b}, v{b+1}")
        A(f"v_add_f32 v{b+2}, v{b+2}, v{b+3}")
    for q in range(4):
        b = t + 4*q
        A(f"v_add_f32 v{b}, v{b}, v{b+2}")
    for q in range(4):
        bf16_round(t+4*q, t+4*q)
    for k in range(2):
        A(f"v_mul_f32 v{t+8*k}, {f32(-LOG2E)}, v{t+8*k}")
    for k in range(2):
        A(f"v_exp_f32 v{t+8*k}, v{t+8*k}")
    NOP(1)
    for k in range(2):
        A(f"v_add_f32 v{t+8*k}, 1.0, v{t+8*k}")
    for k in range(2):
        A(f"v_rcp_f32 v{t+8*k}, v{t+8*k}")
    NOP(1)
    for k in range(2):
        bf16_round(t+8*k, t+8*k)
    for k in range(2):
        A(f"v_mul_f32 v{t+8*k}, v{t+8*k}, v{t+8*k+4}")
    HP = (t+1, t+2)
    for k in range(2):
        A(f"v_cvt_pk_bf16_f32 v{HP[k]}, v{t+8*k}, v{t+8*k}")
    NOP(2)
    AD = (t+4, t+8)
    def dbuild(rg):
        bt = t + 3
        bb = (wB, t+12)[rg % 2]
        for x in bcast8(bt, t, HP[rg // 8], rg % 8):
            A(x)
        for j in range(4):
            A(f"v_and_b32 v{bb+j}, v{bt}, v{wM8+j}")
    PR(4)
    dbuild(0)
    NOP(1)
    for rg in range(14):
        bb = (wB, t+12)[rg % 2]
        for ci in range(2):
            i = rg*2 + ci
            rem = min(27 - i, 3)
            A(f"s_waitcnt lgkmcnt({rem})")
            c = "0" if rg == 0 else vr(AD[ci], 4)
            A(f"v_mfma_f32_16x16x32_bf16 {vr(AD[ci],4)}, {vr(DT+4*(i%4),4)}, {vr(bb,4)}, {c}")
            if i + 4 < 28:
                dread(i + 4)
            if ci == 0 and rg < 13:
                dbuild(rg + 1)
    PR(5)
    NOP(8)
    for k in range(8):
        A(f"v_mov_b32_dpp v{t+12+k}, v{t+4+k} row_ror:8 {DPPM}")
    NOP(1)
    for k in range(8):
        A(f"v_permlane32_swap_b32 v{t+12+k}, v{t+20+k}")
    NOP(1)
    for k in range(8):
        A(f"v_add_f32 v{t+4+k}, v{t+4+k}, v{t+20+k}")
    for k in range(8):
        A(f"v_min_u32 v{t+4+k}, -2, v{t+4+k}")
    A(f"s_sub_u32 s{sA1}, s{sKK}, 2")
    A(f"s_mul_i32 s{sA1}, s{sA1}, 1792")
    A(f"s_add_u32 s{sA1}, s{sA1}, s{sMYREG}")
    A(f"s_add_u32 s{sA1}, s{sA1}, {Z_OFF}")
    A("s_cmp_eq_u32 s3, 3")
    A(f"s_cselect_b32 s{sA2}, 0x80000000, s{sA1}")
    exec_set(0x00ff00ff)
    A(f"buffer_store_dwordx4 {vr(t+4,4)}, v{wZOFF}, {sr(sWS,4)}, s{sA1} offen sc1")
    A(f"buffer_store_dwordx4 {vr(t+8,4)}, v{wZOFF}, {sr(sWS,4)}, s{sA2} offen offset:256 sc1")
    exec_all()
    PR(6)
    PRDUMP(7)
    if DEBUG_TS:
        A(f"s_lshl_b32 s95, s{sKK}, 5")
        A("s_add_u32 s95, s95, 12")
        TS(0, "s95")
    A(f"s_cmp_lt_u32 s{sKK}, 4")
    A("s_cbranch_scc1 L_SVZ")
    A(f"s_cmp_lg_u32 s{sS}, 0")
    A("s_cbranch_scc1 L_SVNEXT")
    LAB("L_SVZ")
    NOP(2)
    A(f"s_add_u32 s{sBX}, s{sBX}, {LDS_X}")
    gather_vec(Z_OFF, "Z")
    A(f"s_sub_u32 s{sBX}, s{sBX}, {LDS_X}")
    A(f"s_cmp_lt_u32 s{sKK}, 4")
    A("s_cbranch_scc1 L_SVZ2")
    A(f"s_lshr_b32 s{sA0}, s{sBX}, 1")
    A(f"buffer_store_short_d16_hi v{t}, v{wC0}, {sr(sOUT,4)}, s{sA0} offen")
    A(f"buffer_store_short_d16_hi v{t+1}, v{wC0}, {sr(sOUT,4)}, s{sA0} offen offset:16")
    exec_all()
    if DIAG:
        A(f"s_lshl_b32 s95, s{sKK}, 2")
        A("s_add_u32 s95, s95, 16")
        DG("s95")
    if DEBUG_TS:
        A(f"s_lshl_b32 s95, s{sKK}, 5")
        A("s_add_u32 s95, s95, 16")
        TS(0, "s95", lite=True)
    A("s_branch L_SVNEXT")
    LAB("L_SVZ2")
    A(f"ds_write_b64 v{t+34}, {vr(t,2)}")
    exec_all()
    A("s_waitcnt lgkmcnt(0)")
    LAB("L_SVQ")
    A("s_barrier")
    if DEBUG_TS:
        A(f"s_lshl_b32 s95, s{sKK}, 5")
        A("s_add_u32 s95, s95, 16")
        TS(0, "s95")
    layernorm(XP, XP+1)
    A(f"v_add_u32 v{t+14}, s{sRINGB}, v{wL16}")
    QT = (t, t+4, t+28, t+32)
    def qrd(tts):
        def f():
            for n, tt in enumerate(tts):
                for h in range(2):
                    A(f"ds_read_b128 {vr(QT[2*n+h],4)}, v{t+14} offset:{(2*tt+h-46)*1024}")
        return f
    def qtile(tt, h):
        if tt < 23:
            return ar(8*tt+4*h, 4)
        return vr(QT[2*((tt-23) % 2)+h], 4)
    wl = lambda: A("s_waitcnt lgkmcnt(0)")
    order = list(range(0, 8)) + [23, 24] + list(range(8, 16)) + [25, 26] + list(range(16, 23)) + [27]
    if QREG:
        gemv16(XP, qtile, AG, AU, (wB, t+24), order,
               {0: qrd([23, 24]), 8: wl, 11: qrd([25, 26]), 18: wl, 21: qrd([27]), 27: wl})
    else:
        wq_base()
        QT = t + 28
        for tt in range(28):
            bb = (wB, t+24)[tt % 2]
            for h in range(2):
                i = tt*2 + h
                if h == 0:
                    A(f"s_waitcnt vmcnt({max(min(55 - i - 1, NRING - 2), 0)})")
                A(f"ds_read_b128 {vr(QT+4*h,4)}, v{t+14} offset:{(i % NRING)*1024}")
            for j in range(4):
                A(f"v_and_b32_dpp v{bb+j}, v{XP+tt//16}, v{wM16+j} row_newbcast:{tt%16} {DPPM}")
            A("s_waitcnt lgkmcnt(0)")
            for h in range(2):
                i = tt*2 + h
                if i + NRING < 56:
                    wq_dma(i + NRING)
            NOP(1)
            for h, acc in ((0, AG), (1, AU)):
                c = "0" if tt == 0 else vr(acc, 4)
                A(f"v_mfma_f32_16x16x32_bf16 {vr(acc,4)}, {vr(QT+4*h,4)}, {vr(bb,4)}, {c}")
            NOP(4)
        for i in range(NRING):
            wq_dma(i)
    red_write(AG, AU)
    q_publish("L_SVQDONE")
    if QREG: wo_loads(46)
    if DIAG:
        A(f"s_lshl_b32 s95, s{sKK}, 2")
        A("s_add_u32 s95, s95, 16")
        DG("s95")
    if DEBUG_TS:
        A(f"s_lshl_b32 s95, s{sKK}, 5")
        A("s_add_u32 s95, s95, 20")
        TS(0, "s95")
    LAB("L_SVNEXT")
    A(f"s_add_u32 s{sKK}, s{sKK}, 1")
    A(f"s_cmp_lt_u32 s{sKK}, 6")
    A("s_cbranch_scc1 L_SVLOOP")

def main():
    global DEBUG_TS
    out = f"cdna_kernels/{NAME}.s"
    for a in sys.argv[1:]:
        if a == "--ts":
            DEBUG_TS = True
        elif a.startswith("--mall="):
            globals()["MALLMASK"] = int(a[7:])
        elif a.startswith("--statq="):
            globals()["STATQ"] = int(a[8:])
        elif a.startswith("--codepf="):
            globals()["CODEPF"] = int(a[9:])
        elif a == "--probe":
            globals()["PROBE"] = True
        elif a == "--wqnt":
            globals()["WQPOL"] = "nt"
        elif a.startswith("--nocomp="):
            globals()["NOCOMP"] = int(a[9:])
        elif a == "--mlpoll":
            globals()["MLPOLL"] = True
        elif a == "--tslite":
            DEBUG_TS = True
            globals()["TSLITE"] = True
        elif a.startswith("--xhalf="):
            globals()["XHALF"] = int(a[8:])
        elif a in ("--fix", "--diag", "--qreg"):
            pass
        elif a.startswith("--relq="):
            globals()["RELQ"] = int(a[7:])
        elif a.startswith("--cut="):
            globals()["DEPTHCUT"] = int(a[6:])
        elif a.startswith("--wqs="):
            globals()["WQSPLIT"] = int(a[6:])
        elif a == "--statdef":
            globals()["STATPOL"] = ""
        else:
            out = a
    header()
    stream()
    service()
    footer()
    open(out, "w").write("\n".join(x for x in L if x is not None) + "\n")
    print("wrote", out, len(L), "lines")

main()
```

```python
import struct, sys

NAME = "interleave_layers__mha_block_cached__glu_gated_glu__decode"
DEBUG_TS = False
SPIN_MAX = 400000
STATPOL = "nt"
CODEPF = 3
PROBE = False
WQPOL = ""
NOCOMP = 0
MLPOLL = True
TSLITE = False
XHALF = 0
FIX = "--fix" in sys.argv
DIAG = "--diag" in sys.argv
RELQ = 44
MLTHR = 6
DEPTHCUT = 0
WQSPLIT = 20
QREG = "--qreg" in sys.argv
LA = 3
SLOWX = 200
SLOWW = 4
STATQ = 16
MALLMASK = None

def f32(x):
    return "0x%08x" % struct.unpack("<I", struct.pack("<f", x))[0]

LOG2E = 1.4426950408889634
REGION = 98304
Q_OFF, Y_OFF, Z_OFF, P_OFF = 256, 2304, 9472, 16640
PSLOT = 1152
CLEAR_PER_WAVE = 21
NDYN = 784
NSTAT = 240
TS_OFF = 0x200000

L = []
def A(s):
    L.append("    " + s)
def LAB(s):
    L.append(s + ":")
def NOP(n):
    if n > 0:
        A(f"s_nop {n-1}")
def vr(a, n):
    return f"v[{a}:{a+n-1}]"
def ar(a, n):
    return f"a[{a}:{a+n-1}]"
def sr(a, n):
    return f"s[{a}:{a+n-1}]"
DPPM = "row_mask:0xf bank_mask:0xf"

def srd(dst, ptr, nbytes):
    A(f"s_mov_b32 s{dst}, s{ptr}")
    A(f"s_and_b32 s{dst+1}, s{ptr+1}, 0xffff")
    A(f"s_mov_b32 s{dst+2}, {nbytes}")
    A(f"s_mov_b32 s{dst+3}, 0x20000")

def exec_set(val):
    lo, hi = val & 0xffffffff, val >> 32
    A(f"s_mov_b32 exec_lo, 0x{lo:x}")
    A(f"s_mov_b32 exec_hi, 0x{hi:x}")
def exec_all():
    A("s_mov_b64 exec, -1")

def xrow_reduce(op, x, t):
    A(f"v_mov_b32 v{t}, v{x}")
    NOP(2)
    A(f"v_permlane16_swap_b32 v{x}, v{t}")
    NOP(1)
    A(f"{op} v{x}, v{x}, v{t}")
    A(f"v_mov_b32 v{t}, v{x}")
    NOP(2)
    A(f"v_permlane32_swap_b32 v{x}, v{t}")
    NOP(1)
    A(f"{op} v{x}, v{x}, v{t}")

def row_reduce(op, x):
    for ctl in ("quad_perm:[1,0,3,2]", "quad_perm:[2,3,0,1]", "row_half_mirror", "row_mirror"):
        NOP(2)
        A(f"{op}_dpp v{x}, v{x}, v{x} {ctl} {DPPM}")

def wave_reduce(op, x, t):
    row_reduce(op, x)
    xrow_reduce(op, x, t)

def bf16_round(dst, src):
    A(f"v_cvt_pk_bf16_f32 v{dst}, v{src}, v{src}")
    A(f"v_and_b32 v{dst}, 0xffff0000, v{dst}")

def DG(word):
    if not DIAG:
        return
    n = len(L)
    A("s_or_b32 s98, s2, s3")
    A("s_cmp_lg_u32 s98, 0")
    A(f"s_cbranch_scc1 L_DG{n}")
    A("s_memrealtime s[98:99]")
    A("s_waitcnt lgkmcnt(0)")
    A("s_sub_u32 s98, s98, s94")
    A("v_mov_b32 v62, s98")
    if isinstance(word, int):
        A(f"s_mov_b32 s98, {word*4}")
    else:
        A(f"s_mov_b32 s98, {word}")
    A("s_mov_b64 s[100:101], exec")
    A("s_mov_b64 exec, 1")
    A("buffer_store_dword v62, off, s[52:55], s98")
    A("s_mov_b64 exec, s[100:101]")
    LAB(f"L_DG{n}")

def PR(i):
    if DEBUG_TS and PROBE:
        A(f"s_memtime s[{16+2*i}:{17+2*i}]")
def PRDUMP(n):
    if DEBUG_TS and PROBE:
        A("s_waitcnt lgkmcnt(0)")
        A("s_mov_b64 exec, 1")
        A("v_mov_b32 v63, 0")
        for i in range(n):
            A(f"v_mov_b32 v62, s{16+2*i}")
            A(f"buffer_store_dword v62, v63, s[48:51], s97 offen offset:{224+4*i}")
        exec_all()

TSREG = [62]
def TS(idx_sgpr_or_const, slot, lite=False):
    if not DEBUG_TS or (TSLITE and not lite):
        return
    A("s_memrealtime s[98:99]")
    A("s_waitcnt lgkmcnt(0)")
    A(f"v_mov_b32 v{TSREG[0]}, s98")
    A(f"s_add_u32 s98, s97, {slot*4}" if isinstance(slot, int) else f"s_add_u32 s98, s97, {slot}")
    A("s_mov_b64 s[100:101], exec")
    A("s_mov_b64 exec, 1")
    A(f"buffer_store_dword v{TSREG[0]}, off, s[48:51], s98")
    A("s_mov_b64 exec, s[100:101]")

def header():
    L.append("; Kernarg: 0 A_x, 8 A_k_cache, 16 A_v_cache, 24 A_wq, 32 A_wo, 40 B_x, 48 B_w_gate, 56 B_w_up,")
    L.append("; @launch grid=(256,1,1) block=(256,1,1) lds=163840")
    L.append('.amdgcn_target "amdgcn-amd-amdhsa--gfx950"')
    L.append(".text")
    L.append(f".globl {NAME}_kernel")
    L.append(".p2align 8")
    L.append(f".type {NAME}_kernel,@function")
    LAB(f"{NAME}_kernel")
    A("s_cmp_ge_u32 s2, 256")
    A("s_cbranch_scc1 L_END")
    A("s_load_dwordx16 s[16:31], s[0:1], 0")
    A("s_load_dwordx8 s[32:39], s[0:1], 64")
    if CODEPF:
        A("s_getpc_b64 s[4:5]")
        A("v_lshlrev_b32 v2, 6, v0")
        for i in range(CODEPF):
            A(f"global_load_dword v63, v2, s[4:5]")
            A(f"v_add_u32 v2, 0x4000, v2")
    A("v_lshrrev_b32 v1, 6, v0")
    A("v_and_b32 v0, 63, v0")
    A("v_readfirstlane_b32 s3, v1")
    A(f"s_mov_b32 s96, {SPIN_MAX}")
    A("s_waitcnt lgkmcnt(0)")
    srd(48, 38, 0x40000000 if DEBUG_TS else 16 * REGION)
    srd(52, 36, 256)
    if DEBUG_TS:
        A("s_lshl_b32 s97, s2, 2")
        A("s_add_u32 s97, s97, s3")
        A("s_lshl_b32 s97, s97, 8")
        A(f"s_add_u32 s97, s97, {TS_OFF}")
    A("s_cmp_lt_u32 s2, 16")
    A("s_cbranch_scc1 L_SERVICE")

def footer():
    LAB("L_END")
    A("s_endpgm")
    L.append(f".fill (({NAME}_kernel + {CODEPF*16384+256} - .) / 4), 4, 0xbf800000")
    L.append('.section .rodata,"a"')
    L.append(".p2align 6")
    L.append(f".amdhsa_kernel {NAME}_kernel")
    L.append("  .amdhsa_next_free_vgpr 512")
    L.append("  .amdhsa_next_free_sgpr 102")
    L.append("  .amdhsa_accum_offset 256")
    L.append("  .amdhsa_group_segment_fixed_size 0")
    L.append("  .amdhsa_kernarg_size 96")
    L.append("  .amdhsa_user_sgpr_count 2")
    L.append("  .amdhsa_user_sgpr_kernarg_segment_ptr 1")
    L.append("  .amdhsa_system_sgpr_workgroup_id_x 1")
    L.append("  .amdhsa_float_denorm_mode_32 3")
    L.append(".end_amdhsa_kernel")

def spin_guard(label_retry):
    A("s_sleep 2")
    A("s_sub_u32 s96, s96, 1")
    A("s_cmp_eq_u32 s96, 0")
    A("s_cbranch_scc1 L_END")
    A(f"s_branch {label_retry}")

def masks16(m, t):
    A(f"v_and_b32 v{t}, 15, v0")
    A(f"v_and_b32 v{t+1}, 1, v0")
    A(f"v_lshlrev_b32 v{t+1}, 4, v{t+1}")
    A(f"v_mov_b32 v{m}, 0xffff")
    A(f"v_lshlrev_b32 v{t+1}, v{t+1}, v{m}")
    A(f"v_lshrrev_b32 v{t}, 1, v{t}")
    for j in range(4):
        A(f"v_cmp_eq_u32 vcc, {j}, v{t}")
        NOP(2)
        A(f"v_cndmask_b32 v{m+j}, 0, v{t+1}, vcc")

def masks8(m, t):
    A(f"v_and_b32 v{t}, 7, v0")
    A(f"v_and_b32 v{t+1}, 1, v0")
    A(f"v_lshlrev_b32 v{t+1}, 4, v{t+1}")
    A(f"v_mov_b32 v{m}, 0xffff")
    A(f"v_lshlrev_b32 v{t+1}, v{t+1}, v{m}")
    A(f"v_lshrrev_b32 v{t}, 1, v{t}")
    for j in range(4):
        A(f"v_cmp_eq_u32 vcc, {j}, v{t}")
        NOP(2)
        A(f"v_cndmask_b32 v{m+j}, 0, v{t+1}, vcc")

vKOFF, vVOFF, vTICK = 1, 2, 3
vMSK = 4
vM, vL = 8, 9
vQN = 10
vS0, vS1, vSa, vSb = 12, 13, 14, 15
vX, vY, vF, vT = vSa, vSb, vSb, vSb
vP0, vP1 = vS0, vS1
vB0, vB1 = 16, 20
vACC = 24
vQ = 32
VX = 48
RING = 64
KST = 128
sK, sV, sWS, sDBG = 40, 44, 48, 52
sHEAD, sC, sWV, sHOFF = 4, 5, 6, 7
sLDPH, sLIM, sTB, sNOFF, sCUR, sPROC, sQTAG, sT0 = 8, 9, 10, 11, 12, 13, 14, 15
sCC, sREG, sT1, sT2, sT3, sPEND, sLDSK = 72, 73, 74, 75, 76, 77, 78
LDS_KW = 9 * 4096
LDS_SCR = 4 * LDS_KW
LDS_PART = LDS_SCR
LDS_CNT = LDS_SCR + 8448
LDS_QB = LDS_SCR + 8704
FIRST = 510
NDYN = 1024 - FIRST
sRET, sRET2, sRELOAD = 79, 80, 81
sPROC_S = str(sPROC)

def loadK(dst, soff, pol="nt"):
    for j in range(4):
        A(f"buffer_load_dwordx4 {vr(dst+4*j,4)}, v{vKOFF}, {sr(sK,4)}, s{soff} offen offset:{128*j} {pol}")
def loadV(dst, soff, agpr=False, pol="nt"):
    for j in range(4):
        d = ar(dst+4*j, 4) if agpr else vr(dst+4*j, 4)
        A(f"buffer_load_dwordx4 {d}, v{vVOFF}, {sr(sV,4)}, s{soff} offen offset:{256*j} {pol}")

def kdots(R, S):
    for i in range(8):
        for (acc, k) in ((vSa, i), (vSb, 8 + i)):
            c = "0" if i == 0 else f"v{acc}"
            A(f"v_dot2_f32_bf16 v{acc}, v{R+k}, v{vQ+k}, {c}")
    NOP(3)
    A(f"v_add_f32 v{S}, v{vSa}, v{vSb}")

def kdots_lds(ldsoff, S):
    tmp = (vB0, vB1)
    A(f"ds_read_b128 {vr(tmp[0],4)}, v{vS1} offset:{ldsoff}")
    A(f"ds_read_b128 {vr(tmp[1],4)}, v{vS1} offset:{ldsoff+1024}")
    for j in range(4):
        A(f"s_waitcnt lgkmcnt({1 if j < 3 else 0})")
        acc = vSa if j % 2 == 0 else vSb
        for i in range(4):
            c = "0" if (j < 2 and i == 0) else f"v{acc}"
            A(f"v_dot2_f32_bf16 v{acc}, v{tmp[j%2]+i}, v{vQ+4*j+i}, {c}")
        if j < 2:
            A(f"ds_read_b128 {vr(tmp[j%2],4)}, v{vS1} offset:{ldsoff+1024*(j+2)}")
    NOP(3)
    A(f"v_add_f32 v{S}, v{vSa}, v{vSb}")

def softmax_update():
    for ctl in ("quad_perm:[1,0,3,2]", "quad_perm:[2,3,0,1]", "row_half_mirror"):
        NOP(1)
        A(f"v_add_f32_dpp v{vS0}, v{vS0}, v{vS0} {ctl} {DPPM}")
        A(f"v_add_f32_dpp v{vS1}, v{vS1}, v{vS1} {ctl} {DPPM}")
        NOP(1)
    A(f"v_cvt_pk_bf16_f32 v{vT}, v{vS0}, v{vS1}")
    A(f"v_lshlrev_b32 v{vS0}, 16, v{vT}")
    A(f"v_and_b32 v{vS1}, 0xffff0000, v{vT}")
    A(f"v_max_f32 v{vX}, v{vS0}, v{vS1}")
    NOP(2)
    A(f"v_max_f32_dpp v{vX}, v{vX}, v{vX} row_ror:8 {DPPM}")
    xrow_reduce("v_max_f32", vX, vY)
    A(f"v_mul_f32 v{vX}, s{sCC}, v{vX}")
    A(f"v_ceil_f32 v{vX}, v{vX}")
    A(f"v_max_f32 v{vX}, v{vX}, v{vM}")
    A(f"v_sub_f32 v{vF}, v{vM}, v{vX}")
    A(f"v_fma_f32 v{vS0}, v{vS0}, s{sCC}, -v{vX}")
    A(f"v_fma_f32 v{vS1}, v{vS1}, s{sCC}, -v{vX}")
    A(f"v_exp_f32 v{vF}, v{vF}")
    A(f"v_exp_f32 v{vS0}, v{vS0}")
    A(f"v_exp_f32 v{vS1}, v{vS1}")
    A(f"v_mov_b32 v{vM}, v{vX}")
    A(f"v_fma_f32 v{vL}, v{vL}, v{vF}, v{vS0}")
    A(f"v_cvt_pk_bf16_f32 v{vP0}, v{vS0}, v{vS0}")
    A(f"v_add_f32 v{vL}, v{vL}, v{vS1}")
    A(f"v_cvt_pk_bf16_f32 v{vP1}, v{vS1}, v{vS1}")
    for k in range(8):
        A(f"v_mul_f32 v{vACC+k}, v{vACC+k}, v{vF}")

def vmfma(R, P, agpr=False):
    rr = (lambda k: ar(R+4*k, 4)) if agpr else (lambda k: vr(R+4*k, 4))
    for j in range(4):
        A(f"v_and_b32 v{vB0+j}, v{P}, v{vMSK+j}")
    for j in range(4):
        A(f"v_and_b32_dpp v{vB1+j}, v{P}, v{vMSK+j} row_ror:8 {DPPM}")
    a0, a1 = vr(vACC, 4), vr(vACC+4, 4)
    A(f"v_mfma_f32_16x16x32_bf16 {a0}, {rr(0)}, {vr(vB0,4)}, {a0}")
    A(f"v_mfma_f32_16x16x32_bf16 {a1}, {rr(1)}, {vr(vB0,4)}, {a1}")
    A(f"v_mfma_f32_16x16x32_bf16 {a0}, {rr(2)}, {vr(vB1,4)}, {a0}")
    A(f"v_mfma_f32_16x16x32_bf16 {a1}, {rr(3)}, {vr(vB1,4)}, {a1}")

def ticket_atomic(dst):
    A("s_mov_b64 exec, 1")
    A(f"buffer_atomic_add v{dst}, off, {sr(sWS,4)}, s{sREG} sc0 sc1")
    exec_all()

def q_load(ph):
    A(f"s_lshl_b32 s{sT1}, s{ph}, 9")
    A(f"s_add_u32 s{sT1}, s{sT1}, s{sREG}")
    A(f"v_lshlrev_b32 v{vSa}, 3, v0")
    A(f"buffer_load_dwordx2 {vr(vQN,2)}, v{vSa}, {sr(sWS,4)}, s{sT1} offen offset:{Q_OFF} sc1")

dec_n = [0]
def decode(src, nxt):
    n = dec_n[0]; dec_n[0] += 1
    A(f"v_readfirstlane_b32 s{sT0}, v{src}")
    A(f"v_mov_b32 v{src}, 1")
    A(f"s_add_u32 s{sT0}, s{sT0}, 1")
    LAB(f"L_DEC{n}")
    A(f"s_cmp_lt_u32 s{sT0}, s{sLIM}")
    A(f"s_cbranch_scc1 L_DOK{n}")
    A(f"s_add_u32 s{sLDPH}, s{sLDPH}, 1")
    A(f"s_add_u32 s{sLIM}, s{sLIM}, {NDYN}")
    A(f"s_bitcmp1_b32 s{sLDPH}, 0")
    A(f"s_cselect_b32 s{sT1}, 0x10000000, 0")
    A(f"s_add_u32 s{sTB}, s{sTB}, s{sT1}")
    A(f"s_sub_u32 s{sTB}, s{sTB}, {0x08000000 + NDYN*8192}")
    A(f"s_cmp_lt_u32 s{sLDPH}, 4")
    A(f"s_cbranch_scc0 L_DFIN{n}")
    q_load(sLDPH)
    A(f"s_mov_b32 s{sQTAG}, s{sLDPH}")
    A(f"s_branch L_DEC{n}")
    LAB(f"L_DFIN{n}")
    A(f"s_mov_b32 s{sLIM}, -1")
    LAB(f"L_DOK{n}")
    A(f"s_lshl_b32 s{sNOFF}, s{sT0}, 13")
    A(f"s_add_u32 s{sNOFF}, s{sNOFF}, s{sTB}")
    A(f"s_cmp_ge_u32 s{sLDPH}, 4")
    A(f"s_cselect_b32 s{sNOFF}, 0x80000000, s{sNOFF}")
    A(f"s_add_u32 s{sT3}, s{sNOFF}, 4096")
    if SLOWX:
        A(f"s_sub_u32 s{sT1}, s{sT0}, {2*NDYN}")
        A(f"s_cmp_lt_u32 s{sT1}, {SLOWX}")
        A(f"s_cselect_b32 s{sRET2}, 1, 0")
    if nxt is not None:
        ticket_atomic(nxt)

def stat_loadK(u, q=None):
    A(f"s_add_u32 s{sT1}, s{sT2}, {u*60*4096}")
    if (q or STATQ) < 64:
        A(f"s_waitcnt vmcnt({(q or STATQ)-4})")
    if u < 8:
        loadK(KST + 16*u, sT1)
    else:
        for j in range(4):
            A(f"s_add_u32 m0, s{sLDSK}, {(u-8)*4096 + 896*j}")
            NOP(1)
            A(f"buffer_load_dwordx4 v{vKOFF}, {sr(sK,4)}, s{sT1} offen offset:{128*j} nt lds")
def stat_loadV(u, q=None):
    A(f"s_add_u32 s{sT1}, s{sT2}, {u*60*4096}")
    if (q or STATQ) < 64:
        A(f"s_waitcnt vmcnt({(q or STATQ)-4})")
    if u < 16:
        loadV(16*u, sT1, agpr=True)
    else:
        loadV(VX, sT1)
def stat_load_block(blk, q=None):
    us = [u for u in (2*blk, 2*blk+1) if u < 17]
    for u in us: stat_loadK(u, q)
    for u in us: stat_loadV(u, q)

def statics():
    size = lambda j: 16 if j < 8 else (8 if j == 8 else 0)
    for blk in range(9):
        A(f"s_cmp_lg_u32 s{sRELOAD}, 2")
        A(f"s_cbranch_scc1 L_NOWT{blk}")
        A(f"s_waitcnt vmcnt({sum(size(j) for j in range(blk+1, blk+LA))})")
        LAB(f"L_NOWT{blk}")
        if blk >= 4:
            A(f"v_lshl_add_u32 v{vS1}, v0, 4, s{sLDSK}")
        for i, S in ((0, vS0), (1, vS1)):
            u = blk*2 + i
            if u < 8:
                kdots(KST + 16*u, S)
            elif u < 17:
                kdots_lds((u-8)*4096, S)
            else:
                A(f"v_mov_b32 v{vS1}, {f32(-1e30)}")
        softmax_update()
        if blk < 8:
            vmfma(blk*32, vP0, agpr=True)
            vmfma(blk*32+16, vP1, agpr=True)
        else:
            vmfma(VX, vP0)
        if blk < LA:
            A(f"s_cmp_lg_u32 s{sRELOAD}, 1")
            A(f"s_cbranch_scc1 L_NORA{blk}")
            stat_load_block(blk, 64)
            LAB(f"L_NORA{blk}")
        if blk + LA <= 8:
            A(f"s_cmp_lg_u32 s{sRELOAD}, 2")
            A(f"s_cbranch_scc1 L_NORB{blk}")
            stat_load_block(blk + LA, 64)
            LAB(f"L_NORB{blk}")
        NOP(3)

def scr_addr(b):
    if isinstance(b, int):
        A(f"s_mov_b32 s{sT0}, {LDS_PART + 4224*b}")
    else:
        A(f"s_and_b32 s{sT0}, s{b}, 1")
        A(f"s_mul_i32 s{sT0}, s{sT0}, 4224")
        A(f"s_add_u32 s{sT0}, s{sT0}, {LDS_PART}")
    A(f"s_mul_i32 s{sT1}, s3, 1056")
    A(f"s_add_u32 s{sT1}, s{sT1}, s{sT0}")
    A(f"v_lshrrev_b32 v{vS0}, 4, v0")
    A(f"v_and_b32 v{vS1}, 15, v0")
    A(f"v_lshl_add_u32 v{vS0}, v{vS0}, 3, v{vS1}")
    A(f"v_lshl_add_u32 v{vX}, v{vS0}, 4, s{sT1}")

def spill(b):
    scr_addr(b)
    NOP(2)
    A(f"v_add_f32_dpp v{vL}, v{vL}, v{vL} row_ror:8 {DPPM}")
    xrow_reduce("v_add_f32", vL, vY)
    exec_set(0x00ff00ff00ff00ff)
    A(f"ds_write_b128 v{vX}, {vr(vACC,4)}")
    A(f"ds_write_b128 v{vX}, {vr(vACC+4,4)} offset:512")
    A("s_mov_b64 exec, 1")
    A(f"ds_write_b64 v{vX}, {vr(vM,2)} offset:1024")
    exec_all()

def q_read(b):
    A(f"s_lshl_b32 s{sT1}, s3, 10")
    if isinstance(b, int):
        A(f"s_add_u32 s{sT1}, s{sT1}, {LDS_QB + 512*b}")
    else:
        A(f"s_and_b32 s{sT0}, s{b}, 1")
        A(f"s_lshl_b32 s{sT0}, s{sT0}, 9")
        A(f"s_add_u32 s{sT1}, s{sT1}, s{sT0}")
        A(f"s_add_u32 s{sT1}, s{sT1}, {LDS_QB}")
        A(f"v_lshl_add_u32 v{vS0}, v0, 3, s{sT1}")
        A(f"ds_write_b64 v{vS0}, {vr(vQN,2)}")
    A(f"v_and_b32 v{vS1}, 7, v0")
    A(f"v_lshl_add_u32 v{vS1}, v{vS1}, 4, s{sT1}")
    A("s_waitcnt lgkmcnt(0)")
    for j in range(4):
        A(f"ds_read_b128 {vr(vQ+4*j,4)}, v{vS1} offset:{128*j}")

def restore(b):
    q_read(b)
    scr_addr(b)
    A(f"v_mov_b32 v{vY}, s{sT1}")
    for k in range(8):
        A(f"v_mov_b32 v{vACC+k}, 0")
    A(f"ds_read_b64 {vr(vM,2)}, v{vY} offset:1024")
    exec_set(0x00ff00ff00ff00ff)
    A(f"ds_read_b128 {vr(vACC,4)}, v{vX}")
    A(f"ds_read_b128 {vr(vACC+4,4)}, v{vX} offset:512")
    exec_all()
    A("s_waitcnt lgkmcnt(0)")
    A(f"v_mul_f32 v{vL}, 0.125, v{vL}" if False else f"v_mul_f32 v{vL}, {f32(0.125)}, v{vL}")

fin_n = [0]
def finalize(ph):
    n = fin_n[0]; fin_n[0] += 1
    spill(ph & 1 if isinstance(ph, int) else ph)
    if isinstance(ph, int):
        A(f"s_mov_b32 s{sT1}, {LDS_CNT + 4*ph}")
    else:
        A(f"s_lshl_b32 s{sT1}, s{ph}, 2")
        A(f"s_add_u32 s{sT1}, s{sT1}, {LDS_CNT}")
    A("s_mov_b64 exec, 1")
    A(f"v_mov_b32 v{vX}, s{sT1}")
    A(f"v_mov_b32 v{vY}, 1")
    A("s_waitcnt lgkmcnt(0)")
    A(f"ds_add_rtn_u32 v{vY}, v{vX}, v{vY}")
    A("s_waitcnt lgkmcnt(0)")
    A(f"v_readfirstlane_b32 s{sT1}, v{vY}")
    exec_all()
    NOP(2)
    A(f"s_cmp_lg_u32 s{sT1}, 3")
    A(f"s_cbranch_scc1 L_NOPUB{n}")
    A(f"v_mov_b32 v{vX}, s{sT0}")
    A(f"v_lshl_add_u32 v{vY}, v0, 4, s{sT0}")
    for w in range(4):
        A(f"ds_read_b64 {vr(vB0+2*w,2)}, v{vX} offset:{1056*w+1024}")
    for w in range(4):
        A(f"ds_read_b128 {vr(vQ+4*w,4)}, v{vY} offset:{1056*w}")
    if isinstance(ph, int):
        A(f"s_add_u32 s{sT0}, s{sC}, {15*ph}")
    else:
        A(f"s_mul_i32 s{sT0}, s{ph}, 15")
        A(f"s_add_u32 s{sT0}, s{sT0}, s{sC}")
    A(f"s_mul_i32 s{sT0}, s{sT0}, {PSLOT}")
    A(f"s_add_u32 s{sT0}, s{sT0}, s{sREG}")
    A(f"s_add_u32 s{sT0}, s{sT0}, {P_OFF}")
    A(f"v_lshlrev_b32 v{vS0}, 4, v0")
    A("s_waitcnt lgkmcnt(4)")
    A(f"v_max3_f32 v{vM}, v{vB0}, v{vB0+2}, v{vB0+4}")
    A(f"v_max_f32 v{vM}, v{vM}, v{vB0+6}")
    for w in range(4):
        A(f"v_sub_f32 v{vB0+2*w}, v{vB0+2*w}, v{vM}")
    for w in range(4):
        A(f"v_exp_f32 v{vB0+2*w}, v{vB0+2*w}")
    NOP(1)
    A(f"v_mul_f32 v{vL}, v{vB0}, v{vB0+1}")
    for w in range(1, 4):
        A(f"v_fmac_f32 v{vL}, v{vB0+2*w}, v{vB0+2*w+1}")
    A("s_waitcnt lgkmcnt(0)")
    for r in range(4):
        A(f"v_mul_f32 v{vACC+r}, v{vB0}, v{vQ+r}")
    for w in range(1, 4):
        for r in range(4):
            A(f"v_fmac_f32 v{vACC+r}, v{vB0+2*w}, v{vQ+4*w+r}")
    for r in range(4):
        A(f"v_min_u32 v{vACC+r}, -2, v{vACC+r}")
    A(f"v_min_u32 v{vM}, -2, v{vM}")
    A(f"v_min_u32 v{vL}, -2, v{vL}")
    A(f"buffer_store_dwordx4 {vr(vACC,4)}, v{vS0}, {sr(sWS,4)}, s{sT0} offen sc1")
    A("s_mov_b64 exec, 1")
    A(f"buffer_store_dwordx2 {vr(vM,2)}, off, {sr(sWS,4)}, s{sT0} offset:1024 sc1")
    exec_all()
    NOP(2)
    LAB(f"L_NOPUB{n}")
    if DEBUG_TS:
        if isinstance(ph, int):
            TS(0, 3 + 2*ph)
        else:
            A(f"s_lshl_b32 s95, s{ph}, 3")
            A("s_add_u32 s95, s95, 12")
            TS(0, "s95")

def stream():
    TSREG[0] = vB1 + 2
    TS(0, 0)
    A(f"s_sub_u32 s{sT0}, s2, 16")
    A(f"s_mul_hi_u32 s{sHEAD}, s{sT0}, 0x11111112")
    A(f"s_mul_i32 s{sT1}, s{sHEAD}, 15")
    A(f"s_sub_u32 s{sC}, s{sT0}, s{sT1}")
    A(f"s_lshl_b32 s{sWV}, s{sC}, 2")
    A(f"s_add_u32 s{sWV}, s{sWV}, s3")
    A(f"s_lshl_b32 s{sHOFF}, s{sHEAD}, 23")
    srd(sK, 18, 0x10000000)
    srd(sV, 20, 0x10000000)
    A(f"v_lshrrev_b32 v{vX}, 3, v0")
    A(f"v_and_b32 v{vY}, 7, v0")
    A(f"v_lshlrev_b32 v{vX}, 9, v{vX}")
    A(f"v_lshl_add_u32 v{vKOFF}, v{vY}, 4, v{vX}")
    A(f"v_lshrrev_b32 v{vX}, 4, v0")
    A(f"v_and_b32 v{vY}, 15, v0")
    A(f"v_lshlrev_b32 v{vX}, 10, v{vX}")
    A(f"v_lshl_add_u32 v{vVOFF}, v{vY}, 4, v{vX}")
    A(f"s_lshl_b32 s{sT2}, s{sWV}, 12")
    A(f"s_add_u32 s{sT2}, s{sT2}, s{sHOFF}")
    A(f"s_mul_i32 s{sLDSK}, s3, {LDS_KW}")
    for blk in range(4):
        stat_load_block(blk)
    TS(0, 20)
    A(f"s_mov_b32 s{sCC}, {f32(LOG2E/16)}")
    A(f"s_mul_i32 s{sREG}, s{sHEAD}, {REGION}")
    A(f"v_mov_b32 v{vTICK}, 1")
    A(f"v_mov_b32 v{vS0}, 1")
    masks16(vMSK, vX)
    A(f"v_lshlrev_b32 v{vX}, 2, v0")
    A(f"v_and_b32 v{vX}, 12, v{vX}")
    A(f"v_add_u32 v{vX}, {LDS_CNT}, v{vX}")
    A(f"v_mov_b32 v{vY}, 0")
    A(f"ds_write_b32 v{vX}, v{vY}")
    A("s_waitcnt lgkmcnt(0)")
    A("s_barrier")
    A(f"s_lshl_b32 s{sT0}, s{sHEAD}, 2")
    A(f"buffer_load_dword v{vS1}, off, {sr(sDBG,4)}, s{sT0} offset:128 sc1")
    for blk in range(4, 8):
        stat_load_block(blk)
    LAB("L_FLAGCHK")
    A(f"v_readfirstlane_b32 s{sT1}, v{vS1}")
    NOP(2)
    A(f"s_cmp_lg_u32 s{sT1}, 0")
    A("s_cbranch_scc1 L_FLAGOK")
    A("s_sleep 2")
    A("s_sub_u32 s96, s96, 1")
    A("s_cmp_eq_u32 s96, 0")
    A("s_cbranch_scc1 L_END")
    A(f"buffer_load_dword v{vS1}, off, {sr(sDBG,4)}, s{sT0} offset:128 sc1")
    A("s_waitcnt vmcnt(0)")
    A("s_branch L_FLAGCHK")
    LAB("L_FLAGOK")
    TS(0, 1)
    ticket_atomic(vS0)
    ticket_atomic(vTICK)
    A(f"s_mov_b32 s{sLDPH}, 0")
    q_load(sLDPH)
    stat_load_block(8)
    A(f"s_add_u32 s{sT2}, s{sT2}, 0x08000000")
    A(f"s_mov_b32 s{sQTAG}, 0")
    A(f"s_mov_b32 s{sLIM}, {NDYN}")
    A(f"s_add_u32 s{sTB}, s{sHOFF}, {FIRST*8192}")
    A(f"s_mov_b32 s{sPROC}, 0")
    A(f"s_mov_b32 s{sRELOAD}, 0")
    A("s_waitcnt vmcnt(8)")
    decode(vS0, None)
    loadK(RING, sNOFF); loadK(RING+16, sT3); loadV(RING+32, sNOFF); loadV(RING+48, sT3)
    A(f"s_mov_b32 s{sCUR}, s{sLDPH}")
    A("s_waitcnt vmcnt(12)")
    decode(vTICK, vTICK)
    A("s_branch L_SETUP")

    L.append(".p2align 6")
    LAB("L_LOOP")
    A(f"s_waitcnt vmcnt({12-DEPTHCUT})")
    decode(vTICK, vTICK)
    A(f"s_cmp_lg_u32 s{sCUR}, s{sPROC}")
    A("s_cbranch_scc1 L_SWITCH")
    def slow(n):
        if SLOWX:
            A(f"s_cmp_eq_u32 s{sRET2}, 0")
            A(f"s_cbranch_scc1 L_SL{n}")
            A(f"s_waitcnt vmcnt({SLOWW})")
            LAB(f"L_SL{n}")
    def body(wait):
        kdots(RING, vS0)
        slow(0)
        loadK(RING, sNOFF)
        if wait: A(f"s_waitcnt vmcnt({13-DEPTHCUT})")
        kdots(RING+16, vS1)
        slow(1)
        loadK(RING+16, sT3)
        softmax_update()
        if wait: A(f"s_waitcnt vmcnt({13-DEPTHCUT})")
        vmfma(RING+32, vP0)
        slow(2)
        loadV(RING+32, sNOFF)
        if wait: A(f"s_waitcnt vmcnt({13-DEPTHCUT})")
        vmfma(RING+48, vP1)
        slow(3)
        loadV(RING+48, sT3)
        A(f"s_mov_b32 s{sCUR}, s{sLDPH}")
    LAB("L_BODY")
    body(True)
    A(f"s_cmp_eq_u32 s{sPEND}, 0")
    A("s_cbranch_scc1 L_LOOP")
    A(f"s_mov_b32 s{sRET}, 0")
    LAB("L_DOSTAT")
    if DEBUG_TS:
        A(f"s_lshl_b32 s95, s{sPROC}, 2")
        A("s_add_u32 s95, s95, 120")
        TS(0, "s95")
    NOP(4)
    statics()
    if DEBUG_TS:
        A(f"s_lshl_b32 s95, s{sPROC}, 2")
        A("s_add_u32 s95, s95, 136")
        TS(0, "s95")
    A(f"s_mov_b32 s{sPEND}, 0")
    A(f"s_cmp_eq_u32 s{sRET}, 0")
    A("s_cbranch_scc1 L_LOOP")
    A(f"s_cmp_eq_u32 s{sRET}, 2")
    A("s_cbranch_scc1 L_AFTER2")
    A(f"s_cmp_eq_u32 s{sRET}, 3")
    A("s_cbranch_scc1 L_AFTER3")

    LAB("L_SWITCH")
    A(f"s_cmp_eq_u32 s{sPEND}, 0")
    A("s_cbranch_scc1 L_SW1")
    A(f"s_mov_b32 s{sRET}, 1")
    A("s_waitcnt vmcnt(0)")
    A("s_branch L_DOSTAT")
    LAB("L_SW1")
    if DEBUG_TS:
        A(f"s_lshl_b32 s95, s{sPROC}, 2")
        A("s_add_u32 s95, s95, 104")
        TS(0, "s95")
    A(f"s_cmp_lg_u32 s{sPROC}, 1")
    A("s_cbranch_scc1 L_SW2")
    spill(1)
    TS(0, 24)
    A("s_branch L_SW3")
    LAB("L_SW2")
    finalize(sPROC_S)
    LAB("L_SW3")
    A(f"s_add_u32 s{sPROC}, s{sPROC}, 1")
    A(f"s_cmp_ge_u32 s{sPROC}, 4")
    A("s_cbranch_scc1 L_END")
    LAB("L_SETUP")
    if DEBUG_TS:
        A(f"s_lshl_b32 s95, s{sPROC}, 2")
        A("s_add_u32 s95, s95, 64")
        TS(0, "s95")
    A(f"s_cmp_eq_u32 s{sQTAG}, s{sPROC}")
    A("s_cbranch_scc1 L_QCHK")
    LAB("L_QSLOW")
    A(f"s_mov_b32 s{sQTAG}, -1")
    q_load(sPROC)
    A("s_waitcnt vmcnt(0)")
    LAB("L_QCHK")
    A(f"v_max_u32 v{vX}, v{vQN}, v{vQN+1}")
    A(f"v_cmp_eq_u32 vcc, -1, v{vX}")
    A("s_cbranch_vccz L_QOK")
    spin_guard("L_QSLOW")
    LAB("L_QOK")
    q_read(sPROC_S)
    for k in range(8):
        A(f"v_mov_b32 v{vACC+k}, 0")
    A(f"v_mov_b32 v{vL}, 0")
    A(f"v_mov_b32 v{vM}, {f32(-1e30)}")
    A("s_waitcnt lgkmcnt(0)")
    if DEBUG_TS:
        A(f"s_lshl_b32 s95, s{sPROC}, 3")
        A("s_add_u32 s95, s95, 8")
        TS(0, "s95")
    A(f"s_cmp_lg_u32 s{sPROC}, 1")
    A(f"s_cselect_b32 s{sPEND}, 1, 0")
    A(f"s_cmp_lg_u32 s{sPROC}, 2")
    A("s_cbranch_scc1 L_SW4")
    A(f"s_mov_b32 s{sRELOAD}, 1")
    A(f"s_mov_b32 s{sRET}, 2")
    A("s_branch L_DOSTAT")
    LAB("L_AFTER2")
    TS(0, 25)
    spill(0)
    restore(1)
    A(f"s_mov_b32 s{sRELOAD}, 2")
    A(f"s_mov_b32 s{sRET}, 3")
    A("s_branch L_DOSTAT")
    LAB("L_AFTER3")
    A(f"s_mov_b32 s{sRELOAD}, 0")
    finalize(1)
    restore(0)
    LAB("L_SW4")
    A(f"s_cmp_lg_u32 s{sCUR}, s{sPROC}")
    A("s_cbranch_scc1 L_SWITCH")
    A("s_branch L_BODY")
    TSREG[0] = 62

sS = 2
sX, sWQ, sWO, sWG, sWU, sWD, sOUT = 40, 44, 56, 60, 64, 68, 80
sKK, sBX, sMYREG = 4, 5, 6
sA0, sA1, sA2, sA3 = 7, 8, 9, 10
sRINGB = 11
wM8, wM16 = 4, 8
wOFF8, wOFFG, wOFFQ, wPI8 = 1, 2, 3, 12
wGOFF, wML, wR2W, wXPK = 13, 14, 15, 16
wRW, wHR, wL16, wZOFF = 17, 18, 19, 20
wL4, wZERO, wC0, wQR = 21, 22, 23, 0
wB = 24
wT = 28
RES_V = 64
LDS_DOWN = 0
LDS_RING = 100352
NRING = 10
LDS_X = LDS_RING + 4*NRING*1024
LDS_RED2 = LDS_X + 3584
LDS_RED = LDS_RED2 + 14336

def wo_tile(rg, cg):
    return ar((rg*7+cg)*4, 4)
def gu_tile(t, m):
    i = t*2 + m
    if i < 8:
        return ar(224 + i*4, 4)
    return vr(RES_V + (i-8)*4, 4)

def check_sentinel(regs, t, label_retry, label_ok):
    regs = list(regs)
    A(f"v_max_u32 v{t}, v{regs[0]}, v{regs[1]}")
    rest = regs[2:]
    while len(rest) >= 2:
        A(f"v_max3_u32 v{t}, v{t}, v{rest[0]}, v{rest[1]}")
        rest = rest[2:]
    if rest:
        A(f"v_max_u32 v{t}, v{t}, v{rest[0]}")
    A(f"v_cmp_eq_u32 vcc, -1, v{t}")
    A(f"s_cbranch_vccz {label_ok}")
    spin_guard(label_retry)
    LAB(label_ok)

def wq_dma(i):
    t, h = i // 2, i % 2
    A(f"s_add_u32 m0, s{sRINGB}, {((i - 46) if QREG else (i % NRING))*1024}")
    A(f"s_add_u32 s{sA0}, s{sA3}, {t*4*8192 + h*256}")
    A(f"buffer_load_dwordx4 v{wOFFQ}, {sr(sWQ,4)}, s{sA0} offen lds")

def wq_regs(lo, hi, tag):
    A(f"s_cmp_ge_u32 s{sKK}, 4")
    A(f"s_cbranch_scc1 L_NOWQ{tag}")
    wq_base()
    for i in range(lo, hi):
        A(f"s_add_u32 s{sA0}, s{sA3}, {(i//2)*4*8192 + (i%2)*256}")
        A(f"buffer_load_dwordx4 {ar(4*i,4)}, v{wOFFQ}, {sr(sWQ,4)}, s{sA0} offen")
    LAB(f"L_NOWQ{tag}")

def wo_loads(n):
    A(f"s_lshl_b32 s{sA1}, s{sS}, 8")
    A(f"s_lshl_b32 s{sA0}, s3, 6")
    A(f"s_add_u32 s{sA1}, s{sA1}, s{sA0}")
    A(f"s_mul_i32 s{sA1}, s{sA1}, 896")
    for j in range(n):
        rg, cg = j // 7, j % 7
        if cg == 0:
            A(f"s_add_u32 s{sA0}, s{sA1}, {rg*8*896}")
        A(f"buffer_load_dwordx4 {wo_tile(rg,cg)}, v{wOFF8}, {sr(sWO,4)}, s{sA0} offen offset:{cg*128} {'' if QREG else 'nt'}")

def wq_base():
    A(f"s_mul_i32 s{sA3}, s3, {112*8192}")
    A(f"s_lshl_b32 s{sA0}, s{sS}, 9")
    A(f"s_add_u32 s{sA3}, s{sA3}, s{sA0}")

def dual_wave_sum(x, y, t0, t1):
    for ctl in ("quad_perm:[1,0,3,2]", "quad_perm:[2,3,0,1]", "row_half_mirror", "row_mirror"):
        NOP(1)
        A(f"v_add_f32_dpp v{x}, v{x}, v{x} {ctl} {DPPM}")
        A(f"v_add_f32_dpp v{y}, v{y}, v{y} {ctl} {DPPM}")
    for sw in ("v_permlane16_swap_b32", "v_permlane32_swap_b32"):
        A(f"v_mov_b32 v{t0}, v{x}")
        A(f"v_mov_b32 v{t1}, v{y}")
        NOP(1)
        A(f"{sw} v{x}, v{t0}")
        A(f"{sw} v{y}, v{t1}")
        A(f"v_add_f32 v{x}, v{x}, v{t0}")
        A(f"v_add_f32 v{y}, v{y}, v{t1}")

def layernorm(xp0, xp1):
    t = wT
    A(f"v_add_u32 v{t+10}, s{sBX}, v{wL4}")
    A(f"v_add_u32 v{t+11}, s{sBX}, v{wXPK}")
    A(f"s_add_u32 s{sA0}, s{sBX}, {LDS_X}")
    A(f"v_mov_b32 v{t+9}, s{sA0}")
    A(f"ds_read_b32 v{t+9}, v{t+9}")
    for k in range(3):
        A(f"ds_read2st64_b32 {vr(t+2*k,2)}, v{t+10} offset0:{2*k} offset1:{2*k+1}")
    A(f"ds_read_b32 v{t+6}, v{t+10} offset:1536")
    A(f"ds_read_b32 v{xp0}, v{t+11}")
    A(f"ds_read_b32 v{xp1}, v{t+11} offset:256")
    A("s_waitcnt lgkmcnt(2)")
    for k in range(7):
        A(f"v_sub_f32 v{t+k}, v{t+k}, v{t+9}")
    A(f"v_add_f32 v{t+8}, v{t}, v{t+1}")
    A(f"v_mul_f32 v{t+7}, v{t}, v{t}")
    for k in range(1, 7):
        A(f"v_fmac_f32 v{t+7}, v{t+k}, v{t+k}")
        if k >= 2:
            A(f"v_add_f32 v{t+8}, v{t+8}, v{t+k}")
    NOP(1)
    dual_wave_sum(t+8, t+7, t+10, t+11)
    A(f"v_mul_f32 v{t+8}, {f32(1/448)}, v{t+8}")
    A(f"v_mul_f32 v{t+7}, {f32(1/448)}, v{t+7}")
    A(f"v_fma_f32 v{t+7}, -v{t+8}, v{t+8}, v{t+7}")
    A(f"v_add_f32 v{t+8}, v{t+8}, v{t+9}")
    A(f"v_max_f32 v{t+7}, 0, v{t+7}")
    bf16_round(t+8, t+8)
    bf16_round(t+7, t+7)
    A("s_waitcnt lgkmcnt(0)")
    A(f"v_add_f32 v{t+7}, {f32(1e-5)}, v{t+7}")
    for x in (xp0, xp1):
        A(f"v_sub_f32 v{x}, v{x}, v{t+8}")
    bf16_round(t+7, t+7)
    A(f"v_sqrt_f32 v{t+7}, v{t+7}")
    for x in (xp0, xp1):
        bf16_round(x, x)
    bf16_round(t+7, t+7)
    A(f"v_rcp_f32 v{t+7}, v{t+7}")
    NOP(1)
    for x in (xp0, xp1):
        A(f"v_mul_f32 v{x}, v{x}, v{t+7}")
    for x in (xp0, xp1):
        A(f"v_cvt_pk_bf16_f32 v{x}, v{x}, v{x}")
    NOP(1)

def gemv16(XP, tile, acc0, acc1, bbs, order=None, hooks=None):
    order = order or list(range(28))
    hooks = hooks or {}
    def build(n):
        tt = order[n]
        for j in range(4):
            A(f"v_and_b32_dpp v{bbs[n%2]+j}, v{XP+tt//16}, v{wM16+j} row_newbcast:{tt%16} {DPPM}")
    build(0)
    NOP(1)
    for n in range(28):
        tt = order[n]
        bb = vr(bbs[n % 2], 4)
        if n in hooks:
            hooks[n]()
        NOP(1)
        A(f"v_mfma_f32_16x16x32_bf16 {vr(acc0,4)}, {tile(tt,0)}, {bb}, {'0' if n == 0 else vr(acc0,4)}")
        if n < 27:
            build(n + 1)
        A(f"v_mfma_f32_16x16x32_bf16 {vr(acc1,4)}, {tile(tt,1)}, {bb}, {'0' if n == 0 else vr(acc1,4)}")

def red_write(acc0, acc1):
    NOP(8)
    exec_set(0x00ff00ff00ff00ff)
    for m, acc in ((0, acc0), (1, acc1)):
        for r in range(4):
            A(f"ds_write_b32 v{wRW}, v{acc+r} offset:{m*2048 + r*128}")
    exec_all()
    A("s_waitcnt lgkmcnt(0)")
    A("s_barrier")

def gather_vec(off, tag):
    t = wT
    exec_set((1 << 56) - 1)
    A(f"s_sub_u32 s{sA1}, s{sKK}, 2")
    A(f"s_mul_i32 s{sA1}, s{sA1}, 1792")
    A(f"s_add_u32 s{sA1}, s{sA1}, {off}")
    A(f"v_add_u32 v{t+34}, s{sBX}, v{wPI8}")
    A(f"ds_read_b64 {vr(t+32,2)}, v{t+34} offset:{0}")
    LAB(f"L_G{tag}")
    for s in range(16):
        A(f"s_add_u32 s{sA0}, s{sA1}, {s*REGION}")
        A(f"buffer_load_dwordx2 {vr(t+2*s,2)}, v{wPI8}, {sr(sWS,4)}, s{sA0} offen offset:0 sc1")
    A("s_waitcnt vmcnt(0)")
    check_sentinel(range(t, t+32), t+35, f"L_G{tag}", f"L_G{tag}OK")
    for s in range(1, 16):
        A(f"v_add_f32 v{t}, v{t}, v{t+2*s}")
        A(f"v_add_f32 v{t+1}, v{t+1}, v{t+2*s+1}")
    bf16_round(t, t)
    bf16_round(t+1, t+1)
    A("s_waitcnt lgkmcnt(0)")
    A(f"v_add_f32 v{t}, v{t}, v{t+32}")
    A(f"v_add_f32 v{t+1}, v{t+1}, v{t+33}")
    bf16_round(t, t)
    bf16_round(t+1, t+1)

sHI = 12
def bcast8(dst, tmp, src, u):
    return [f"v_mov_b32_dpp v{dst}, v{src} row_newbcast:{u} {DPPM}",
            f"v_mov_b32_dpp v{tmp}, v{src} row_newbcast:{8+u} {DPPM}",
            f"v_cndmask_b32 v{dst}, v{dst}, v{tmp}, s[{sHI}:{sHI+1}]"]

def q_publish(done):
    t = wT
    A("s_cmp_ge_u32 s3, 2")
    A(f"s_cbranch_scc1 {done}")
    A(f"s_lshl_b32 s{sA0}, s3, 11")
    A(f"s_add_u32 s{sA0}, s{sA0}, {LDS_RED}")
    A(f"v_lshl_add_u32 v{t+8}, v0, 5, s{sA0}")
    A(f"ds_read_b128 {vr(t,4)}, v{t+8}")
    A(f"ds_read_b128 {vr(t+4,4)}, v{t+8} offset:16")
    A(f"s_lshl_b32 s{sA1}, s{sKK}, 9")
    A(f"s_add_u32 s{sA1}, s{sA1}, s{sMYREG}")
    A(f"s_lshl_b32 s{sA0}, s3, 8")
    A(f"s_add_u32 s{sA1}, s{sA1}, s{sA0}")
    A(f"v_lshlrev_b32 v{t+9}, 2, v0")
    A("s_waitcnt lgkmcnt(0)")
    for q in range(2):
        b = t + 4*q
        A(f"v_add_f32 v{b}, v{b}, v{b+1}")
        A(f"v_add_f32 v{b+2}, v{b+2}, v{b+3}")
        A(f"v_add_f32 v{b}, v{b}, v{b+2}")
    A(f"v_cvt_pk_bf16_f32 v{t}, v{t}, v{t+4}")
    A(f"v_min_u32 v{t}, -2, v{t}")
    A(f"buffer_store_dword v{t}, v{t+9}, {sr(sWS,4)}, s{sA1} offen offset:{Q_OFF} sc1")
    LAB(done)

def service():
    LAB("L_SERVICE")
    if DIAG:
        A("s_memrealtime s[94:95]")
        A("s_waitcnt lgkmcnt(0)")
    TS(0, 0, lite=True)
    t = wT
    srd(sX, 16, 1792)
    srd(sWQ, 22, 448*4096*2)
    srd(sWO, 24, 448*4096*2)
    srd(sWG, 28, 448*1792*2)
    srd(sWU, 30, 448*1792*2)
    srd(sWD, 32, 448*1792*2)
    srd(sOUT, 34, 1792)
    A(f"s_mul_i32 s{sMYREG}, s{sS}, {REGION}")
    A(f"s_mov_b32 s{sHI}, 0xff00ff00")
    A(f"s_mov_b32 s{sHI+1}, 0xff00ff00")
    for i in range(4):
        A(f"v_mov_b32 v{t+12+i}, -1")
    A(f"v_lshlrev_b32 v{wL16}, 4, v0")
    A(f"s_mul_i32 s{sA1}, s3, {CLEAR_PER_WAVE*1024}")
    A(f"s_add_u32 s{sA1}, s{sA1}, s{sMYREG}")
    for i in range(CLEAR_PER_WAVE):
        A(f"s_add_u32 s{sA0}, s{sA1}, {i*1024}")
        A(f"buffer_store_dwordx4 {vr(t+12,4)}, v{wL16}, {sr(sWS,4)}, s{sA0} offen sc1")
    G, N, U, E8 = t, t+1, t+2, t+3
    A(f"v_lshrrev_b32 v{G}, 4, v0")
    A(f"v_and_b32 v{N}, 15, v0")
    A(f"v_and_b32 v{U}, 7, v0")
    A(f"v_lshrrev_b32 v{E8}, 3, v0")
    A(f"v_lshlrev_b32 v{t+4}, 4, v{N}")
    A(f"s_movk_i32 s{sA0}, 0x2000")
    A(f"v_mad_u32_u24 v{wOFFQ}, v{G}, s{sA0}, v{t+4}")
    A(f"s_movk_i32 s{sA0}, 3584")
    A(f"v_mad_u32_u24 v{wOFFG}, v{G}, s{sA0}, v{t+4}")
    A(f"v_lshlrev_b32 v{t+4}, 4, v{U}")
    A(f"s_movk_i32 s{sA0}, 896")
    A(f"v_mad_u32_u24 v{wOFF8}, v{E8}, s{sA0}, v{t+4}")
    A(f"s_mul_i32 s{sRINGB}, s3, {NRING*1024}")
    A(f"s_add_u32 s{sRINGB}, s{sRINGB}, {LDS_RING}")
    wq_base()
    for i in range(56):
        if i == 8:
            A("s_waitcnt vmcnt(0)")
            A("s_barrier")
            A(f"v_mov_b32 v{t+17}, 0")
            A("s_cmp_lg_u32 s3, 0")
            A("s_cbranch_scc1 L_SVNOFLAG")
            A(f"s_lshl_b32 s{sA0}, s{sS}, 2")
            A(f"v_mov_b32 v{t+16}, 1")
            A("s_mov_b64 exec, 1")
            A(f"buffer_store_dword v{t+16}, v{t+17}, {sr(sDBG,4)}, s{sA0} offen offset:128 sc1")
            exec_all()
            LAB("L_SVNOFLAG")
        A(f"s_add_u32 s{sA0}, s{sA3}, {(i//2)*4*8192 + (i%2)*256}")
        A(f"buffer_load_dwordx4 {ar(4*i,4)}, v{wOFFQ}, {sr(sWQ,4)}, s{sA0} offen {WQPOL}")
    A(f"s_mul_i32 s{sA0}, s3, 56")
    A(f"v_add_u32 v{t+4}, s{sA0}, v0")
    A(f"v_lshlrev_b32 v{wPI8}, 3, v{t+4}")
    A(f"v_lshlrev_b32 v{t+4}, 1, v{t+4}")
    A(f"v_and_b32 v{t+5}, 0xffffffe0, v{t+4}")
    A(f"v_and_b32 v{t+6}, 3, v{t+4}")
    A(f"v_lshl_add_u32 v{t+5}, v{t+6}, 3, v{t+5}")
    A(f"v_bfe_u32 v{t+6}, v{t+4}, 2, 3")
    A(f"v_add_u32 v{t+5}, v{t+5}, v{t+6}")
    A(f"v_lshlrev_b32 v{wC0}, 1, v{t+5}")
    exec_set((1 << 56) - 1)
    for b in range(2):
        for i in range(2):
            A(f"buffer_load_ushort v{t+8+2*b+i}, v{wC0}, {sr(sX,4)}, 0 offen offset:{b*896+16*i}")
    exec_all()
    masks8(wM8, t+16)
    masks16(wM16, t+16)
    A(f"v_mov_b32 v{wZERO}, 0")
    A(f"v_lshlrev_b32 v{wL4}, 2, v0")
    A(f"v_add_u32 v{wL4}, {LDS_X}, v{wL4}")
    A(f"v_lshrrev_b32 v{t+4}, 2, v{U}")
    A(f"v_lshlrev_b32 v{t+4}, 5, v{t+4}")
    A(f"v_lshl_add_u32 v{t+4}, v{E8}, 2, v{t+4}")
    A(f"v_and_b32 v{t+5}, 3, v0")
    A(f"v_add_u32 v{t+4}, v{t+4}, v{t+5}")
    A(f"s_lshl_b32 s{sA0}, s3, 6")
    A(f"v_add_u32 v{t+4}, s{sA0}, v{t+4}")
    A(f"v_lshlrev_b32 v{wGOFF}, 2, v{t+4}")
    A(f"v_min_u32 v{t+4}, 14, v{N}")
    A(f"v_mul_u32_u24 v{t+4}, {PSLOT}, v{t+4}")
    A(f"v_add_u32 v{wML}, 1024, v{t+4}")
    A(f"v_lshrrev_b32 v{t+4}, 1, v{G}")
    A(f"s_lshl_b32 s{sA0}, s3, 1")
    A(f"v_add_u32 v{t+4}, s{sA0}, v{t+4}")
    A(f"v_mul_u32_u24 v{t+4}, 1792, v{t+4}")
    A(f"v_and_b32 v{t+5}, 1, v{G}")
    A(f"v_lshlrev_b32 v{t+5}, 7, v{t+5}")
    A(f"v_lshl_add_u32 v{t+5}, v{U}, 4, v{t+5}")
    A(f"v_add_u32 v{t+4}, v{t+4}, v{t+5}")
    A(f"v_add_u32 v{wR2W}, {LDS_RED2}, v{t+4}")
    A(f"s_lshl_b32 s{sA0}, s3, 9")
    A(f"v_add_u32 v{wZOFF}, s{sA0}, v{t+5}")
    A(f"s_mul_i32 s{sA0}, s3, 112")
    A(f"v_lshl_add_u32 v{t+4}, v{N}, 2, v{G}")
    A(f"v_add_u32 v{t+4}, s{sA0}, v{t+4}")
    A(f"v_and_b32 v{t+5}, 0xffffffe0, v{t+4}")
    A(f"v_and_b32 v{t+6}, 7, v{t+4}")
    A(f"v_lshl_add_u32 v{t+5}, v{t+6}, 2, v{t+5}")
    A(f"v_bfe_u32 v{t+6}, v{t+4}, 3, 2")
    A(f"v_add_u32 v{t+5}, v{t+5}, v{t+6}")
    A(f"v_lshlrev_b32 v{t+5}, 2, v{t+5}")
    A(f"v_add_u32 v{wXPK}, {LDS_X}, v{t+5}")
    A(f"v_lshl_add_u32 v{t+4}, v{G}, 5, v{N}")
    A(f"v_lshlrev_b32 v{t+4}, 4, v{t+4}")
    A(f"s_lshl_b32 s{sA0}, s3, 2")
    A(f"s_add_u32 s{sA0}, s{sA0}, {LDS_RED}")
    A(f"v_add_u32 v{wRW}, s{sA0}, v{t+4}")
    A(f"v_lshl_add_u32 v{t+4}, v{U}, 3, v{E8}")
    A(f"v_lshlrev_b32 v{t+4}, 4, v{t+4}")
    A(f"v_add_u32 v{wHR}, {LDS_RED}, v{t+4}")
    if DEBUG_TS:
        TS(0, 1)
        TS(0, 2)
    A("s_waitcnt vmcnt(0)")
    TS(0, 3)
    for i in range(4):
        A(f"v_lshlrev_b32 v{t+8+i}, 16, v{t+8+i}")
    A(f"v_add_u32 v{wPI8}, {LDS_X}, v{wPI8}")
    exec_set((1 << 56) - 1)
    A(f"ds_write_b64 v{wPI8}, {vr(t+8,2)}")
    A(f"ds_write_b64 v{wPI8}, {vr(t+10,2)} offset:1792")
    exec_all()
    A(f"v_subrev_u32 v{wPI8}, {LDS_X}, v{wPI8}")
    A("s_waitcnt lgkmcnt(0)")
    A("s_barrier")
    A(f"s_mov_b32 s{sKK}, 0")
    XP = t + 12
    AG, AU = t+16, t+20
    LAB("L_SVQ0")
    A(f"s_mul_i32 s{sBX}, s{sKK}, 1792")
    if DEBUG_TS:
        A(f"s_lshl_b32 s95, s{sKK}, 5")
        A("s_add_u32 s95, s95, 16")
        TS(0, "s95")
    layernorm(XP, XP+1)
    gemv16(XP, lambda tt, h: ar(8*tt+4*h, 4), AG, AU, (wB, t+24))
    red_write(AG, AU)
    q_publish("L_SVQ0DONE")
    DG(0)
    if DEBUG_TS:
        A(f"s_lshl_b32 s95, s{sKK}, 5")
        A("s_add_u32 s95, s95, 20")
        TS(0, "s95")
    A("s_waitcnt lgkmcnt(0)")
    A("s_barrier")
    A(f"s_add_u32 s{sKK}, s{sKK}, 1")
    A(f"s_cmp_lt_u32 s{sKK}, 2")
    A("s_cbranch_scc1 L_SVQ0")
    for i in (range(46, 56) if QREG else range(NRING)):
        wq_dma(i)
    wo_loads(56)
    A(f"s_mul_i32 s{sA1}, s3, {112*3584}")
    A(f"s_mul_i32 s{sA0}, s{sS}, 224")
    A(f"s_add_u32 s{sA1}, s{sA1}, s{sA0}")
    for tt in range(28):
        A(f"s_add_u32 s{sA0}, s{sA1}, {tt*4*3584}")
        A(f"buffer_load_dwordx4 {gu_tile(tt,0)}, v{wOFFG}, {sr(sWG,4)}, s{sA0} offen nt")
        A(f"buffer_load_dwordx4 {gu_tile(tt,1)}, v{wOFFG}, {sr(sWU,4)}, s{sA0} offen nt")
    A(f"s_mul_i32 s{sA1}, s{sS}, {112*896}")
    A(f"s_lshl_b32 s{sA0}, s3, 8")
    A(f"s_add_u32 s{sA1}, s{sA1}, s{sA0}")
    A(f"s_lshl_b32 s{sA2}, s3, 11")
    A("s_cmp_eq_u32 s3, 3")
    A("s_cbranch_scc1 L_SVD3")
    for rg in range(14):
        A(f"s_add_u32 m0, s{sA2}, {(rg*7+1)*1024}")
        A(f"s_add_u32 s{sA0}, s{sA1}, {rg*8*896+128}")
        A(f"buffer_load_dwordx4 v{wOFF8}, {sr(sWD,4)}, s{sA0} offen nt lds")
    LAB("L_SVD3")
    for rg in range(14):
        A(f"s_add_u32 m0, s{sA2}, {(rg*7)*1024}")
        A(f"s_add_u32 s{sA0}, s{sA1}, {rg*8*896}")
        A(f"buffer_load_dwordx4 v{wOFF8}, {sr(sWD,4)}, s{sA0} offen nt lds")
    A(f"v_and_b32 v{t+1}, 15, v0")
    A(f"v_lshlrev_b32 v{t+1}, 2, v{t+1}")
    LAB("L_SVFL")
    A(f"buffer_load_dword v{t}, v{t+1}, {sr(sDBG,4)}, 0 offen offset:128 sc1")
    A("s_waitcnt vmcnt(0)")
    A(f"v_cmp_eq_u32 vcc, 0, v{t}")
    A("s_cbranch_vccz L_SVLOOP")
    spin_guard("L_SVFL")

    LAB("L_SVLOOP")
    A(f"s_and_b32 s{sBX}, s{sKK}, 1")
    A(f"s_mul_i32 s{sBX}, s{sBX}, 1792")
    A(f"s_sub_u32 s{sA1}, s{sKK}, 2")
    A(f"s_mul_i32 s{sA1}, s{sA1}, {15*PSLOT}")
    A(f"s_add_u32 s{sA1}, s{sA1}, s{sMYREG}")
    A(f"s_add_u32 s{sA1}, s{sA1}, {P_OFF}")
    if MLPOLL:
        LAB("L_WG0")
        A(f"buffer_load_dwordx2 {vr(t+16,2)}, v{wML}, {sr(sWS,4)}, s{sA1} offen sc1")
        A("s_waitcnt vmcnt(0)")
        A(f"v_cmp_ne_u32 vcc, -1, v{t+16}")
        A(f"s_and_b32 s{sA0}, vcc_lo, 0x7fff")
        A(f"s_bcnt1_i32_b32 s{sA0}, s{sA0}")
        A(f"s_cmp_ge_u32 s{sA0}, {MLTHR}")
        A("s_cbranch_scc1 L_WG")
        spin_guard("L_WG0")
    LAB("L_WG")
    A(f"buffer_load_dwordx2 {vr(t+16,2)}, v{wML}, {sr(sWS,4)}, s{sA1} offen sc1")
    for c in range(15):
        A(f"s_add_u32 s{sA0}, s{sA1}, {c*PSLOT}")
        A(f"buffer_load_dword v{t+c}, v{wGOFF}, {sr(sWS,4)}, s{sA0} offen sc1")
    A("s_waitcnt vmcnt(0)")
    check_sentinel(list(range(t, t+15)) + [t+16, t+17], t+18, "L_WG", "L_WGOK")
    if DIAG:
        A(f"s_lshl_b32 s95, s{sKK}, 2")
        DG("s95")
    if DEBUG_TS:
        A(f"s_lshl_b32 s95, s{sKK}, 5")
        TS(0, "s95")
    A(f"v_mov_b32 v{t+18}, v{t+16}")
    A(f"v_and_b32 v{t+19}, 15, v0")
    A(f"v_cmp_gt_u32 vcc, 15, v{t+19}")
    row_reduce("v_max_f32", t+18)
    A(f"v_sub_f32 v{t+16}, v{t+16}, v{t+18}")
    A(f"v_exp_f32 v{t+16}, v{t+16}")
    A(f"v_cndmask_b32 v{t+17}, 0, v{t+17}, vcc")
    A(f"v_mov_b32 v{t+18}, 0")
    A(f"v_mov_b32 v{t+19}, 0")
    A(f"v_mov_b32 v{t+20}, 0")
    A(f"v_mul_f32 v{t+17}, v{t+16}, v{t+17}")
    NOP(1)
    ctl4 = ("quad_perm:[1,0,3,2]", "quad_perm:[2,3,0,1]", "row_half_mirror", "row_mirror")
    for c in range(15):
        A(f"v_fmac_f32_dpp v{t+18+c%3}, v{t+16}, v{t+c} row_newbcast:{c} {DPPM}")
        if c % 3 == 1 and c // 3 < 4:
            A(f"v_add_f32_dpp v{t+17}, v{t+17}, v{t+17} {ctl4[c//3]} {DPPM}")
        if c == 12:
            A(f"v_rcp_f32 v{t+17}, v{t+17}")
    A(f"v_add_f32 v{t+18}, v{t+18}, v{t+19}")
    A(f"v_add_f32 v{t+18}, v{t+18}, v{t+20}")
    A(f"v_mul_f32 v{t+18}, v{t+18}, v{t+17}")
    A(f"v_cvt_pk_bf16_f32 v{t+30}, v{t+18}, v{t+18}")
    NOP(2)
    def wbuild(rg):
        bt = t + 28
        bb = (wB, t+32)[rg % 2]
        r = bcast8(bt, t+29, t+30, rg)
        r += [f"v_and_b32 v{bb+j}, v{bt}, v{wM8+j}" for j in range(4)]
        return r
    for x in wbuild(0):
        A(x)
    NOP(2)
    for rg in range(8):
        bb = (wB, t+32)[rg % 2]
        nxt = wbuild(rg + 1) if rg < 7 else []
        for cg in range(7):
            c = "0" if rg == 0 else vr(t+4*cg, 4)
            A(f"v_mfma_f32_16x16x32_bf16 {vr(t+4*cg,4)}, {wo_tile(rg,cg)}, {vr(bb,4)}, {c}")
            if cg < 4:
                for x in nxt[2*cg:2*cg+2]:
                    A(x)
    NOP(8)
    exec_set(0xff00ff0000ff00ff)
    for cg in range(7):
        A(f"ds_write_b128 v{wR2W}, {vr(t+4*cg,4)} offset:{cg*256}")
    exec_all()
    A("s_waitcnt lgkmcnt(0)")
    A("s_barrier")
    exec_set((1 << 56) - 1)
    A(f"v_add_u32 v{t+16}, {LDS_RED2}, v{wPI8}")
    for p in range(8):
        A(f"ds_read_b64 {vr(t+2*p,2)}, v{t+16} offset:{p*1792}")
    A(f"s_sub_u32 s{sA1}, s{sKK}, 2")
    A(f"s_mul_i32 s{sA1}, s{sA1}, 1792")
    A(f"s_add_u32 s{sA1}, s{sA1}, s{sMYREG}")
    A("s_waitcnt lgkmcnt(0)")
    for p in range(1, 8):
        A(f"v_add_f32 v{t}, v{t}, v{t+2*p}")
        A(f"v_add_f32 v{t+1}, v{t+1}, v{t+2*p+1}")
    A(f"v_min_u32 v{t}, -2, v{t}")
    A(f"v_min_u32 v{t+1}, -2, v{t+1}")
    A(f"buffer_store_dwordx2 {vr(t,2)}, v{wPI8}, {sr(sWS,4)}, s{sA1} offen offset:{Y_OFF} sc1")
    exec_all()
    if QREG: wq_regs(0, WQSPLIT, "a")
    if DEBUG_TS:
        A(f"s_lshl_b32 s95, s{sKK}, 5")
        A("s_add_u32 s95, s95, 4")
        TS(0, "s95")
    A(f"s_add_u32 s{sBX}, s{sBX}, {LDS_X}")
    gather_vec(Y_OFF, "Y")
    A(f"ds_write_b64 v{t+34}, {vr(t,2)}")
    exec_all()
    if QREG: wq_regs(WQSPLIT, 46, "b")
    A(f"s_sub_u32 s{sBX}, s{sBX}, {LDS_X}")
    A("s_waitcnt lgkmcnt(0)")
    A("s_barrier")
    if DEBUG_TS:
        A(f"s_lshl_b32 s95, s{sKK}, 5")
        A("s_add_u32 s95, s95, 8")
        TS(0, "s95")
    XP = t + 12
    PR(0)
    layernorm(XP, XP+1)
    PR(1)
    AG, AU = t+16, t+20
    gemv16(XP, gu_tile, AG, AU, (wB, t+24))
    PR(2)
    red_write(AG, AU)
    PR(3)
    for k in range(2):
        for m in range(2):
            A(f"ds_read_b128 {vr(t+4*(2*k+m),4)}, v{wHR} offset:{m*2048 + k*1024}")
    DT = t + 20
    A(f"s_lshl_b32 s{sA0}, s3, 11")
    A(f"v_add_u32 v{t+16}, s{sA0}, v{wL16}")
    A(f"v_add_u32 v{t+17}, {56*1024}, v{t+16}")
    def dread(i):
        rg, ci = i // 2, i % 2
        if rg < 8:
            A(f"ds_read_b128 {vr(DT+4*(i%4),4)}, v{t+16} offset:{(rg*7+ci)*1024}")
        else:
            A(f"ds_read_b128 {vr(DT+4*(i%4),4)}, v{t+17} offset:{((rg-8)*7+ci)*1024}")
    for i in range(4):
        dread(i)
    A("s_waitcnt lgkmcnt(4)")
    for q in range(4):
        b = t + 4*q
        A(f"v_add_f32 v{b}, v{b}, v{b+1}")
        A(f"v_add_f32 v{b+2}, v{b+2}, v{b+3}")
    for q in range(4):
        b = t + 4*q
        A(f"v_add_f32 v{b}, v{b}, v{b+2}")
    for q in range(4):
        bf16_round(t+4*q, t+4*q)
    for k in range(2):
        A(f"v_mul_f32 v{t+8*k}, {f32(-LOG2E)}, v{t+8*k}")
    for k in range(2):
        A(f"v_exp_f32 v{t+8*k}, v{t+8*k}")
    NOP(1)
    for k in range(2):
        A(f"v_add_f32 v{t+8*k}, 1.0, v{t+8*k}")
    for k in range(2):
        A(f"v_rcp_f32 v{t+8*k}, v{t+8*k}")
    NOP(1)
    for k in range(2):
        bf16_round(t+8*k, t+8*k)
    for k in range(2):
        A(f"v_mul_f32 v{t+8*k}, v{t+8*k}, v{t+8*k+4}")
    HP = (t+1, t+2)
    for k in range(2):
        A(f"v_cvt_pk_bf16_f32 v{HP[k]}, v{t+8*k}, v{t+8*k}")
    NOP(2)
    AD = (t+4, t+8)
    def dbuild(rg):
        bt = t + 3
        bb = (wB, t+12)[rg % 2]
        for x in bcast8(bt, t, HP[rg // 8], rg % 8):
            A(x)
        for j in range(4):
            A(f"v_and_b32 v{bb+j}, v{bt}, v{wM8+j}")
    PR(4)
    dbuild(0)
    NOP(1)
    for rg in range(14):
        bb = (wB, t+12)[rg % 2]
        for ci in range(2):
            i = rg*2 + ci
            rem = min(27 - i, 3)
            A(f"s_waitcnt lgkmcnt({rem})")
            c = "0" if rg == 0 else vr(AD[ci], 4)
            A(f"v_mfma_f32_16x16x32_bf16 {vr(AD[ci],4)}, {vr(DT+4*(i%4),4)}, {vr(bb,4)}, {c}")
            if i + 4 < 28:
                dread(i + 4)
            if ci == 0 and rg < 13:
                dbuild(rg + 1)
    PR(5)
    NOP(8)
    for k in range(8):
        A(f"v_mov_b32_dpp v{t+12+k}, v{t+4+k} row_ror:8 {DPPM}")
    NOP(1)
    for k in range(8):
        A(f"v_permlane32_swap_b32 v{t+12+k}, v{t+20+k}")
    NOP(1)
    for k in range(8):
        A(f"v_add_f32 v{t+4+k}, v{t+4+k}, v{t+20+k}")
    for k in range(8):
        A(f"v_min_u32 v{t+4+k}, -2, v{t+4+k}")
    A(f"s_sub_u32 s{sA1}, s{sKK}, 2")
    A(f"s_mul_i32 s{sA1}, s{sA1}, 1792")
    A(f"s_add_u32 s{sA1}, s{sA1}, s{sMYREG}")
    A(f"s_add_u32 s{sA1}, s{sA1}, {Z_OFF}")
    A("s_cmp_eq_u32 s3, 3")
    A(f"s_cselect_b32 s{sA2}, 0x80000000, s{sA1}")
    exec_set(0x00ff00ff)
    A(f"buffer_store_dwordx4 {vr(t+4,4)}, v{wZOFF}, {sr(sWS,4)}, s{sA1} offen sc1")
    A(f"buffer_store_dwordx4 {vr(t+8,4)}, v{wZOFF}, {sr(sWS,4)}, s{sA2} offen offset:256 sc1")
    exec_all()
    PR(6)
    PRDUMP(7)
    if DEBUG_TS:
        A(f"s_lshl_b32 s95, s{sKK}, 5")
        A("s_add_u32 s95, s95, 12")
        TS(0, "s95")
    A(f"s_cmp_lt_u32 s{sKK}, 4")
    A("s_cbranch_scc1 L_SVZ")
    A(f"s_cmp_lg_u32 s{sS}, 0")
    A("s_cbranch_scc1 L_SVNEXT")
    LAB("L_SVZ")
    NOP(2)
    A(f"s_add_u32 s{sBX}, s{sBX}, {LDS_X}")
    gather_vec(Z_OFF, "Z")
    A(f"s_sub_u32 s{sBX}, s{sBX}, {LDS_X}")
    A(f"s_cmp_lt_u32 s{sKK}, 4")
    A("s_cbranch_scc1 L_SVZ2")
    A(f"s_lshr_b32 s{sA0}, s{sBX}, 1")
    A(f"buffer_store_short_d16_hi v{t}, v{wC0}, {sr(sOUT,4)}, s{sA0} offen")
    A(f"buffer_store_short_d16_hi v{t+1}, v{wC0}, {sr(sOUT,4)}, s{sA0} offen offset:16")
    exec_all()
    if DIAG:
        A(f"s_lshl_b32 s95, s{sKK}, 2")
        A("s_add_u32 s95, s95, 16")
        DG("s95")
    if DEBUG_TS:
        A(f"s_lshl_b32 s95, s{sKK}, 5")
        A("s_add_u32 s95, s95, 16")
        TS(0, "s95", lite=True)
    A("s_branch L_SVNEXT")
    LAB("L_SVZ2")
    A(f"ds_write_b64 v{t+34}, {vr(t,2)}")
    exec_all()
    A("s_waitcnt lgkmcnt(0)")
    LAB("L_SVQ")
    A("s_barrier")
    if DEBUG_TS:
        A(f"s_lshl_b32 s95, s{sKK}, 5")
        A("s_add_u32 s95, s95, 16")
        TS(0, "s95")
    layernorm(XP, XP+1)
    A(f"v_add_u32 v{t+14}, s{sRINGB}, v{wL16}")
    QT = (t, t+4, t+28, t+32)
    def qrd(tts):
        def f():
            for n, tt in enumerate(tts):
                for h in range(2):
                    A(f"ds_read_b128 {vr(QT[2*n+h],4)}, v{t+14} offset:{(2*tt+h-46)*1024}")
        return f
    def qtile(tt, h):
        if tt < 23:
            return ar(8*tt+4*h, 4)
        return vr(QT[2*((tt-23) % 2)+h], 4)
    wl = lambda: A("s_waitcnt lgkmcnt(0)")
    order = list(range(0, 8)) + [23, 24] + list(range(8, 16)) + [25, 26] + list(range(16, 23)) + [27]
    if QREG:
        gemv16(XP, qtile, AG, AU, (wB, t+24), order,
               {0: qrd([23, 24]), 8: wl, 11: qrd([25, 26]), 18: wl, 21: qrd([27]), 27: wl})
    else:
        wq_base()
        QT = t + 28
        for tt in range(28):
            bb = (wB, t+24)[tt % 2]
            for h in range(2):
                i = tt*2 + h
                if h == 0:
                    A(f"s_waitcnt vmcnt({max(min(55 - i - 1, NRING - 2), 0)})")
                A(f"ds_read_b128 {vr(QT+4*h,4)}, v{t+14} offset:{(i % NRING)*1024}")
            for j in range(4):
                A(f"v_and_b32_dpp v{bb+j}, v{XP+tt//16}, v{wM16+j} row_newbcast:{tt%16} {DPPM}")
            A("s_waitcnt lgkmcnt(0)")
            for h in range(2):
                i = tt*2 + h
                if i + NRING < 56:
                    wq_dma(i + NRING)
            NOP(1)
            for h, acc in ((0, AG), (1, AU)):
                c = "0" if tt == 0 else vr(acc, 4)
                A(f"v_mfma_f32_16x16x32_bf16 {vr(acc,4)}, {vr(QT+4*h,4)}, {vr(bb,4)}, {c}")
            NOP(4)
        for i in range(NRING):
            wq_dma(i)
    red_write(AG, AU)
    q_publish("L_SVQDONE")
    if QREG: wo_loads(46)
    if DIAG:
        A(f"s_lshl_b32 s95, s{sKK}, 2")
        A("s_add_u32 s95, s95, 16")
        DG("s95")
    if DEBUG_TS:
        A(f"s_lshl_b32 s95, s{sKK}, 5")
        A("s_add_u32 s95, s95, 20")
        TS(0, "s95")
    LAB("L_SVNEXT")
    A(f"s_add_u32 s{sKK}, s{sKK}, 1")
    A(f"s_cmp_lt_u32 s{sKK}, 6")
    A("s_cbranch_scc1 L_SVLOOP")

def main():
    global DEBUG_TS
    out = f"cdna_kernels/{NAME}.s"
    for a in sys.argv[1:]:
        if a == "--ts":
            DEBUG_TS = True
        elif a.startswith("--mall="):
            globals()["MALLMASK"] = int(a[7:])
        elif a.startswith("--statq="):
            globals()["STATQ"] = int(a[8:])
        elif a.startswith("--codepf="):
            globals()["CODEPF"] = int(a[9:])
        elif a == "--probe":
            globals()["PROBE"] = True
        elif a == "--wqnt":
            globals()["WQPOL"] = "nt"
        elif a.startswith("--nocomp="):
            globals()["NOCOMP"] = int(a[9:])
        elif a == "--mlpoll":
            globals()["MLPOLL"] = True
        elif a == "--tslite":
            DEBUG_TS = True
            globals()["TSLITE"] = True
        elif a.startswith("--xhalf="):
            globals()["XHALF"] = int(a[8:])
        elif a in ("--fix", "--diag", "--qreg"):
            pass
        elif a.startswith("--relq="):
            globals()["RELQ"] = int(a[7:])
        elif a.startswith("--cut="):
            globals()["DEPTHCUT"] = int(a[6:])
        elif a.startswith("--wqs="):
            globals()["WQSPLIT"] = int(a[6:])
        elif a.startswith("--la="):
            globals()["LA"] = int(a[5:])
        elif a.startswith("--slowx="):
            globals()["SLOWX"] = int(a[8:])
        elif a.startswith("--sloww="):
            globals()["SLOWW"] = int(a[8:])
        elif a == "--statdef":
            globals()["STATPOL"] = ""
        else:
            out = a
    header()
    stream()
    service()
    footer()
    open(out, "w").write("\n".join(x for x in L if x is not None) + "\n")
    print("wrote", out, len(L), "lines")

main()
```

```python
import struct, sys

NAME = "interleave_layers__mha_block_cached__glu_gated_glu__decode"
DEBUG_TS = False
SPIN_MAX = 400000
STATPOL = "nt"
CODEPF = 3
PROBE = False
WQPOL = ""
NOCOMP = 0
MLPOLL = True
TSLITE = False
XHALF = 0
FIX = "--fix" in sys.argv
DIAG = "--diag" in sys.argv
RELQ = 44
MLTHR = 6
DEPTHCUT = 0
WQSPLIT = 20
QREG = "--noqreg" not in sys.argv
LA = 3
SLOWX = 200
SLOWW = 4
STATQ = 16
MALLMASK = None

def f32(x):
    return "0x%08x" % struct.unpack("<I", struct.pack("<f", x))[0]

LOG2E = 1.4426950408889634
REGION = 98304
Q_OFF, Y_OFF, Z_OFF, P_OFF = 256, 2304, 9472, 16640
PSLOT = 1152
CLEAR_PER_WAVE = 21
NDYN = 784
NSTAT = 240
TS_OFF = 0x200000

L = []
def A(s):
    L.append("    " + s)
def LAB(s):
    L.append(s + ":")
def NOP(n):
    if n > 0:
        A(f"s_nop {n-1}")
def vr(a, n):
    return f"v[{a}:{a+n-1}]"
def ar(a, n):
    return f"a[{a}:{a+n-1}]"
def sr(a, n):
    return f"s[{a}:{a+n-1}]"
DPPM = "row_mask:0xf bank_mask:0xf"

def srd(dst, ptr, nbytes):
    A(f"s_mov_b32 s{dst}, s{ptr}")
    A(f"s_and_b32 s{dst+1}, s{ptr+1}, 0xffff")
    A(f"s_mov_b32 s{dst+2}, {nbytes}")
    A(f"s_mov_b32 s{dst+3}, 0x20000")

def exec_set(val):
    lo, hi = val & 0xffffffff, val >> 32
    A(f"s_mov_b32 exec_lo, 0x{lo:x}")
    A(f"s_mov_b32 exec_hi, 0x{hi:x}")
def exec_all():
    A("s_mov_b64 exec, -1")

def xrow_reduce(op, x, t):
    A(f"v_mov_b32 v{t}, v{x}")
    NOP(2)
    A(f"v_permlane16_swap_b32 v{x}, v{t}")
    NOP(1)
    A(f"{op} v{x}, v{x}, v{t}")
    A(f"v_mov_b32 v{t}, v{x}")
    NOP(2)
    A(f"v_permlane32_swap_b32 v{x}, v{t}")
    NOP(1)
    A(f"{op} v{x}, v{x}, v{t}")

def row_reduce(op, x):
    for ctl in ("quad_perm:[1,0,3,2]", "quad_perm:[2,3,0,1]", "row_half_mirror", "row_mirror"):
        NOP(2)
        A(f"{op}_dpp v{x}, v{x}, v{x} {ctl} {DPPM}")

def wave_reduce(op, x, t):
    row_reduce(op, x)
    xrow_reduce(op, x, t)

def bf16_round(dst, src):
    A(f"v_cvt_pk_bf16_f32 v{dst}, v{src}, v{src}")
    A(f"v_and_b32 v{dst}, 0xffff0000, v{dst}")

def DG(word):
    if not DIAG:
        return
    n = len(L)
    A("s_or_b32 s98, s2, s3")
    A("s_cmp_lg_u32 s98, 0")
    A(f"s_cbranch_scc1 L_DG{n}")
    A("s_memrealtime s[98:99]")
    A("s_waitcnt lgkmcnt(0)")
    A("s_sub_u32 s98, s98, s94")
    A("v_mov_b32 v62, s98")
    if isinstance(word, int):
        A(f"s_mov_b32 s98, {word*4}")
    else:
        A(f"s_mov_b32 s98, {word}")
    A("s_mov_b64 s[100:101], exec")
    A("s_mov_b64 exec, 1")
    A("buffer_store_dword v62, off, s[52:55], s98")
    A("s_mov_b64 exec, s[100:101]")
    LAB(f"L_DG{n}")

def PR(i):
    if DEBUG_TS and PROBE:
        A(f"s_memtime s[{16+2*i}:{17+2*i}]")
def PRDUMP(n):
    if DEBUG_TS and PROBE:
        A("s_waitcnt lgkmcnt(0)")
        A("s_mov_b64 exec, 1")
        A("v_mov_b32 v63, 0")
        for i in range(n):
            A(f"v_mov_b32 v62, s{16+2*i}")
            A(f"buffer_store_dword v62, v63, s[48:51], s97 offen offset:{224+4*i}")
        exec_all()

TSREG = [62]
def TS(idx_sgpr_or_const, slot, lite=False):
    if not DEBUG_TS or (TSLITE and not lite):
        return
    A("s_memrealtime s[98:99]")
    A("s_waitcnt lgkmcnt(0)")
    A(f"v_mov_b32 v{TSREG[0]}, s98")
    A(f"s_add_u32 s98, s97, {slot*4}" if isinstance(slot, int) else f"s_add_u32 s98, s97, {slot}")
    A("s_mov_b64 s[100:101], exec")
    A("s_mov_b64 exec, 1")
    A(f"buffer_store_dword v{TSREG[0]}, off, s[48:51], s98")
    A("s_mov_b64 exec, s[100:101]")

def header():
    for c in """Kernarg (8-byte pointers): 0 A_x, 8 A_k_cache, 16 A_v_cache, 24 A_wq, 32 A_wo, 40 B_x (unused),
  48 B_w_gate, 56 B_w_up, 64 B_w_down, 72 d_out, 80 d_debug, 88 d_ws
One persistent launch, one workgroup (4 waves x 512 registers, 160 KiB LDS) per CU.
  wg 0..15   service: head s of wo/wq and GLU slice s resident on chip; runs the small GEMV chain
             (combine + wo, layernorm, GLU, layernorm, wq) between the attention passes.
  wg 16..255 stream: 15 per head; K/V blocks of 16 keys are handed out by a per-head ticket counter
             (flash-decoding partials, running max), 136 keys per wave stay resident in registers/LDS
             between the two layers (first batch 0, then refilled with batch 1).
Order of the K/V traffic: L1/b0, L1/b1 (streamed part), L2/b0 resident part + refill with b1,
  L1/b1 resident part, L2/b0 streamed part, L2/b1 - each batch's GEMV chain hides behind the other's stream.
Hand-offs: sc1 stores / sc1 loads of words pre-cleared to 0xffffffff in d_ws; d_debug[32+s] = region s cleared.
Generated by a script (own assembly).""".split("\n"):
        L.append("; " + c)
    L.append("; @launch grid=(256,1,1) block=(256,1,1) lds=163840")
    L.append('.amdgcn_target "amdgcn-amd-amdhsa--gfx950"')
    L.append(".text")
    L.append(f".globl {NAME}_kernel")
    L.append(".p2align 8")
    L.append(f".type {NAME}_kernel,@function")
    LAB(f"{NAME}_kernel")
    A("s_cmp_ge_u32 s2, 256")
    A("s_cbranch_scc1 L_END")
    A("s_load_dwordx16 s[16:31], s[0:1], 0")
    A("s_load_dwordx8 s[32:39], s[0:1], 64")
    if CODEPF:
        A("s_getpc_b64 s[4:5]")
        A("v_lshlrev_b32 v2, 6, v0")
        for i in range(CODEPF):
            A(f"global_load_dword v63, v2, s[4:5]")
            A(f"v_add_u32 v2, 0x4000, v2")
    A("v_lshrrev_b32 v1, 6, v0")
    A("v_and_b32 v0, 63, v0")
    A("v_readfirstlane_b32 s3, v1")
    A(f"s_mov_b32 s96, {SPIN_MAX}")
    A("s_waitcnt lgkmcnt(0)")
    srd(48, 38, 0x40000000 if DEBUG_TS else 16 * REGION)
    srd(52, 36, 256)
    if DEBUG_TS:
        A("s_lshl_b32 s97, s2, 2")
        A("s_add_u32 s97, s97, s3")
        A("s_lshl_b32 s97, s97, 8")
        A(f"s_add_u32 s97, s97, {TS_OFF}")
    A("s_cmp_lt_u32 s2, 16")
    A("s_cbranch_scc1 L_SERVICE")

def footer():
    LAB("L_END")
    A("s_endpgm")
    L.append(f".fill (({NAME}_kernel + {CODEPF*16384+256} - .) / 4), 4, 0xbf800000")
    L.append('.section .rodata,"a"')
    L.append(".p2align 6")
    L.append(f".amdhsa_kernel {NAME}_kernel")
    L.append("  .amdhsa_next_free_vgpr 512")
    L.append("  .amdhsa_next_free_sgpr 102")
    L.append("  .amdhsa_accum_offset 256")
    L.append("  .amdhsa_group_segment_fixed_size 0")
    L.append("  .amdhsa_kernarg_size 96")
    L.append("  .amdhsa_user_sgpr_count 2")
    L.append("  .amdhsa_user_sgpr_kernarg_segment_ptr 1")
    L.append("  .amdhsa_system_sgpr_workgroup_id_x 1")
    L.append("  .amdhsa_float_denorm_mode_32 3")
    L.append(".end_amdhsa_kernel")

def spin_guard(label_retry):
    A("s_sleep 2")
    A("s_sub_u32 s96, s96, 1")
    A("s_cmp_eq_u32 s96, 0")
    A("s_cbranch_scc1 L_END")
    A(f"s_branch {label_retry}")

def masks16(m, t):
    A(f"v_and_b32 v{t}, 15, v0")
    A(f"v_and_b32 v{t+1}, 1, v0")
    A(f"v_lshlrev_b32 v{t+1}, 4, v{t+1}")
    A(f"v_mov_b32 v{m}, 0xffff")
    A(f"v_lshlrev_b32 v{t+1}, v{t+1}, v{m}")
    A(f"v_lshrrev_b32 v{t}, 1, v{t}")
    for j in range(4):
        A(f"v_cmp_eq_u32 vcc, {j}, v{t}")
        NOP(2)
        A(f"v_cndmask_b32 v{m+j}, 0, v{t+1}, vcc")

def masks8(m, t):
    A(f"v_and_b32 v{t}, 7, v0")
    A(f"v_and_b32 v{t+1}, 1, v0")
    A(f"v_lshlrev_b32 v{t+1}, 4, v{t+1}")
    A(f"v_mov_b32 v{m}, 0xffff")
    A(f"v_lshlrev_b32 v{t+1}, v{t+1}, v{m}")
    A(f"v_lshrrev_b32 v{t}, 1, v{t}")
    for j in range(4):
        A(f"v_cmp_eq_u32 vcc, {j}, v{t}")
        NOP(2)
        A(f"v_cndmask_b32 v{m+j}, 0, v{t+1}, vcc")

vKOFF, vVOFF, vTICK = 1, 2, 3
vMSK = 4
vM, vL = 8, 9
vQN = 10
vS0, vS1, vSa, vSb = 12, 13, 14, 15
vX, vY, vF, vT = vSa, vSb, vSb, vSb
vP0, vP1 = vS0, vS1
vB0, vB1 = 16, 20
vACC = 24
vQ = 32
VX = 48
RING = 64
KST = 128
sK, sV, sWS, sDBG = 40, 44, 48, 52
sHEAD, sC, sWV, sHOFF = 4, 5, 6, 7
sLDPH, sLIM, sTB, sNOFF, sCUR, sPROC, sQTAG, sT0 = 8, 9, 10, 11, 12, 13, 14, 15
sCC, sREG, sT1, sT2, sT3, sPEND, sLDSK = 72, 73, 74, 75, 76, 77, 78
LDS_KW = 9 * 4096
LDS_SCR = 4 * LDS_KW
LDS_PART = LDS_SCR
LDS_CNT = LDS_SCR + 8448
LDS_QB = LDS_SCR + 8704
FIRST = 510
NDYN = 1024 - FIRST
sRET, sRET2, sRELOAD = 79, 80, 81
sPROC_S = str(sPROC)

def loadK(dst, soff, pol="nt"):
    for j in range(4):
        A(f"buffer_load_dwordx4 {vr(dst+4*j,4)}, v{vKOFF}, {sr(sK,4)}, s{soff} offen offset:{128*j} {pol}")
def loadV(dst, soff, agpr=False, pol="nt"):
    for j in range(4):
        d = ar(dst+4*j, 4) if agpr else vr(dst+4*j, 4)
        A(f"buffer_load_dwordx4 {d}, v{vVOFF}, {sr(sV,4)}, s{soff} offen offset:{256*j} {pol}")

def kdots(R, S):
    for i in range(8):
        for (acc, k) in ((vSa, i), (vSb, 8 + i)):
            c = "0" if i == 0 else f"v{acc}"
            A(f"v_dot2_f32_bf16 v{acc}, v{R+k}, v{vQ+k}, {c}")
    NOP(3)
    A(f"v_add_f32 v{S}, v{vSa}, v{vSb}")

def kdots_lds(ldsoff, S):
    tmp = (vB0, vB1)
    A(f"ds_read_b128 {vr(tmp[0],4)}, v{vS1} offset:{ldsoff}")
    A(f"ds_read_b128 {vr(tmp[1],4)}, v{vS1} offset:{ldsoff+1024}")
    for j in range(4):
        A(f"s_waitcnt lgkmcnt({1 if j < 3 else 0})")
        acc = vSa if j % 2 == 0 else vSb
        for i in range(4):
            c = "0" if (j < 2 and i == 0) else f"v{acc}"
            A(f"v_dot2_f32_bf16 v{acc}, v{tmp[j%2]+i}, v{vQ+4*j+i}, {c}")
        if j < 2:
            A(f"ds_read_b128 {vr(tmp[j%2],4)}, v{vS1} offset:{ldsoff+1024*(j+2)}")
    NOP(3)
    A(f"v_add_f32 v{S}, v{vSa}, v{vSb}")

def softmax_update():
    for ctl in ("quad_perm:[1,0,3,2]", "quad_perm:[2,3,0,1]", "row_half_mirror"):
        NOP(1)
        A(f"v_add_f32_dpp v{vS0}, v{vS0}, v{vS0} {ctl} {DPPM}")
        A(f"v_add_f32_dpp v{vS1}, v{vS1}, v{vS1} {ctl} {DPPM}")
        NOP(1)
    A(f"v_cvt_pk_bf16_f32 v{vT}, v{vS0}, v{vS1}")
    A(f"v_lshlrev_b32 v{vS0}, 16, v{vT}")
    A(f"v_and_b32 v{vS1}, 0xffff0000, v{vT}")
    A(f"v_max_f32 v{vX}, v{vS0}, v{vS1}")
    NOP(2)
    A(f"v_max_f32_dpp v{vX}, v{vX}, v{vX} row_ror:8 {DPPM}")
    xrow_reduce("v_max_f32", vX, vY)
    A(f"v_mul_f32 v{vX}, s{sCC}, v{vX}")
    A(f"v_ceil_f32 v{vX}, v{vX}")
    A(f"v_max_f32 v{vX}, v{vX}, v{vM}")
    A(f"v_sub_f32 v{vF}, v{vM}, v{vX}")
    A(f"v_fma_f32 v{vS0}, v{vS0}, s{sCC}, -v{vX}")
    A(f"v_fma_f32 v{vS1}, v{vS1}, s{sCC}, -v{vX}")
    A(f"v_exp_f32 v{vF}, v{vF}")
    A(f"v_exp_f32 v{vS0}, v{vS0}")
    A(f"v_exp_f32 v{vS1}, v{vS1}")
    A(f"v_mov_b32 v{vM}, v{vX}")
    A(f"v_fma_f32 v{vL}, v{vL}, v{vF}, v{vS0}")
    A(f"v_cvt_pk_bf16_f32 v{vP0}, v{vS0}, v{vS0}")
    A(f"v_add_f32 v{vL}, v{vL}, v{vS1}")
    A(f"v_cvt_pk_bf16_f32 v{vP1}, v{vS1}, v{vS1}")
    for k in range(8):
        A(f"v_mul_f32 v{vACC+k}, v{vACC+k}, v{vF}")

def vmfma(R, P, agpr=False):
    rr = (lambda k: ar(R+4*k, 4)) if agpr else (lambda k: vr(R+4*k, 4))
    for j in range(4):
        A(f"v_and_b32 v{vB0+j}, v{P}, v{vMSK+j}")
    for j in range(4):
        A(f"v_and_b32_dpp v{vB1+j}, v{P}, v{vMSK+j} row_ror:8 {DPPM}")
    a0, a1 = vr(vACC, 4), vr(vACC+4, 4)
    A(f"v_mfma_f32_16x16x32_bf16 {a0}, {rr(0)}, {vr(vB0,4)}, {a0}")
    A(f"v_mfma_f32_16x16x32_bf16 {a1}, {rr(1)}, {vr(vB0,4)}, {a1}")
    A(f"v_mfma_f32_16x16x32_bf16 {a0}, {rr(2)}, {vr(vB1,4)}, {a0}")
    A(f"v_mfma_f32_16x16x32_bf16 {a1}, {rr(3)}, {vr(vB1,4)}, {a1}")

def ticket_atomic(dst):
    A("s_mov_b64 exec, 1")
    A(f"buffer_atomic_add v{dst}, off, {sr(sWS,4)}, s{sREG} sc0 sc1")
    exec_all()

def q_load(ph):
    A(f"s_lshl_b32 s{sT1}, s{ph}, 9")
    A(f"s_add_u32 s{sT1}, s{sT1}, s{sREG}")
    A(f"v_lshlrev_b32 v{vSa}, 3, v0")
    A(f"buffer_load_dwordx2 {vr(vQN,2)}, v{vSa}, {sr(sWS,4)}, s{sT1} offen offset:{Q_OFF} sc1")

dec_n = [0]
def decode(src, nxt):
    n = dec_n[0]; dec_n[0] += 1
    A(f"v_readfirstlane_b32 s{sT0}, v{src}")
    A(f"v_mov_b32 v{src}, 1")
    A(f"s_add_u32 s{sT0}, s{sT0}, 1")
    LAB(f"L_DEC{n}")
    A(f"s_cmp_lt_u32 s{sT0}, s{sLIM}")
    A(f"s_cbranch_scc1 L_DOK{n}")
    A(f"s_add_u32 s{sLDPH}, s{sLDPH}, 1")
    A(f"s_add_u32 s{sLIM}, s{sLIM}, {NDYN}")
    A(f"s_bitcmp1_b32 s{sLDPH}, 0")
    A(f"s_cselect_b32 s{sT1}, 0x10000000, 0")
    A(f"s_add_u32 s{sTB}, s{sTB}, s{sT1}")
    A(f"s_sub_u32 s{sTB}, s{sTB}, {0x08000000 + NDYN*8192}")
    A(f"s_cmp_lt_u32 s{sLDPH}, 4")
    A(f"s_cbranch_scc0 L_DFIN{n}")
    q_load(sLDPH)
    A(f"s_mov_b32 s{sQTAG}, s{sLDPH}")
    A(f"s_branch L_DEC{n}")
    LAB(f"L_DFIN{n}")
    A(f"s_mov_b32 s{sLIM}, -1")
    LAB(f"L_DOK{n}")
    A(f"s_lshl_b32 s{sNOFF}, s{sT0}, 13")
    A(f"s_add_u32 s{sNOFF}, s{sNOFF}, s{sTB}")
    A(f"s_cmp_ge_u32 s{sLDPH}, 4")
    A(f"s_cselect_b32 s{sNOFF}, 0x80000000, s{sNOFF}")
    A(f"s_add_u32 s{sT3}, s{sNOFF}, 4096")
    if SLOWX:
        A(f"s_sub_u32 s{sT1}, s{sT0}, {2*NDYN}")
        A(f"s_cmp_lt_u32 s{sT1}, {SLOWX}")
        A(f"s_cselect_b32 s{sRET2}, 1, 0")
    if nxt is not None:
        ticket_atomic(nxt)

def stat_loadK(u, q=None):
    A(f"s_add_u32 s{sT1}, s{sT2}, {u*60*4096}")
    if (q or STATQ) < 64:
        A(f"s_waitcnt vmcnt({(q or STATQ)-4})")
    if u < 8:
        loadK(KST + 16*u, sT1)
    else:
        for j in range(4):
            A(f"s_add_u32 m0, s{sLDSK}, {(u-8)*4096 + 896*j}")
            NOP(1)
            A(f"buffer_load_dwordx4 v{vKOFF}, {sr(sK,4)}, s{sT1} offen offset:{128*j} nt lds")
def stat_loadV(u, q=None):
    A(f"s_add_u32 s{sT1}, s{sT2}, {u*60*4096}")
    if (q or STATQ) < 64:
        A(f"s_waitcnt vmcnt({(q or STATQ)-4})")
    if u < 16:
        loadV(16*u, sT1, agpr=True)
    else:
        loadV(VX, sT1)
def stat_load_block(blk, q=None):
    us = [u for u in (2*blk, 2*blk+1) if u < 17]
    for u in us: stat_loadK(u, q)
    for u in us: stat_loadV(u, q)

def statics():
    size = lambda j: 16 if j < 8 else (8 if j == 8 else 0)
    for blk in range(9):
        A(f"s_cmp_lg_u32 s{sRELOAD}, 2")
        A(f"s_cbranch_scc1 L_NOWT{blk}")
        A(f"s_waitcnt vmcnt({sum(size(j) for j in range(blk+1, blk+LA))})")
        LAB(f"L_NOWT{blk}")
        if blk >= 4:
            A(f"v_lshl_add_u32 v{vS1}, v0, 4, s{sLDSK}")
        for i, S in ((0, vS0), (1, vS1)):
            u = blk*2 + i
            if u < 8:
                kdots(KST + 16*u, S)
            elif u < 17:
                kdots_lds((u-8)*4096, S)
            else:
                A(f"v_mov_b32 v{vS1}, {f32(-1e30)}")
        softmax_update()
        if blk < 8:
            vmfma(blk*32, vP0, agpr=True)
            vmfma(blk*32+16, vP1, agpr=True)
        else:
            vmfma(VX, vP0)
        if blk < LA:
            A(f"s_cmp_lg_u32 s{sRELOAD}, 1")
            A(f"s_cbranch_scc1 L_NORA{blk}")
            stat_load_block(blk, 64)
            LAB(f"L_NORA{blk}")
        if blk + LA <= 8:
            A(f"s_cmp_lg_u32 s{sRELOAD}, 2")
            A(f"s_cbranch_scc1 L_NORB{blk}")
            stat_load_block(blk + LA, 64)
            LAB(f"L_NORB{blk}")
        NOP(3)

def scr_addr(b):
    if isinstance(b, int):
        A(f"s_mov_b32 s{sT0}, {LDS_PART + 4224*b}")
    else:
        A(f"s_and_b32 s{sT0}, s{b}, 1")
        A(f"s_mul_i32 s{sT0}, s{sT0}, 4224")
        A(f"s_add_u32 s{sT0}, s{sT0}, {LDS_PART}")
    A(f"s_mul_i32 s{sT1}, s3, 1056")
    A(f"s_add_u32 s{sT1}, s{sT1}, s{sT0}")
    A(f"v_lshrrev_b32 v{vS0}, 4, v0")
    A(f"v_and_b32 v{vS1}, 15, v0")
    A(f"v_lshl_add_u32 v{vS0}, v{vS0}, 3, v{vS1}")
    A(f"v_lshl_add_u32 v{vX}, v{vS0}, 4, s{sT1}")

def spill(b):
    scr_addr(b)
    NOP(2)
    A(f"v_add_f32_dpp v{vL}, v{vL}, v{vL} row_ror:8 {DPPM}")
    xrow_reduce("v_add_f32", vL, vY)
    exec_set(0x00ff00ff00ff00ff)
    A(f"ds_write_b128 v{vX}, {vr(vACC,4)}")
    A(f"ds_write_b128 v{vX}, {vr(vACC+4,4)} offset:512")
    A("s_mov_b64 exec, 1")
    A(f"ds_write_b64 v{vX}, {vr(vM,2)} offset:1024")
    exec_all()

def q_read(b):
    A(f"s_lshl_b32 s{sT1}, s3, 10")
    if isinstance(b, int):
        A(f"s_add_u32 s{sT1}, s{sT1}, {LDS_QB + 512*b}")
    else:
        A(f"s_and_b32 s{sT0}, s{b}, 1")
        A(f"s_lshl_b32 s{sT0}, s{sT0}, 9")
        A(f"s_add_u32 s{sT1}, s{sT1}, s{sT0}")
        A(f"s_add_u32 s{sT1}, s{sT1}, {LDS_QB}")
        A(f"v_lshl_add_u32 v{vS0}, v0, 3, s{sT1}")
        A(f"ds_write_b64 v{vS0}, {vr(vQN,2)}")
    A(f"v_and_b32 v{vS1}, 7, v0")
    A(f"v_lshl_add_u32 v{vS1}, v{vS1}, 4, s{sT1}")
    A("s_waitcnt lgkmcnt(0)")
    for j in range(4):
        A(f"ds_read_b128 {vr(vQ+4*j,4)}, v{vS1} offset:{128*j}")

def restore(b):
    q_read(b)
    scr_addr(b)
    A(f"v_mov_b32 v{vY}, s{sT1}")
    for k in range(8):
        A(f"v_mov_b32 v{vACC+k}, 0")
    A(f"ds_read_b64 {vr(vM,2)}, v{vY} offset:1024")
    exec_set(0x00ff00ff00ff00ff)
    A(f"ds_read_b128 {vr(vACC,4)}, v{vX}")
    A(f"ds_read_b128 {vr(vACC+4,4)}, v{vX} offset:512")
    exec_all()
    A("s_waitcnt lgkmcnt(0)")
    A(f"v_mul_f32 v{vL}, 0.125, v{vL}" if False else f"v_mul_f32 v{vL}, {f32(0.125)}, v{vL}")

fin_n = [0]
def finalize(ph):
    n = fin_n[0]; fin_n[0] += 1
    spill(ph & 1 if isinstance(ph, int) else ph)
    if isinstance(ph, int):
        A(f"s_mov_b32 s{sT1}, {LDS_CNT + 4*ph}")
    else:
        A(f"s_lshl_b32 s{sT1}, s{ph}, 2")
        A(f"s_add_u32 s{sT1}, s{sT1}, {LDS_CNT}")
    A("s_mov_b64 exec, 1")
    A(f"v_mov_b32 v{vX}, s{sT1}")
    A(f"v_mov_b32 v{vY}, 1")
    A("s_waitcnt lgkmcnt(0)")
    A(f"ds_add_rtn_u32 v{vY}, v{vX}, v{vY}")
    A("s_waitcnt lgkmcnt(0)")
    A(f"v_readfirstlane_b32 s{sT1}, v{vY}")
    exec_all()
    NOP(2)
    A(f"s_cmp_lg_u32 s{sT1}, 3")
    A(f"s_cbranch_scc1 L_NOPUB{n}")
    A(f"v_mov_b32 v{vX}, s{sT0}")
    A(f"v_lshl_add_u32 v{vY}, v0, 4, s{sT0}")
    for w in range(4):
        A(f"ds_read_b64 {vr(vB0+2*w,2)}, v{vX} offset:{1056*w+1024}")
    for w in range(4):
        A(f"ds_read_b128 {vr(vQ+4*w,4)}, v{vY} offset:{1056*w}")
    if isinstance(ph, int):
        A(f"s_add_u32 s{sT0}, s{sC}, {15*ph}")
    else:
        A(f"s_mul_i32 s{sT0}, s{ph}, 15")
        A(f"s_add_u32 s{sT0}, s{sT0}, s{sC}")
    A(f"s_mul_i32 s{sT0}, s{sT0}, {PSLOT}")
    A(f"s_add_u32 s{sT0}, s{sT0}, s{sREG}")
    A(f"s_add_u32 s{sT0}, s{sT0}, {P_OFF}")
    A(f"v_lshlrev_b32 v{vS0}, 4, v0")
    A("s_waitcnt lgkmcnt(4)")
    A(f"v_max3_f32 v{vM}, v{vB0}, v{vB0+2}, v{vB0+4}")
    A(f"v_max_f32 v{vM}, v{vM}, v{vB0+6}")
    for w in range(4):
        A(f"v_sub_f32 v{vB0+2*w}, v{vB0+2*w}, v{vM}")
    for w in range(4):
        A(f"v_exp_f32 v{vB0+2*w}, v{vB0+2*w}")
    NOP(1)
    A(f"v_mul_f32 v{vL}, v{vB0}, v{vB0+1}")
    for w in range(1, 4):
        A(f"v_fmac_f32 v{vL}, v{vB0+2*w}, v{vB0+2*w+1}")
    A("s_waitcnt lgkmcnt(0)")
    for r in range(4):
        A(f"v_mul_f32 v{vACC+r}, v{vB0}, v{vQ+r}")
    for w in range(1, 4):
        for r in range(4):
            A(f"v_fmac_f32 v{vACC+r}, v{vB0+2*w}, v{vQ+4*w+r}")
    for r in range(4):
        A(f"v_min_u32 v{vACC+r}, -2, v{vACC+r}")
    A(f"v_min_u32 v{vM}, -2, v{vM}")
    A(f"v_min_u32 v{vL}, -2, v{vL}")
    A(f"buffer_store_dwordx4 {vr(vACC,4)}, v{vS0}, {sr(sWS,4)}, s{sT0} offen sc1")
    A("s_mov_b64 exec, 1")
    A(f"buffer_store_dwordx2 {vr(vM,2)}, off, {sr(sWS,4)}, s{sT0} offset:1024 sc1")
    exec_all()
    NOP(2)
    LAB(f"L_NOPUB{n}")
    if DEBUG_TS:
        if isinstance(ph, int):
            TS(0, 3 + 2*ph)
        else:
            A(f"s_lshl_b32 s95, s{ph}, 3")
            A("s_add_u32 s95, s95, 12")
            TS(0, "s95")

def stream():
    TSREG[0] = vB1 + 2
    TS(0, 0)
    A(f"s_sub_u32 s{sT0}, s2, 16")
    A(f"s_mul_hi_u32 s{sHEAD}, s{sT0}, 0x11111112")
    A(f"s_mul_i32 s{sT1}, s{sHEAD}, 15")
    A(f"s_sub_u32 s{sC}, s{sT0}, s{sT1}")
    A(f"s_lshl_b32 s{sWV}, s{sC}, 2")
    A(f"s_add_u32 s{sWV}, s{sWV}, s3")
    A(f"s_lshl_b32 s{sHOFF}, s{sHEAD}, 23")
    srd(sK, 18, 0x10000000)
    srd(sV, 20, 0x10000000)
    A(f"v_lshrrev_b32 v{vX}, 3, v0")
    A(f"v_and_b32 v{vY}, 7, v0")
    A(f"v_lshlrev_b32 v{vX}, 9, v{vX}")
    A(f"v_lshl_add_u32 v{vKOFF}, v{vY}, 4, v{vX}")
    A(f"v_lshrrev_b32 v{vX}, 4, v0")
    A(f"v_and_b32 v{vY}, 15, v0")
    A(f"v_lshlrev_b32 v{vX}, 10, v{vX}")
    A(f"v_lshl_add_u32 v{vVOFF}, v{vY}, 4, v{vX}")
    A(f"s_lshl_b32 s{sT2}, s{sWV}, 12")
    A(f"s_add_u32 s{sT2}, s{sT2}, s{sHOFF}")
    A(f"s_mul_i32 s{sLDSK}, s3, {LDS_KW}")
    for blk in range(4):
        stat_load_block(blk)
    TS(0, 20)
    A(f"s_mov_b32 s{sCC}, {f32(LOG2E/16)}")
    A(f"s_mul_i32 s{sREG}, s{sHEAD}, {REGION}")
    A(f"v_mov_b32 v{vTICK}, 1")
    A(f"v_mov_b32 v{vS0}, 1")
    masks16(vMSK, vX)
    A(f"v_lshlrev_b32 v{vX}, 2, v0")
    A(f"v_and_b32 v{vX}, 12, v{vX}")
    A(f"v_add_u32 v{vX}, {LDS_CNT}, v{vX}")
    A(f"v_mov_b32 v{vY}, 0")
    A(f"ds_write_b32 v{vX}, v{vY}")
    A("s_waitcnt lgkmcnt(0)")
    A("s_barrier")
    A(f"s_lshl_b32 s{sT0}, s{sHEAD}, 2")
    A(f"buffer_load_dword v{vS1}, off, {sr(sDBG,4)}, s{sT0} offset:128 sc1")
    for blk in range(4, 8):
        stat_load_block(blk)
    LAB("L_FLAGCHK")
    A(f"v_readfirstlane_b32 s{sT1}, v{vS1}")
    NOP(2)
    A(f"s_cmp_lg_u32 s{sT1}, 0")
    A("s_cbranch_scc1 L_FLAGOK")
    A("s_sleep 2")
    A("s_sub_u32 s96, s96, 1")
    A("s_cmp_eq_u32 s96, 0")
    A("s_cbranch_scc1 L_END")
    A(f"buffer_load_dword v{vS1}, off, {sr(sDBG,4)}, s{sT0} offset:128 sc1")
    A("s_waitcnt vmcnt(0)")
    A("s_branch L_FLAGCHK")
    LAB("L_FLAGOK")
    TS(0, 1)
    ticket_atomic(vS0)
    ticket_atomic(vTICK)
    A(f"s_mov_b32 s{sLDPH}, 0")
    q_load(sLDPH)
    stat_load_block(8)
    A(f"s_add_u32 s{sT2}, s{sT2}, 0x08000000")
    A(f"s_mov_b32 s{sQTAG}, 0")
    A(f"s_mov_b32 s{sLIM}, {NDYN}")
    A(f"s_add_u32 s{sTB}, s{sHOFF}, {FIRST*8192}")
    A(f"s_mov_b32 s{sPROC}, 0")
    A(f"s_mov_b32 s{sRELOAD}, 0")
    A("s_waitcnt vmcnt(8)")
    decode(vS0, None)
    loadK(RING, sNOFF); loadK(RING+16, sT3); loadV(RING+32, sNOFF); loadV(RING+48, sT3)
    A(f"s_mov_b32 s{sCUR}, s{sLDPH}")
    A("s_waitcnt vmcnt(12)")
    decode(vTICK, vTICK)
    A("s_branch L_SETUP")

    L.append(".p2align 6")
    LAB("L_LOOP")
    A(f"s_waitcnt vmcnt({12-DEPTHCUT})")
    decode(vTICK, vTICK)
    A(f"s_cmp_lg_u32 s{sCUR}, s{sPROC}")
    A("s_cbranch_scc1 L_SWITCH")
    def slow(n):
        if SLOWX:
            A(f"s_cmp_eq_u32 s{sRET2}, 0")
            A(f"s_cbranch_scc1 L_SL{n}")
            A(f"s_waitcnt vmcnt({SLOWW})")
            LAB(f"L_SL{n}")
    def body(wait):
        kdots(RING, vS0)
        slow(0)
        loadK(RING, sNOFF)
        if wait: A(f"s_waitcnt vmcnt({13-DEPTHCUT})")
        kdots(RING+16, vS1)
        slow(1)
        loadK(RING+16, sT3)
        softmax_update()
        if wait: A(f"s_waitcnt vmcnt({13-DEPTHCUT})")
        vmfma(RING+32, vP0)
        slow(2)
        loadV(RING+32, sNOFF)
        if wait: A(f"s_waitcnt vmcnt({13-DEPTHCUT})")
        vmfma(RING+48, vP1)
        slow(3)
        loadV(RING+48, sT3)
        A(f"s_mov_b32 s{sCUR}, s{sLDPH}")
    LAB("L_BODY")
    body(True)
    A(f"s_cmp_eq_u32 s{sPEND}, 0")
    A("s_cbranch_scc1 L_LOOP")
    A(f"s_mov_b32 s{sRET}, 0")
    LAB("L_DOSTAT")
    if DEBUG_TS:
        A(f"s_lshl_b32 s95, s{sPROC}, 2")
        A("s_add_u32 s95, s95, 120")
        TS(0, "s95")
    NOP(4)
    statics()
    if DEBUG_TS:
        A(f"s_lshl_b32 s95, s{sPROC}, 2")
        A("s_add_u32 s95, s95, 136")
        TS(0, "s95")
    A(f"s_mov_b32 s{sPEND}, 0")
    A(f"s_cmp_eq_u32 s{sRET}, 0")
    A("s_cbranch_scc1 L_LOOP")
    A(f"s_cmp_eq_u32 s{sRET}, 2")
    A("s_cbranch_scc1 L_AFTER2")
    A(f"s_cmp_eq_u32 s{sRET}, 3")
    A("s_cbranch_scc1 L_AFTER3")

    LAB("L_SWITCH")
    A(f"s_cmp_eq_u32 s{sPEND}, 0")
    A("s_cbranch_scc1 L_SW1")
    A(f"s_mov_b32 s{sRET}, 1")
    A("s_waitcnt vmcnt(0)")
    A("s_branch L_DOSTAT")
    LAB("L_SW1")
    if DEBUG_TS:
        A(f"s_lshl_b32 s95, s{sPROC}, 2")
        A("s_add_u32 s95, s95, 104")
        TS(0, "s95")
    A(f"s_cmp_lg_u32 s{sPROC}, 1")
    A("s_cbranch_scc1 L_SW2")
    spill(1)
    TS(0, 24)
    A("s_branch L_SW3")
    LAB("L_SW2")
    finalize(sPROC_S)
    LAB("L_SW3")
    A(f"s_add_u32 s{sPROC}, s{sPROC}, 1")
    A(f"s_cmp_ge_u32 s{sPROC}, 4")
    A("s_cbranch_scc1 L_END")
    LAB("L_SETUP")
    if DEBUG_TS:
        A(f"s_lshl_b32 s95, s{sPROC}, 2")
        A("s_add_u32 s95, s95, 64")
        TS(0, "s95")
    A(f"s_cmp_eq_u32 s{sQTAG}, s{sPROC}")
    A("s_cbranch_scc1 L_QCHK")
    LAB("L_QSLOW")
    A(f"s_mov_b32 s{sQTAG}, -1")
    q_load(sPROC)
    A("s_waitcnt vmcnt(0)")
    LAB("L_QCHK")
    A(f"v_max_u32 v{vX}, v{vQN}, v{vQN+1}")
    A(f"v_cmp_eq_u32 vcc, -1, v{vX}")
    A("s_cbranch_vccz L_QOK")
    spin_guard("L_QSLOW")
    LAB("L_QOK")
    q_read(sPROC_S)
    for k in range(8):
        A(f"v_mov_b32 v{vACC+k}, 0")
    A(f"v_mov_b32 v{vL}, 0")
    A(f"v_mov_b32 v{vM}, {f32(-1e30)}")
    A("s_waitcnt lgkmcnt(0)")
    if DEBUG_TS:
        A(f"s_lshl_b32 s95, s{sPROC}, 3")
        A("s_add_u32 s95, s95, 8")
        TS(0, "s95")
    A(f"s_cmp_lg_u32 s{sPROC}, 1")
    A(f"s_cselect_b32 s{sPEND}, 1, 0")
    A(f"s_cmp_lg_u32 s{sPROC}, 2")
    A("s_cbranch_scc1 L_SW4")
    A(f"s_mov_b32 s{sRELOAD}, 1")
    A(f"s_mov_b32 s{sRET}, 2")
    A("s_branch L_DOSTAT")
    LAB("L_AFTER2")
    TS(0, 25)
    spill(0)
    restore(1)
    A(f"s_mov_b32 s{sRELOAD}, 2")
    A(f"s_mov_b32 s{sRET}, 3")
    A("s_branch L_DOSTAT")
    LAB("L_AFTER3")
    A(f"s_mov_b32 s{sRELOAD}, 0")
    finalize(1)
    restore(0)
    LAB("L_SW4")
    A(f"s_cmp_lg_u32 s{sCUR}, s{sPROC}")
    A("s_cbranch_scc1 L_SWITCH")
    A("s_branch L_BODY")
    TSREG[0] = 62

sS = 2
sX, sWQ, sWO, sWG, sWU, sWD, sOUT = 40, 44, 56, 60, 64, 68, 80
sKK, sBX, sMYREG = 4, 5, 6
sA0, sA1, sA2, sA3 = 7, 8, 9, 10
sRINGB = 11
wM8, wM16 = 4, 8
wOFF8, wOFFG, wOFFQ, wPI8 = 1, 2, 3, 12
wGOFF, wML, wR2W, wXPK = 13, 14, 15, 16
wRW, wHR, wL16, wZOFF = 17, 18, 19, 20
wL4, wZERO, wC0, wQR = 21, 22, 23, 0
wB = 24
wT = 28
RES_V = 64
LDS_DOWN = 0
LDS_RING = 100352
NRING = 10
LDS_X = LDS_RING + 4*NRING*1024
LDS_RED2 = LDS_X + 3584
LDS_RED = LDS_RED2 + 14336

def wo_tile(rg, cg):
    return ar((rg*7+cg)*4, 4)
def gu_tile(t, m):
    i = t*2 + m
    if i < 8:
        return ar(224 + i*4, 4)
    return vr(RES_V + (i-8)*4, 4)

def check_sentinel(regs, t, label_retry, label_ok):
    regs = list(regs)
    A(f"v_max_u32 v{t}, v{regs[0]}, v{regs[1]}")
    rest = regs[2:]
    while len(rest) >= 2:
        A(f"v_max3_u32 v{t}, v{t}, v{rest[0]}, v{rest[1]}")
        rest = rest[2:]
    if rest:
        A(f"v_max_u32 v{t}, v{t}, v{rest[0]}")
    A(f"v_cmp_eq_u32 vcc, -1, v{t}")
    A(f"s_cbranch_vccz {label_ok}")
    spin_guard(label_retry)
    LAB(label_ok)

def wq_dma(i):
    t, h = i // 2, i % 2
    A(f"s_add_u32 m0, s{sRINGB}, {((i - 46) if QREG else (i % NRING))*1024}")
    A(f"s_add_u32 s{sA0}, s{sA3}, {t*4*8192 + h*256}")
    A(f"buffer_load_dwordx4 v{wOFFQ}, {sr(sWQ,4)}, s{sA0} offen lds")

def wq_regs(lo, hi, tag):
    A(f"s_cmp_ge_u32 s{sKK}, 4")
    A(f"s_cbranch_scc1 L_NOWQ{tag}")
    wq_base()
    for i in range(lo, hi):
        A(f"s_add_u32 s{sA0}, s{sA3}, {(i//2)*4*8192 + (i%2)*256}")
        A(f"buffer_load_dwordx4 {gu_tile(i//2, i%2)}, v{wOFFQ}, {sr(sWQ,4)}, s{sA0} offen")
    LAB(f"L_NOWQ{tag}")

def gu_loads(n):
    A(f"s_mul_i32 s{sA1}, s3, {112*3584}")
    A(f"s_mul_i32 s{sA0}, s{sS}, 224")
    A(f"s_add_u32 s{sA1}, s{sA1}, s{sA0}")
    for tt in range(n):
        A(f"s_add_u32 s{sA0}, s{sA1}, {tt*4*3584}")
        A(f"buffer_load_dwordx4 {gu_tile(tt,0)}, v{wOFFG}, {sr(sWG,4)}, s{sA0} offen {'' if QREG else 'nt'}")
        A(f"buffer_load_dwordx4 {gu_tile(tt,1)}, v{wOFFG}, {sr(sWU,4)}, s{sA0} offen {'' if QREG else 'nt'}")

def wo_loads(n):
    A(f"s_lshl_b32 s{sA1}, s{sS}, 8")
    A(f"s_lshl_b32 s{sA0}, s3, 6")
    A(f"s_add_u32 s{sA1}, s{sA1}, s{sA0}")
    A(f"s_mul_i32 s{sA1}, s{sA1}, 896")
    for j in range(n):
        rg, cg = j // 7, j % 7
        if cg == 0:
            A(f"s_add_u32 s{sA0}, s{sA1}, {rg*8*896}")
        A(f"buffer_load_dwordx4 {wo_tile(rg,cg)}, v{wOFF8}, {sr(sWO,4)}, s{sA0} offen offset:{cg*128} nt")

def wq_base():
    A(f"s_mul_i32 s{sA3}, s3, {112*8192}")
    A(f"s_lshl_b32 s{sA0}, s{sS}, 9")
    A(f"s_add_u32 s{sA3}, s{sA3}, s{sA0}")

def dual_wave_sum(x, y, t0, t1):
    for ctl in ("quad_perm:[1,0,3,2]", "quad_perm:[2,3,0,1]", "row_half_mirror", "row_mirror"):
        NOP(1)
        A(f"v_add_f32_dpp v{x}, v{x}, v{x} {ctl} {DPPM}")
        A(f"v_add_f32_dpp v{y}, v{y}, v{y} {ctl} {DPPM}")
    for sw in ("v_permlane16_swap_b32", "v_permlane32_swap_b32"):
        A(f"v_mov_b32 v{t0}, v{x}")
        A(f"v_mov_b32 v{t1}, v{y}")
        NOP(1)
        A(f"{sw} v{x}, v{t0}")
        A(f"{sw} v{y}, v{t1}")
        A(f"v_add_f32 v{x}, v{x}, v{t0}")
        A(f"v_add_f32 v{y}, v{y}, v{t1}")

def layernorm(xp0, xp1):
    t = wT
    A(f"v_add_u32 v{t+10}, s{sBX}, v{wL4}")
    A(f"v_add_u32 v{t+11}, s{sBX}, v{wXPK}")
    A(f"s_add_u32 s{sA0}, s{sBX}, {LDS_X}")
    A(f"v_mov_b32 v{t+9}, s{sA0}")
    A(f"ds_read_b32 v{t+9}, v{t+9}")
    for k in range(3):
        A(f"ds_read2st64_b32 {vr(t+2*k,2)}, v{t+10} offset0:{2*k} offset1:{2*k+1}")
    A(f"ds_read_b32 v{t+6}, v{t+10} offset:1536")
    A(f"ds_read_b32 v{xp0}, v{t+11}")
    A(f"ds_read_b32 v{xp1}, v{t+11} offset:256")
    A("s_waitcnt lgkmcnt(2)")
    for k in range(7):
        A(f"v_sub_f32 v{t+k}, v{t+k}, v{t+9}")
    A(f"v_add_f32 v{t+8}, v{t}, v{t+1}")
    A(f"v_mul_f32 v{t+7}, v{t}, v{t}")
    for k in range(1, 7):
        A(f"v_fmac_f32 v{t+7}, v{t+k}, v{t+k}")
        if k >= 2:
            A(f"v_add_f32 v{t+8}, v{t+8}, v{t+k}")
    NOP(1)
    dual_wave_sum(t+8, t+7, t+10, t+11)
    A(f"v_mul_f32 v{t+8}, {f32(1/448)}, v{t+8}")
    A(f"v_mul_f32 v{t+7}, {f32(1/448)}, v{t+7}")
    A(f"v_fma_f32 v{t+7}, -v{t+8}, v{t+8}, v{t+7}")
    A(f"v_add_f32 v{t+8}, v{t+8}, v{t+9}")
    A(f"v_max_f32 v{t+7}, 0, v{t+7}")
    bf16_round(t+8, t+8)
    bf16_round(t+7, t+7)
    A("s_waitcnt lgkmcnt(0)")
    A(f"v_add_f32 v{t+7}, {f32(1e-5)}, v{t+7}")
    for x in (xp0, xp1):
        A(f"v_sub_f32 v{x}, v{x}, v{t+8}")
    bf16_round(t+7, t+7)
    A(f"v_sqrt_f32 v{t+7}, v{t+7}")
    for x in (xp0, xp1):
        bf16_round(x, x)
    bf16_round(t+7, t+7)
    A(f"v_rcp_f32 v{t+7}, v{t+7}")
    NOP(1)
    for x in (xp0, xp1):
        A(f"v_mul_f32 v{x}, v{x}, v{t+7}")
    for x in (xp0, xp1):
        A(f"v_cvt_pk_bf16_f32 v{x}, v{x}, v{x}")
    NOP(1)

def gemv16(XP, tile, acc0, acc1, bbs, order=None, hooks=None):
    order = order or list(range(28))
    hooks = hooks or {}
    def build(n):
        tt = order[n]
        for j in range(4):
            A(f"v_and_b32_dpp v{bbs[n%2]+j}, v{XP+tt//16}, v{wM16+j} row_newbcast:{tt%16} {DPPM}")
    build(0)
    NOP(1)
    for n in range(28):
        tt = order[n]
        bb = vr(bbs[n % 2], 4)
        if n in hooks:
            hooks[n]()
        NOP(1)
        A(f"v_mfma_f32_16x16x32_bf16 {vr(acc0,4)}, {tile(tt,0)}, {bb}, {'0' if n == 0 else vr(acc0,4)}")
        if n < 27:
            build(n + 1)
        A(f"v_mfma_f32_16x16x32_bf16 {vr(acc1,4)}, {tile(tt,1)}, {bb}, {'0' if n == 0 else vr(acc1,4)}")

def red_write(acc0, acc1):
    NOP(8)
    exec_set(0x00ff00ff00ff00ff)
    for m, acc in ((0, acc0), (1, acc1)):
        for r in range(4):
            A(f"ds_write_b32 v{wRW}, v{acc+r} offset:{m*2048 + r*128}")
    exec_all()
    A("s_waitcnt lgkmcnt(0)")
    A("s_barrier")

def gather_vec(off, tag):
    t = wT
    exec_set((1 << 56) - 1)
    A(f"s_sub_u32 s{sA1}, s{sKK}, 2")
    A(f"s_mul_i32 s{sA1}, s{sA1}, 1792")
    A(f"s_add_u32 s{sA1}, s{sA1}, {off}")
    A(f"v_add_u32 v{t+34}, s{sBX}, v{wPI8}")
    A(f"ds_read_b64 {vr(t+32,2)}, v{t+34} offset:{0}")
    LAB(f"L_G{tag}")
    for s in range(16):
        A(f"s_add_u32 s{sA0}, s{sA1}, {s*REGION}")
        A(f"buffer_load_dwordx2 {vr(t+2*s,2)}, v{wPI8}, {sr(sWS,4)}, s{sA0} offen offset:0 sc1")
    A("s_waitcnt vmcnt(0)")
    check_sentinel(range(t, t+32), t+35, f"L_G{tag}", f"L_G{tag}OK")
    for s in range(1, 16):
        A(f"v_add_f32 v{t}, v{t}, v{t+2*s}")
        A(f"v_add_f32 v{t+1}, v{t+1}, v{t+2*s+1}")
    bf16_round(t, t)
    bf16_round(t+1, t+1)
    A("s_waitcnt lgkmcnt(0)")
    A(f"v_add_f32 v{t}, v{t}, v{t+32}")
    A(f"v_add_f32 v{t+1}, v{t+1}, v{t+33}")
    bf16_round(t, t)
    bf16_round(t+1, t+1)

sHI = 12
def bcast8(dst, tmp, src, u):
    return [f"v_mov_b32_dpp v{dst}, v{src} row_newbcast:{u} {DPPM}",
            f"v_mov_b32_dpp v{tmp}, v{src} row_newbcast:{8+u} {DPPM}",
            f"v_cndmask_b32 v{dst}, v{dst}, v{tmp}, s[{sHI}:{sHI+1}]"]

def q_publish(done):
    t = wT
    A("s_cmp_ge_u32 s3, 2")
    A(f"s_cbranch_scc1 {done}")
    A(f"s_lshl_b32 s{sA0}, s3, 11")
    A(f"s_add_u32 s{sA0}, s{sA0}, {LDS_RED}")
    A(f"v_lshl_add_u32 v{t+8}, v0, 5, s{sA0}")
    A(f"ds_read_b128 {vr(t,4)}, v{t+8}")
    A(f"ds_read_b128 {vr(t+4,4)}, v{t+8} offset:16")
    A(f"s_lshl_b32 s{sA1}, s{sKK}, 9")
    A(f"s_add_u32 s{sA1}, s{sA1}, s{sMYREG}")
    A(f"s_lshl_b32 s{sA0}, s3, 8")
    A(f"s_add_u32 s{sA1}, s{sA1}, s{sA0}")
    A(f"v_lshlrev_b32 v{t+9}, 2, v0")
    A("s_waitcnt lgkmcnt(0)")
    for q in range(2):
        b = t + 4*q
        A(f"v_add_f32 v{b}, v{b}, v{b+1}")
        A(f"v_add_f32 v{b+2}, v{b+2}, v{b+3}")
        A(f"v_add_f32 v{b}, v{b}, v{b+2}")
    A(f"v_cvt_pk_bf16_f32 v{t}, v{t}, v{t+4}")
    A(f"v_min_u32 v{t}, -2, v{t}")
    A(f"buffer_store_dword v{t}, v{t+9}, {sr(sWS,4)}, s{sA1} offen offset:{Q_OFF} sc1")
    LAB(done)

def service():
    LAB("L_SERVICE")
    if DIAG:
        A("s_memrealtime s[94:95]")
        A("s_waitcnt lgkmcnt(0)")
    TS(0, 0, lite=True)
    t = wT
    srd(sX, 16, 1792)
    srd(sWQ, 22, 448*4096*2)
    srd(sWO, 24, 448*4096*2)
    srd(sWG, 28, 448*1792*2)
    srd(sWU, 30, 448*1792*2)
    srd(sWD, 32, 448*1792*2)
    srd(sOUT, 34, 1792)
    A(f"s_mul_i32 s{sMYREG}, s{sS}, {REGION}")
    A(f"s_mov_b32 s{sHI}, 0xff00ff00")
    A(f"s_mov_b32 s{sHI+1}, 0xff00ff00")
    for i in range(4):
        A(f"v_mov_b32 v{t+12+i}, -1")
    A(f"v_lshlrev_b32 v{wL16}, 4, v0")
    A(f"s_mul_i32 s{sA1}, s3, {CLEAR_PER_WAVE*1024}")
    A(f"s_add_u32 s{sA1}, s{sA1}, s{sMYREG}")
    for i in range(CLEAR_PER_WAVE):
        A(f"s_add_u32 s{sA0}, s{sA1}, {i*1024}")
        A(f"buffer_store_dwordx4 {vr(t+12,4)}, v{wL16}, {sr(sWS,4)}, s{sA0} offen sc1")
    G, N, U, E8 = t, t+1, t+2, t+3
    A(f"v_lshrrev_b32 v{G}, 4, v0")
    A(f"v_and_b32 v{N}, 15, v0")
    A(f"v_and_b32 v{U}, 7, v0")
    A(f"v_lshrrev_b32 v{E8}, 3, v0")
    A(f"v_lshlrev_b32 v{t+4}, 4, v{N}")
    A(f"s_movk_i32 s{sA0}, 0x2000")
    A(f"v_mad_u32_u24 v{wOFFQ}, v{G}, s{sA0}, v{t+4}")
    A(f"s_movk_i32 s{sA0}, 3584")
    A(f"v_mad_u32_u24 v{wOFFG}, v{G}, s{sA0}, v{t+4}")
    A(f"v_lshlrev_b32 v{t+4}, 4, v{U}")
    A(f"s_movk_i32 s{sA0}, 896")
    A(f"v_mad_u32_u24 v{wOFF8}, v{E8}, s{sA0}, v{t+4}")
    A(f"s_mul_i32 s{sRINGB}, s3, {NRING*1024}")
    A(f"s_add_u32 s{sRINGB}, s{sRINGB}, {LDS_RING}")
    wq_base()
    for i in range(56):
        if i == 8:
            A("s_waitcnt vmcnt(0)")
            A("s_barrier")
            A(f"v_mov_b32 v{t+17}, 0")
            A("s_cmp_lg_u32 s3, 0")
            A("s_cbranch_scc1 L_SVNOFLAG")
            A(f"s_lshl_b32 s{sA0}, s{sS}, 2")
            A(f"v_mov_b32 v{t+16}, 1")
            A("s_mov_b64 exec, 1")
            A(f"buffer_store_dword v{t+16}, v{t+17}, {sr(sDBG,4)}, s{sA0} offen offset:128 sc1")
            exec_all()
            LAB("L_SVNOFLAG")
        A(f"s_add_u32 s{sA0}, s{sA3}, {(i//2)*4*8192 + (i%2)*256}")
        A(f"buffer_load_dwordx4 {ar(4*i,4)}, v{wOFFQ}, {sr(sWQ,4)}, s{sA0} offen {WQPOL}")
    A(f"s_mul_i32 s{sA0}, s3, 56")
    A(f"v_add_u32 v{t+4}, s{sA0}, v0")
    A(f"v_lshlrev_b32 v{wPI8}, 3, v{t+4}")
    A(f"v_lshlrev_b32 v{t+4}, 1, v{t+4}")
    A(f"v_and_b32 v{t+5}, 0xffffffe0, v{t+4}")
    A(f"v_and_b32 v{t+6}, 3, v{t+4}")
    A(f"v_lshl_add_u32 v{t+5}, v{t+6}, 3, v{t+5}")
    A(f"v_bfe_u32 v{t+6}, v{t+4}, 2, 3")
    A(f"v_add_u32 v{t+5}, v{t+5}, v{t+6}")
    A(f"v_lshlrev_b32 v{wC0}, 1, v{t+5}")
    exec_set((1 << 56) - 1)
    for b in range(2):
        for i in range(2):
            A(f"buffer_load_ushort v{t+8+2*b+i}, v{wC0}, {sr(sX,4)}, 0 offen offset:{b*896+16*i}")
    exec_all()
    masks8(wM8, t+16)
    masks16(wM16, t+16)
    A(f"v_mov_b32 v{wZERO}, 0")
    A(f"v_lshlrev_b32 v{wL4}, 2, v0")
    A(f"v_add_u32 v{wL4}, {LDS_X}, v{wL4}")
    A(f"v_lshrrev_b32 v{t+4}, 2, v{U}")
    A(f"v_lshlrev_b32 v{t+4}, 5, v{t+4}")
    A(f"v_lshl_add_u32 v{t+4}, v{E8}, 2, v{t+4}")
    A(f"v_and_b32 v{t+5}, 3, v0")
    A(f"v_add_u32 v{t+4}, v{t+4}, v{t+5}")
    A(f"s_lshl_b32 s{sA0}, s3, 6")
    A(f"v_add_u32 v{t+4}, s{sA0}, v{t+4}")
    A(f"v_lshlrev_b32 v{wGOFF}, 2, v{t+4}")
    A(f"v_min_u32 v{t+4}, 14, v{N}")
    A(f"v_mul_u32_u24 v{t+4}, {PSLOT}, v{t+4}")
    A(f"v_add_u32 v{wML}, 1024, v{t+4}")
    A(f"v_lshrrev_b32 v{t+4}, 1, v{G}")
    A(f"s_lshl_b32 s{sA0}, s3, 1")
    A(f"v_add_u32 v{t+4}, s{sA0}, v{t+4}")
    A(f"v_mul_u32_u24 v{t+4}, 1792, v{t+4}")
    A(f"v_and_b32 v{t+5}, 1, v{G}")
    A(f"v_lshlrev_b32 v{t+5}, 7, v{t+5}")
    A(f"v_lshl_add_u32 v{t+5}, v{U}, 4, v{t+5}")
    A(f"v_add_u32 v{t+4}, v{t+4}, v{t+5}")
    A(f"v_add_u32 v{wR2W}, {LDS_RED2}, v{t+4}")
    A(f"s_lshl_b32 s{sA0}, s3, 9")
    A(f"v_add_u32 v{wZOFF}, s{sA0}, v{t+5}")
    A(f"s_mul_i32 s{sA0}, s3, 112")
    A(f"v_lshl_add_u32 v{t+4}, v{N}, 2, v{G}")
    A(f"v_add_u32 v{t+4}, s{sA0}, v{t+4}")
    A(f"v_and_b32 v{t+5}, 0xffffffe0, v{t+4}")
    A(f"v_and_b32 v{t+6}, 7, v{t+4}")
    A(f"v_lshl_add_u32 v{t+5}, v{t+6}, 2, v{t+5}")
    A(f"v_bfe_u32 v{t+6}, v{t+4}, 3, 2")
    A(f"v_add_u32 v{t+5}, v{t+5}, v{t+6}")
    A(f"v_lshlrev_b32 v{t+5}, 2, v{t+5}")
    A(f"v_add_u32 v{wXPK}, {LDS_X}, v{t+5}")
    A(f"v_lshl_add_u32 v{t+4}, v{G}, 5, v{N}")
    A(f"v_lshlrev_b32 v{t+4}, 4, v{t+4}")
    A(f"s_lshl_b32 s{sA0}, s3, 2")
    A(f"s_add_u32 s{sA0}, s{sA0}, {LDS_RED}")
    A(f"v_add_u32 v{wRW}, s{sA0}, v{t+4}")
    A(f"v_lshl_add_u32 v{t+4}, v{U}, 3, v{E8}")
    A(f"v_lshlrev_b32 v{t+4}, 4, v{t+4}")
    A(f"v_add_u32 v{wHR}, {LDS_RED}, v{t+4}")
    if DEBUG_TS:
        TS(0, 1)
        TS(0, 2)
    A("s_waitcnt vmcnt(0)")
    TS(0, 3)
    for i in range(4):
        A(f"v_lshlrev_b32 v{t+8+i}, 16, v{t+8+i}")
    A(f"v_add_u32 v{wPI8}, {LDS_X}, v{wPI8}")
    exec_set((1 << 56) - 1)
    A(f"ds_write_b64 v{wPI8}, {vr(t+8,2)}")
    A(f"ds_write_b64 v{wPI8}, {vr(t+10,2)} offset:1792")
    exec_all()
    A(f"v_subrev_u32 v{wPI8}, {LDS_X}, v{wPI8}")
    A("s_waitcnt lgkmcnt(0)")
    A("s_barrier")
    A(f"s_mov_b32 s{sKK}, 0")
    XP = t + 12
    AG, AU = t+16, t+20
    LAB("L_SVQ0")
    A(f"s_mul_i32 s{sBX}, s{sKK}, 1792")
    if DEBUG_TS:
        A(f"s_lshl_b32 s95, s{sKK}, 5")
        A("s_add_u32 s95, s95, 16")
        TS(0, "s95")
    layernorm(XP, XP+1)
    gemv16(XP, lambda tt, h: ar(8*tt+4*h, 4), AG, AU, (wB, t+24))
    red_write(AG, AU)
    q_publish("L_SVQ0DONE")
    DG(0)
    if DEBUG_TS:
        A(f"s_lshl_b32 s95, s{sKK}, 5")
        A("s_add_u32 s95, s95, 20")
        TS(0, "s95")
    A("s_waitcnt lgkmcnt(0)")
    A("s_barrier")
    A(f"s_add_u32 s{sKK}, s{sKK}, 1")
    A(f"s_cmp_lt_u32 s{sKK}, 2")
    A("s_cbranch_scc1 L_SVQ0")
    for i in (range(46, 56) if QREG else range(NRING)):
        wq_dma(i)
    wo_loads(56)
    gu_loads(28)
    A(f"s_mul_i32 s{sA1}, s{sS}, {112*896}")
    A(f"s_lshl_b32 s{sA0}, s3, 8")
    A(f"s_add_u32 s{sA1}, s{sA1}, s{sA0}")
    A(f"s_lshl_b32 s{sA2}, s3, 11")
    A("s_cmp_eq_u32 s3, 3")
    A("s_cbranch_scc1 L_SVD3")
    for rg in range(14):
        A(f"s_add_u32 m0, s{sA2}, {(rg*7+1)*1024}")
        A(f"s_add_u32 s{sA0}, s{sA1}, {rg*8*896+128}")
        A(f"buffer_load_dwordx4 v{wOFF8}, {sr(sWD,4)}, s{sA0} offen nt lds")
    LAB("L_SVD3")
    for rg in range(14):
        A(f"s_add_u32 m0, s{sA2}, {(rg*7)*1024}")
        A(f"s_add_u32 s{sA0}, s{sA1}, {rg*8*896}")
        A(f"buffer_load_dwordx4 v{wOFF8}, {sr(sWD,4)}, s{sA0} offen nt lds")
    A(f"v_and_b32 v{t+1}, 15, v0")
    A(f"v_lshlrev_b32 v{t+1}, 2, v{t+1}")
    LAB("L_SVFL")
    A(f"buffer_load_dword v{t}, v{t+1}, {sr(sDBG,4)}, 0 offen offset:128 sc1")
    A("s_waitcnt vmcnt(0)")
    A(f"v_cmp_eq_u32 vcc, 0, v{t}")
    A("s_cbranch_vccz L_SVLOOP")
    spin_guard("L_SVFL")

    LAB("L_SVLOOP")
    A(f"s_and_b32 s{sBX}, s{sKK}, 1")
    A(f"s_mul_i32 s{sBX}, s{sBX}, 1792")
    A(f"s_sub_u32 s{sA1}, s{sKK}, 2")
    A(f"s_mul_i32 s{sA1}, s{sA1}, {15*PSLOT}")
    A(f"s_add_u32 s{sA1}, s{sA1}, s{sMYREG}")
    A(f"s_add_u32 s{sA1}, s{sA1}, {P_OFF}")
    if MLPOLL:
        LAB("L_WG0")
        A(f"buffer_load_dwordx2 {vr(t+16,2)}, v{wML}, {sr(sWS,4)}, s{sA1} offen sc1")
        A("s_waitcnt vmcnt(0)")
        A(f"v_cmp_ne_u32 vcc, -1, v{t+16}")
        A(f"s_and_b32 s{sA0}, vcc_lo, 0x7fff")
        A(f"s_bcnt1_i32_b32 s{sA0}, s{sA0}")
        A(f"s_cmp_ge_u32 s{sA0}, {MLTHR}")
        A("s_cbranch_scc1 L_WG")
        spin_guard("L_WG0")
    LAB("L_WG")
    A(f"buffer_load_dwordx2 {vr(t+16,2)}, v{wML}, {sr(sWS,4)}, s{sA1} offen sc1")
    for c in range(15):
        A(f"s_add_u32 s{sA0}, s{sA1}, {c*PSLOT}")
        A(f"buffer_load_dword v{t+c}, v{wGOFF}, {sr(sWS,4)}, s{sA0} offen sc1")
    A("s_waitcnt vmcnt(0)")
    check_sentinel(list(range(t, t+15)) + [t+16, t+17], t+18, "L_WG", "L_WGOK")
    if DIAG:
        A(f"s_lshl_b32 s95, s{sKK}, 2")
        DG("s95")
    if DEBUG_TS:
        A(f"s_lshl_b32 s95, s{sKK}, 5")
        TS(0, "s95")
    A(f"v_mov_b32 v{t+18}, v{t+16}")
    A(f"v_and_b32 v{t+19}, 15, v0")
    A(f"v_cmp_gt_u32 vcc, 15, v{t+19}")
    row_reduce("v_max_f32", t+18)
    A(f"v_sub_f32 v{t+16}, v{t+16}, v{t+18}")
    A(f"v_exp_f32 v{t+16}, v{t+16}")
    A(f"v_cndmask_b32 v{t+17}, 0, v{t+17}, vcc")
    A(f"v_mov_b32 v{t+18}, 0")
    A(f"v_mov_b32 v{t+19}, 0")
    A(f"v_mov_b32 v{t+20}, 0")
    A(f"v_mul_f32 v{t+17}, v{t+16}, v{t+17}")
    NOP(1)
    ctl4 = ("quad_perm:[1,0,3,2]", "quad_perm:[2,3,0,1]", "row_half_mirror", "row_mirror")
    for c in range(15):
        A(f"v_fmac_f32_dpp v{t+18+c%3}, v{t+16}, v{t+c} row_newbcast:{c} {DPPM}")
        if c % 3 == 1 and c // 3 < 4:
            A(f"v_add_f32_dpp v{t+17}, v{t+17}, v{t+17} {ctl4[c//3]} {DPPM}")
        if c == 12:
            A(f"v_rcp_f32 v{t+17}, v{t+17}")
    A(f"v_add_f32 v{t+18}, v{t+18}, v{t+19}")
    A(f"v_add_f32 v{t+18}, v{t+18}, v{t+20}")
    A(f"v_mul_f32 v{t+18}, v{t+18}, v{t+17}")
    A(f"v_cvt_pk_bf16_f32 v{t+30}, v{t+18}, v{t+18}")
    NOP(2)
    def wbuild(rg):
        bt = t + 28
        bb = (wB, t+32)[rg % 2]
        r = bcast8(bt, t+29, t+30, rg)
        r += [f"v_and_b32 v{bb+j}, v{bt}, v{wM8+j}" for j in range(4)]
        return r
    for x in wbuild(0):
        A(x)
    NOP(2)
    for rg in range(8):
        bb = (wB, t+32)[rg % 2]
        nxt = wbuild(rg + 1) if rg < 7 else []
        for cg in range(7):
            c = "0" if rg == 0 else vr(t+4*cg, 4)
            A(f"v_mfma_f32_16x16x32_bf16 {vr(t+4*cg,4)}, {wo_tile(rg,cg)}, {vr(bb,4)}, {c}")
            if cg < 4:
                for x in nxt[2*cg:2*cg+2]:
                    A(x)
    NOP(8)
    exec_set(0xff00ff0000ff00ff)
    for cg in range(7):
        A(f"ds_write_b128 v{wR2W}, {vr(t+4*cg,4)} offset:{cg*256}")
    exec_all()
    A("s_waitcnt lgkmcnt(0)")
    A("s_barrier")
    exec_set((1 << 56) - 1)
    A(f"v_add_u32 v{t+16}, {LDS_RED2}, v{wPI8}")
    for p in range(8):
        A(f"ds_read_b64 {vr(t+2*p,2)}, v{t+16} offset:{p*1792}")
    A(f"s_sub_u32 s{sA1}, s{sKK}, 2")
    A(f"s_mul_i32 s{sA1}, s{sA1}, 1792")
    A(f"s_add_u32 s{sA1}, s{sA1}, s{sMYREG}")
    A("s_waitcnt lgkmcnt(0)")
    for p in range(1, 8):
        A(f"v_add_f32 v{t}, v{t}, v{t+2*p}")
        A(f"v_add_f32 v{t+1}, v{t+1}, v{t+2*p+1}")
    A(f"v_min_u32 v{t}, -2, v{t}")
    A(f"v_min_u32 v{t+1}, -2, v{t+1}")
    A(f"buffer_store_dwordx2 {vr(t,2)}, v{wPI8}, {sr(sWS,4)}, s{sA1} offen offset:{Y_OFF} sc1")
    exec_all()
    if DEBUG_TS:
        A(f"s_lshl_b32 s95, s{sKK}, 5")
        A("s_add_u32 s95, s95, 4")
        TS(0, "s95")
    A(f"s_add_u32 s{sBX}, s{sBX}, {LDS_X}")
    gather_vec(Y_OFF, "Y")
    A(f"ds_write_b64 v{t+34}, {vr(t,2)}")
    exec_all()
    A(f"s_sub_u32 s{sBX}, s{sBX}, {LDS_X}")
    A("s_waitcnt lgkmcnt(0)")
    A("s_barrier")
    if DEBUG_TS:
        A(f"s_lshl_b32 s95, s{sKK}, 5")
        A("s_add_u32 s95, s95, 8")
        TS(0, "s95")
    XP = t + 12
    PR(0)
    layernorm(XP, XP+1)
    PR(1)
    AG, AU = t+16, t+20
    gemv16(XP, gu_tile, AG, AU, (wB, t+24))
    PR(2)
    red_write(AG, AU)
    PR(3)
    for k in range(2):
        for m in range(2):
            A(f"ds_read_b128 {vr(t+4*(2*k+m),4)}, v{wHR} offset:{m*2048 + k*1024}")
    DT = t + 20
    A(f"s_lshl_b32 s{sA0}, s3, 11")
    A(f"v_add_u32 v{t+16}, s{sA0}, v{wL16}")
    A(f"v_add_u32 v{t+17}, {56*1024}, v{t+16}")
    def dread(i):
        rg, ci = i // 2, i % 2
        if rg < 8:
            A(f"ds_read_b128 {vr(DT+4*(i%4),4)}, v{t+16} offset:{(rg*7+ci)*1024}")
        else:
            A(f"ds_read_b128 {vr(DT+4*(i%4),4)}, v{t+17} offset:{((rg-8)*7+ci)*1024}")
    for i in range(4):
        dread(i)
    A("s_waitcnt lgkmcnt(4)")
    for q in range(4):
        b = t + 4*q
        A(f"v_add_f32 v{b}, v{b}, v{b+1}")
        A(f"v_add_f32 v{b+2}, v{b+2}, v{b+3}")
    for q in range(4):
        b = t + 4*q
        A(f"v_add_f32 v{b}, v{b}, v{b+2}")
    for q in range(4):
        bf16_round(t+4*q, t+4*q)
    for k in range(2):
        A(f"v_mul_f32 v{t+8*k}, {f32(-LOG2E)}, v{t+8*k}")
    for k in range(2):
        A(f"v_exp_f32 v{t+8*k}, v{t+8*k}")
    NOP(1)
    for k in range(2):
        A(f"v_add_f32 v{t+8*k}, 1.0, v{t+8*k}")
    for k in range(2):
        A(f"v_rcp_f32 v{t+8*k}, v{t+8*k}")
    NOP(1)
    for k in range(2):
        bf16_round(t+8*k, t+8*k)
    for k in range(2):
        A(f"v_mul_f32 v{t+8*k}, v{t+8*k}, v{t+8*k+4}")
    HP = (t+1, t+2)
    for k in range(2):
        A(f"v_cvt_pk_bf16_f32 v{HP[k]}, v{t+8*k}, v{t+8*k}")
    NOP(2)
    AD = (t+4, t+8)
    def dbuild(rg):
        bt = t + 3
        bb = (wB, t+12)[rg % 2]
        for x in bcast8(bt, t, HP[rg // 8], rg % 8):
            A(x)
        for j in range(4):
            A(f"v_and_b32 v{bb+j}, v{bt}, v{wM8+j}")
    PR(4)
    dbuild(0)
    NOP(1)
    for rg in range(14):
        bb = (wB, t+12)[rg % 2]
        for ci in range(2):
            i = rg*2 + ci
            rem = min(27 - i, 3)
            A(f"s_waitcnt lgkmcnt({rem})")
            c = "0" if rg == 0 else vr(AD[ci], 4)
            A(f"v_mfma_f32_16x16x32_bf16 {vr(AD[ci],4)}, {vr(DT+4*(i%4),4)}, {vr(bb,4)}, {c}")
            if i + 4 < 28:
                dread(i + 4)
            if ci == 0 and rg < 13:
                dbuild(rg + 1)
    PR(5)
    NOP(8)
    for k in range(8):
        A(f"v_mov_b32_dpp v{t+12+k}, v{t+4+k} row_ror:8 {DPPM}")
    NOP(1)
    for k in range(8):
        A(f"v_permlane32_swap_b32 v{t+12+k}, v{t+20+k}")
    NOP(1)
    for k in range(8):
        A(f"v_add_f32 v{t+4+k}, v{t+4+k}, v{t+20+k}")
    for k in range(8):
        A(f"v_min_u32 v{t+4+k}, -2, v{t+4+k}")
    A(f"s_sub_u32 s{sA1}, s{sKK}, 2")
    A(f"s_mul_i32 s{sA1}, s{sA1}, 1792")
    A(f"s_add_u32 s{sA1}, s{sA1}, s{sMYREG}")
    A(f"s_add_u32 s{sA1}, s{sA1}, {Z_OFF}")
    A("s_cmp_eq_u32 s3, 3")
    A(f"s_cselect_b32 s{sA2}, 0x80000000, s{sA1}")
    exec_set(0x00ff00ff)
    A(f"buffer_store_dwordx4 {vr(t+4,4)}, v{wZOFF}, {sr(sWS,4)}, s{sA1} offen sc1")
    A(f"buffer_store_dwordx4 {vr(t+8,4)}, v{wZOFF}, {sr(sWS,4)}, s{sA2} offen offset:256 sc1")
    exec_all()
    PR(6)
    PRDUMP(7)
    if QREG: wq_regs(0, 46, "a")
    if DEBUG_TS:
        A(f"s_lshl_b32 s95, s{sKK}, 5")
        A("s_add_u32 s95, s95, 12")
        TS(0, "s95")
    A(f"s_cmp_lt_u32 s{sKK}, 4")
    A("s_cbranch_scc1 L_SVZ")
    A(f"s_cmp_lg_u32 s{sS}, 0")
    A("s_cbranch_scc1 L_SVNEXT")
    LAB("L_SVZ")
    NOP(2)
    A(f"s_add_u32 s{sBX}, s{sBX}, {LDS_X}")
    gather_vec(Z_OFF, "Z")
    A(f"s_sub_u32 s{sBX}, s{sBX}, {LDS_X}")
    A(f"s_cmp_lt_u32 s{sKK}, 4")
    A("s_cbranch_scc1 L_SVZ2")
    A(f"s_lshr_b32 s{sA0}, s{sBX}, 1")
    A(f"buffer_store_short_d16_hi v{t}, v{wC0}, {sr(sOUT,4)}, s{sA0} offen")
    A(f"buffer_store_short_d16_hi v{t+1}, v{wC0}, {sr(sOUT,4)}, s{sA0} offen offset:16")
    exec_all()
    if DIAG:
        A(f"s_lshl_b32 s95, s{sKK}, 2")
        A("s_add_u32 s95, s95, 16")
        DG("s95")
    if DEBUG_TS:
        A(f"s_lshl_b32 s95, s{sKK}, 5")
        A("s_add_u32 s95, s95, 16")
        TS(0, "s95", lite=True)
    A("s_branch L_SVNEXT")
    LAB("L_SVZ2")
    A(f"ds_write_b64 v{t+34}, {vr(t,2)}")
    exec_all()
    A("s_waitcnt lgkmcnt(0)")
    LAB("L_SVQ")
    A("s_barrier")
    if DEBUG_TS:
        A(f"s_lshl_b32 s95, s{sKK}, 5")
        A("s_add_u32 s95, s95, 16")
        TS(0, "s95")
    layernorm(XP, XP+1)
    A(f"v_add_u32 v{t+14}, s{sRINGB}, v{wL16}")
    QT = (t, t+4, t+28, t+32)
    def qrd(tts):
        def f():
            for n, tt in enumerate(tts):
                for h in range(2):
                    A(f"ds_read_b128 {vr(QT[2*n+h],4)}, v{t+14} offset:{(2*tt+h-46)*1024}")
        return f
    def qtile(tt, h):
        if tt < 23:
            return gu_tile(tt, h)
        return vr(QT[2*((tt-23) % 2)+h], 4)
    wl = lambda: A("s_waitcnt lgkmcnt(0)")
    order = list(range(0, 8)) + [23, 24] + list(range(8, 16)) + [25, 26] + list(range(16, 23)) + [27]
    if QREG:
        gemv16(XP, qtile, AG, AU, (wB, t+24), order,
               {0: qrd([23, 24]), 8: wl, 11: qrd([25, 26]), 18: wl, 21: qrd([27]), 27: wl})
    else:
        wq_base()
        QT = t + 28
        for tt in range(28):
            bb = (wB, t+24)[tt % 2]
            for h in range(2):
                i = tt*2 + h
                if h == 0:
                    A(f"s_waitcnt vmcnt({max(min(55 - i - 1, NRING - 2), 0)})")
                A(f"ds_read_b128 {vr(QT+4*h,4)}, v{t+14} offset:{(i % NRING)*1024}")
            for j in range(4):
                A(f"v_and_b32_dpp v{bb+j}, v{XP+tt//16}, v{wM16+j} row_newbcast:{tt%16} {DPPM}")
            A("s_waitcnt lgkmcnt(0)")
            for h in range(2):
                i = tt*2 + h
                if i + NRING < 56:
                    wq_dma(i + NRING)
            NOP(1)
            for h, acc in ((0, AG), (1, AU)):
                c = "0" if tt == 0 else vr(acc, 4)
                A(f"v_mfma_f32_16x16x32_bf16 {vr(acc,4)}, {vr(QT+4*h,4)}, {vr(bb,4)}, {c}")
            NOP(4)
        for i in range(NRING):
            wq_dma(i)
    red_write(AG, AU)
    q_publish("L_SVQDONE")
    if QREG: gu_loads(23)
    if DIAG:
        A(f"s_lshl_b32 s95, s{sKK}, 2")
        A("s_add_u32 s95, s95, 16")
        DG("s95")
    if DEBUG_TS:
        A(f"s_lshl_b32 s95, s{sKK}, 5")
        A("s_add_u32 s95, s95, 20")
        TS(0, "s95")
    LAB("L_SVNEXT")
    A(f"s_add_u32 s{sKK}, s{sKK}, 1")
    A(f"s_cmp_lt_u32 s{sKK}, 6")
    A("s_cbranch_scc1 L_SVLOOP")

def main():
    global DEBUG_TS
    out = f"cdna_kernels/{NAME}.s"
    for a in sys.argv[1:]:
        if a == "--ts":
            DEBUG_TS = True
        elif a.startswith("--mall="):
            globals()["MALLMASK"] = int(a[7:])
        elif a.startswith("--statq="):
            globals()["STATQ"] = int(a[8:])
        elif a.startswith("--codepf="):
            globals()["CODEPF"] = int(a[9:])
        elif a == "--probe":
            globals()["PROBE"] = True
        elif a == "--wqnt":
            globals()["WQPOL"] = "nt"
        elif a.startswith("--nocomp="):
            globals()["NOCOMP"] = int(a[9:])
        elif a == "--mlpoll":
            globals()["MLPOLL"] = True
        elif a == "--tslite":
            DEBUG_TS = True
            globals()["TSLITE"] = True
        elif a.startswith("--xhalf="):
            globals()["XHALF"] = int(a[8:])
        elif a in ("--fix", "--diag", "--qreg", "--noqreg"):
            pass
        elif a.startswith("--relq="):
            globals()["RELQ"] = int(a[7:])
        elif a.startswith("--cut="):
            globals()["DEPTHCUT"] = int(a[6:])
        elif a.startswith("--wqs="):
            globals()["WQSPLIT"] = int(a[6:])
        elif a.startswith("--la="):
            globals()["LA"] = int(a[5:])
        elif a.startswith("--slowx="):
            globals()["SLOWX"] = int(a[8:])
        elif a.startswith("--sloww="):
            globals()["SLOWW"] = int(a[8:])
        elif a == "--statdef":
            globals()["STATPOL"] = ""
        else:
            out = a
    header()
    stream()
    service()
    footer()
    open(out, "w").write("\n".join(x for x in L if x is not None) + "\n")
    print("wrote", out, len(L), "lines")

main()
```
